```python
import torch

def _softmax(x, axis=-1):
    return torch.softmax(x, dim=axis)

def _gelu(x):
    return torch.nn.functional.gelu(x, approximate='tanh')

def _silu(x):
    return torch.nn.functional.silu(x)

def _sigmoid(x):
    return torch.sigmoid(x)

def _layernorm(x, axis=-1, eps=1e-05):
    m = x.mean(dim=axis, keepdim=True)
    v = x.var(dim=axis, keepdim=True, unbiased=False)
    return (x - m) / torch.sqrt(v + eps)

def _scatter_add(tgt, idx, src, axis=0):
    return tgt.clone().index_add_(axis, idx, src)

def _segment_sum(src, seg, n):
    out = torch.zeros((n,) + src.shape[1:], dtype=src.dtype)
    return out.index_add_(0, seg, src)

def _pad(x, pw):
    flat = tuple((v for pair in reversed(pw) for v in pair))
    return torch.nn.functional.pad(x, flat)
kernel_name = 'adaLN_cond__sliding_block__mixer_channel_mlp__prompt'

def setup_inputs():

    _w = lambda a: (lambda t: t.to(torch.bfloat16) if t.is_floating_point() else t)(torch.as_tensor(a))

    def _A_setup():
        B, S, D = (1, 2048, 640)
        return {'x': _w((lambda *s: torch.randn(*s, dtype=torch.bfloat16) * 0.05)(B, S, D)), 'wqkv': _w((lambda *s: torch.randn(*s, dtype=torch.bfloat16) * 0.05)(D, 3 * D)), 'wo': _w((lambda *s: torch.randn(*s, dtype=torch.bfloat16) * 0.05)(D, D))}
    _A_in = _A_setup()

    def _B_setup():
        B, S, D, F = (1, 2048, 640, 1536)
        return {'x': _w((lambda *s: torch.randn(*s, dtype=torch.bfloat16) * 0.05)(B, S, D)), 'w1': _w((lambda *s: torch.randn(*s, dtype=torch.bfloat16) * 3.2)(D, F) * D ** (-0.5)), 'b1': _w((lambda *s: torch.randn(*s, dtype=torch.bfloat16) * 1.6)(F)), 'w2': _w((lambda *s: torch.randn(*s, dtype=torch.bfloat16) * 0.4)(F, D) * F ** (-0.5)), 'b2': _w((lambda *s: torch.randn(*s, dtype=torch.bfloat16) * 0.8)(D))}
    _B_in = _B_setup()
    return {'A_x': _A_in['x'], 'A_wqkv': _A_in['wqkv'], 'A_wo': _A_in['wo'], 'B_x': _B_in['x'], 'B_w1': _B_in['w1'], 'B_b1': _B_in['b1'], 'B_w2': _B_in['w2'], 'B_b2': _B_in['b2'], 'c': _w((lambda *s: torch.randn(*s, dtype=torch.bfloat16) * 0.1)(1, 640) * 8.0), 'w_mod': _w((lambda *s: torch.randn(*s, dtype=torch.bfloat16) * 0.1)(640, 6 * 640) * 640 ** (-0.5) * 8.0)}

def reference(A_x, A_wqkv, A_wo, B_x, B_w1, B_b1, B_w2, B_b2, c, w_mod):

    def _A_ref(x, wqkv, wo):
        B, S, D = x.shape
        H = 32
        Dh = D // H
        W = 256
        qkv = (lambda x, *d: x.permute(*d))((x @ wqkv).reshape(B, S, 3, H, Dh), 2, 0, 3, 1, 4)
        q, k, v = (qkv[0], qkv[1], qkv[2])
        scores = torch.einsum('bhqd,bhkd->bhqk', q, k) * Dh ** (-0.5)
        idx = torch.arange(S)
        mask = (idx[:, None] - idx[None, :] >= 0) & (idx[:, None] - idx[None, :] < W)
        scores = torch.where(mask[None, None], scores, -1000000000.0)
        p = _softmax(scores, axis=-1)
        o = torch.einsum('bhqk,bhkd->bhqd', p, v)
        return (lambda x, *d: x.permute(*d))(o, 0, 2, 1, 3).reshape(B, S, D) @ wo

    def _B_ref(x, w1, b1, w2, b2):
        y = _layernorm(x, axis=-1)
        h = _gelu(torch.einsum('bsd,df->bsf', y, w1) + b1)
        return torch.einsum('bsf,fd->bsd', h, w2) + b2
    x = A_x
    mod = (_silu(c) @ w_mod).reshape(c.shape[0], 6, 1, -1)
    sa, ca, ga, sb, cb, gb = (mod[:, 0].clone(), mod[:, 1].clone(), mod[:, 2].clone(), mod[:, 3].clone(), mod[:, 4].clone(), mod[:, 5].clone())
    h = _layernorm(x, axis=-1) * (1 + ca) + sa
    x = x + ga * _A_ref(h, A_wqkv, A_wo)
    h = _layernorm(x, axis=-1) * (1 + cb) + sb
    x = x + gb * _B_ref(h, B_w1, B_b1, B_w2, B_b2)
    return x
```

```python
import re

TRANS = ("v_exp_f32", "v_log_f32", "v_rcp_f32", "v_rsq_f32", "v_sqrt_f32", "v_sin_f32", "v_cos_f32", "v_rcp_iflag_f32")
REG_RE = re.compile(r"^(-|abs\()?([vas])(\d+|\[(\d+):(\d+)\])\)?$")

def regs_of(tok):
    tok = tok.strip()
    if tok in ("vcc", "exec", "m0", "scc"):
        return {(tok, 0)}
    if tok in ("vcc_lo", "vcc_hi"):
        return {("vcc", 0)}
    if tok in ("exec_lo", "exec_hi"):
        return {("exec", 0)}
    m = REG_RE.match(tok)
    if not m:
        return set()
    kind = m.group(2)
    if m.group(4) is not None:
        return {(kind, i) for i in range(int(m.group(4)), int(m.group(5)) + 1)}
    return {(kind, int(m.group(3)))}

class Ins:
    __slots__ = ("text", "op", "ops", "cls", "rd", "wr", "passes", "srcc", "dpp", "states", "sdata")
    def __init__(self, text):
        self.text = text
        t = text.split(";")[0].strip()
        self.cls = "other"; self.rd = set(); self.wr = set(); self.passes = 0; self.srcc = set()
        self.dpp = False; self.states = 1; self.sdata = set()
        if not t or t.endswith(":") or t.startswith("."):
            self.op = ""; self.ops = []; self.cls = "none"; self.states = 0
            return
        parts = t.split(None, 1)
        self.op = op = parts[0]
        rest = parts[1] if len(parts) > 1 else ""
        raw = [x.strip() for x in rest.split(",")] if rest else []
        ops = []
        mods = ""
        depth_fix = []
        cur = ""
        for x in re.split(r",(?![^\[]*\])", rest):
            depth_fix.append(x.strip())
        for i, x in enumerate(depth_fix):
            if i == len(depth_fix) - 1:
                sp = x.split(None, 1)
                if sp:
                    ops.append(sp[0])
                    mods = sp[1] if len(sp) > 1 else ""
            else:
                ops.append(x)
        self.ops = ops
        R = lambda i: regs_of(ops[i]) if i < len(ops) else set()
        if op == "s_nop":
            self.cls = "nop"; self.states = int(ops[0], 0) + 1
        elif op.startswith("v_mfma"):
            self.cls = "mfma"
            self.passes = 8 if "32x32" in op else 4
            self.wr = R(0); self.rd = R(1) | R(2) | R(3); self.srcc = R(3)
        elif op.startswith("v_"):
            self.cls = "trans" if any(op.startswith(x) for x in TRANS) else "valu"
            self.dpp = ("dpp" in op) or ("row_" in mods) or ("quad_perm" in mods)
            allr = set()
            if op.startswith("v_cmp"):
                self.wr = R(0); self.rd = set().union(*[R(i) for i in range(1, len(ops))])
            elif op.startswith("v_permlane") and "swap" in op:
                self.cls = "permlane"
                self.wr = R(0) | R(1); self.rd = R(0) | R(1)
            elif op.startswith("v_readfirstlane") or op.startswith("v_readlane"):
                self.cls = "readlane"
                self.wr = R(0); self.rd = set().union(*[R(i) for i in range(1, len(ops))])
            elif op.startswith(("v_add_co", "v_sub_co", "v_addc_co", "v_subb_co")):
                self.wr = R(0) | R(1); self.rd = set().union(*[R(i) for i in range(2, len(ops))])
            else:
                self.wr = R(0); self.rd = set().union(*[R(i) for i in range(1, len(ops))]) if len(ops) > 1 else set()
                if op.startswith(("v_fmac", "v_dot2c", "v_mac", "v_pk_fmac")) or self.dpp or "sdwa" in op:
                    self.rd |= R(0)
                if op.startswith("v_cndmask") and len(ops) == 3:
                    self.rd |= {("vcc", 0)}
        elif op.startswith("ds_"):
            self.cls = "ds"
            if op.startswith("ds_read") or op.startswith("ds_bpermute") or op.startswith("ds_swizzle"):
                self.wr = R(0); self.rd = set().union(*[R(i) for i in range(1, len(ops))])
            else:
                self.rd = set().union(*[R(i) for i in range(len(ops))])
        elif op.startswith(("buffer_", "global_")):
            self.cls = "vmem"
            lds = re.search(r"\blds\b", mods) is not None or "load_lds" in op
            if op in ("buffer_wbl2", "buffer_inv"):
                pass
            elif "load" in op and not lds:
                self.wr = R(0); self.rd = set().union(*[R(i) for i in range(1, len(ops))])
            elif lds:
                self.rd = set().union(*[R(i) for i in range(len(ops))]) | {("m0", 0)}
                self.cls = "vmem_lds"
            elif op.startswith("buffer_store") or op.startswith("buffer_atomic"):
                self.rd = set().union(*[R(i) for i in range(len(ops))])
                if op.endswith(("x3", "x4")):
                    self.sdata = R(0)
                if op.startswith("buffer_atomic") and "sc0" in mods:
                    self.wr = R(0)
            else:
                self.rd = set().union(*[R(i) for i in range(len(ops))])
                if op.endswith(("x3", "x4")):
                    self.sdata = R(1)
        elif op.startswith("s_"):
            self.cls = "salu"
            if op.startswith(("s_load", "s_memtime", "s_memrealtime", "s_buffer_load")):
                self.cls = "smem"
                self.wr = R(0); self.rd = set().union(*[R(i) for i in range(1, len(ops))]) if len(ops) > 1 else set()
            elif op.startswith(("s_cmp", "s_cbranch", "s_branch", "s_waitcnt", "s_barrier", "s_endpgm", "s_sleep", "s_setprio", "s_bitcmp")):
                self.rd = set().union(*[R(i) for i in range(len(ops))]) if ops else set()
            else:
                self.wr = R(0); self.rd = set().union(*[R(i) for i in range(1, len(ops))]) if len(ops) > 1 else set()
                if "saveexec" in op:
                    self.wr |= {("exec", 0)}; self.rd |= {("exec", 0)}

def is_valu(i):
    return i.cls in ("valu", "trans", "permlane", "readlane")

def need(prod, cons):
    n = 0
    pw = prod.wr
    if not pw and not prod.sdata and prod.cls != "mfma":
        return 0
    vpw = {r for r in pw if r[0] in "va"}
    spw = {r for r in pw if r[0] in ("s", "vcc")}
    if is_valu(prod):
        if cons.cls == "mfma" and vpw & cons.rd: n = max(n, 2)
        if cons.cls == "permlane" and vpw & cons.rd: n = max(n, 2)
        if cons.cls == "readlane" and vpw & cons.rd: n = max(n, 1)
        if cons.dpp and vpw & cons.rd: n = max(n, 2)
        if prod.cls == "trans" and is_valu(cons) and cons.cls != "trans" and vpw & cons.rd: n = max(n, 1)
        if prod.cls == "trans" and cons.cls == "trans" and vpw & cons.rd: n = max(n, 1)
        if spw:
            if is_valu(cons) and spw & cons.rd: n = max(n, 4 if cons.cls == "readlane" else 2)
            if cons.cls in ("vmem", "vmem_lds") and spw & cons.rd: n = max(n, 5)
            if cons.cls in ("salu", "smem") and spw & cons.rd: n = max(n, 4)
        if ("exec", 0) in pw:
            n = max(n, 5)
        if prod.op.startswith("v_dot") and vpw & (cons.rd | cons.wr):
            same_c = cons.op == prod.op and vpw & (cons.rd | cons.wr) and not (
                vpw & (regs_of(cons.ops[1]) | regs_of(cons.ops[2])))
            if not same_c: n = max(n, 3)
    if prod.cls == "mfma":
        p = prod.passes
        if cons.cls == "mfma":
            if pw & cons.srcc:
                if pw == cons.srcc and p == cons.passes: pass
                else: n = max(n, p + 2)
            ab = cons.rd - cons.srcc if cons.srcc else cons.rd
            if pw & (regs_of(cons.ops[1]) | regs_of(cons.ops[2])): n = max(n, p + 4)
            if pw & cons.wr and not (pw == cons.srcc and p == cons.passes): n = max(n, p + 2)
        elif is_valu(cons) or cons.cls in ("ds", "vmem", "vmem_lds"):
            if pw & (cons.rd | cons.wr): n = max(n, p + 4)
        if is_valu(cons) and (prod.srcc & cons.wr): n = max(n, p - 1)
    if prod.sdata:
        if prod.sdata & cons.wr: n = max(n, 2 if is_valu(cons) else 1)
    if prod.cls == "salu" and ("m0", 0) in pw and cons.cls == "vmem_lds": n = max(n, 1)
    if prod.cls == "salu" and ("exec", 0) in pw and cons.cls == "mfma": n = max(n, 0)
    return n

class Asm:
    def __init__(self):
        self.lines = []
    def __call__(self, text):
        for l in text.strip("\n").split("\n"):
            l = l.strip()
            if l:
                self.lines.append(l)
    def label(self, name):
        self.lines.append(name + ":")
    def finish(self, lookback=24):
        ins = [Ins(l) for l in self.lines]
        out = []
        inserted = 0
        for c in ins:
            if c.cls != "none":
                req = 0
                dist = 0
                for p in reversed(out[-lookback * 2:]):
                    if p.cls == "none":
                        continue
                    r = need(p, c)
                    if r > dist:
                        req = max(req, r - dist)
                    dist += p.states
                    if dist >= 20:
                        break
                while req > 0:
                    k = min(req, 16)
                    out.append(Ins(f"s_nop {k-1}"))
                    inserted += 1
                    req -= k
            out.append(c)
        self.inserted = inserted
        return "\n".join(i.text for i in out)
```

```python
import sys, os
sys.path.insert(0, os.path.dirname(os.path.abspath(__file__)))
from asm import Asm

NAME = "adaLN_cond__sliding_block__mixer_channel_mlp__prompt"

WS_FLAGS = 0x0
WS_MODP = 0x40000
WS_ST = 0x50000
WS_NF = 0x100000
WS_KF = 0x400000
WS_VF = 0x700000
WS_OF = 0xA00000
WS_UF = 0xD00000
WS_HF = 0x1000000
WS_TS = 0x1800000
WS_SIZE = 0x10000000
OOB = 0x7F000000
PT = 153600
PT_GA, PT_G2, PT_GB, PT_B2, PT_B1 = PT, PT + 320, PT + 640, PT + 960, PT + 1280
PT_G2B, PT_S2B, PT_VEC, PT_PART = PT + 1664, PT + 2944, PT + 4224, PT + 5376

S_W, S_EP, S_P, S_T, S_U, S_V, S_T1, S_J = "s4", "s5", "s6", "s7", "s8", "s9", "s10", "s11"
P_X, P_WQKV, P_WO, P_W1, P_B1, P_W2, P_B2, P_C, P_WMOD, P_OUT, P_DBG, P_WS = 16, 18, 20, 24, 26, 28, 30, 32, 34, 36, 38, 40
WS = "s[44:47]"; SA = "s[48:51]"; SB = "s[52:55]"; SC = "s[56:59]"; DBG = "s[60:63]"

class G:
    def __init__(self, stop_after=99, prof=False, timeout=1 << 20):
        self.a = Asm()
        self.stop_after = stop_after
        self.prof = prof
        self.timeout = timeout
        self.nlab = 0
        self.nts = 0
    def lab(self, s):
        self.nlab += 1
        return f"L_{s}_{self.nlab}"
    def srd(self, q, ptr, size):
        b = int(q[2:q.index(":")])
        self.a(f"""s_mov_b32 s{b}, s{ptr}
s_mov_b32 s{b+1}, s{ptr+1}
s_mov_b32 s{b+2}, {size:#x}
s_mov_b32 s{b+3}, 0x00020000""")
    def stamp(self, idx):
        if not self.prof:
            return
        a = self.a
        l = self.lab("ts")
        a(f"""s_cmp_lg_u32 {S_W}, 0
s_cbranch_scc1 {l}
s_memtime s[100:101]
s_lshl_b32 s3, s2, 7
s_add_u32 s3, s3, {WS_TS + idx*4:#x}
s_waitcnt lgkmcnt(0)
v_mov_b32 v254, s100
v_mov_b32 v255, 0
buffer_store_dword v254, v255, {WS}, s3 offen
{l}:""")
        self.extra_vm = True

    def flag_store(self, phase, idx_sgpr):
        a = self.a
        l = self.lab("fs")
        a(f"""s_cmp_lg_u32 {S_W}, 0
s_cbranch_scc1 {l}
s_lshl_b32 s64, {idx_sgpr}, 7
s_add_u32 s64, s64, {WS_FLAGS + phase*0x8000:#x}
v_mov_b32 v252, {S_EP}
v_mov_b32 v253, 0
s_mov_b64 s[66:67], exec
s_mov_b64 exec, 1
buffer_store_dword v252, v253, {WS}, s64 offen sc1
s_mov_b64 exec, s[66:67]
{l}:""")

    def poll(self, vaddrs):
        a = self.a
        if isinstance(vaddrs, str): vaddrs = [vaddrs]
        l = self.lab("pl"); l2 = self.lab("pd")
        a(f"""s_cmp_lg_u32 {S_W}, 0
s_cbranch_scc1 {l2}
s_mov_b32 s64, 0
{l}:""")
        for i, v in enumerate(vaddrs):
            a(f"buffer_load_dword v{250+i}, {v}, {WS}, 0 offen sc1")
        a(f"""s_add_u32 s64, s64, 1
s_cmp_gt_u32 s64, {self.timeout}
s_cbranch_scc1 {l2}
s_waitcnt vmcnt(0)
v_cmp_ne_u32 vcc, {S_EP}, v250""")
        for i in range(1, len(vaddrs)):
            a(f"""v_cmp_ne_u32 s[66:67], {S_EP}, v{250+i}
s_nop 3
s_or_b64 vcc, vcc, s[66:67]""")
        a(f"""s_nop 3
s_cmp_eq_u64 vcc, 0
s_cbranch_scc0 {l}
{l2}:
s_waitcnt vmcnt(0)
s_barrier""")

    def prologue(self):
        a = self.a
        a(f"""s_cmp_ge_u32 s2, 256
s_cbranch_scc1 L_end
s_load_dwordx16 s[16:31], s[0:1], 0
s_load_dwordx8 s[32:39], s[0:1], 64
s_load_dwordx2 s[40:41], s[0:1], 96
s_getpc_b64 s[64:65]
L_pc:
s_add_u32 s64, s64, L_code_begin-L_pc
s_addc_u32 s65, s65, -1
v_and_b32 v1, 63, v0
v_lshrrev_b32 v2, 6, v0
s_lshr_b32 s12, s2, 3
v_readfirstlane_b32 {S_W}, v2
s_and_b32 s13, s2, 7
s_cmp_lg_u32 {S_W}, 0
s_cbranch_scc1 L_nopf
s_lshl_b32 s14, s12, 6
v_add_u32 v3, s14, v1
v_lshlrev_b32 v3, 6, v3
v_min_u32 v3, L_code_end-L_code_begin-4, v3
global_load_dword v248, v3, s[64:65]
v_add_u32 v3, 32*64*64, v3
v_min_u32 v3, L_code_end-L_code_begin-4, v3
global_load_dword v249, v3, s[64:65]
L_nopf:
s_lshr_b32 s14, s13, 1
s_lshl_b32 s14, s14, 2
s_and_b32 s15, s12, 3
s_add_u32 {S_T}, s14, s15
s_and_b32 s14, s13, 1
s_lshl_b32 s14, s14, 3
s_lshr_b32 s15, s12, 2
s_add_u32 {S_P}, s14, s15
; wo / w2: U = 4x + (r&3), V = r>>2
s_lshl_b32 s14, s13, 2
s_and_b32 s15, s12, 3
s_add_u32 {S_U}, s14, s15
s_lshr_b32 {S_V}, s12, 2
; w1: T1 = 2x + (r&1), j = r>>1
s_lshl_b32 s14, s13, 1
s_and_b32 s15, s12, 1
s_add_u32 {S_T1}, s14, s15
s_lshr_b32 {S_J}, s12, 1
s_waitcnt lgkmcnt(0)""")
        self.srd(WS, P_WS, WS_SIZE)
        self.srd(DBG, P_DBG, 256)
        a(f"""s_cmp_lg_u32 s2, 0
s_cbranch_scc1 L_noep
s_cmp_lg_u32 {S_W}, 0
s_cbranch_scc1 L_noep
s_memrealtime s[66:67]
s_waitcnt lgkmcnt(0)
s_or_b32 s66, s66, 1
v_mov_b32 v3, s66
v_mov_b32 v4, 0
s_mov_b64 exec, 1
buffer_store_dword v3, v4, {DBG}, 0 offen sc1
s_mov_b64 exec, -1
L_noep:""")

    def phase0(self):
        a = self.a
        self.srd(SA, P_C, 1280)
        self.srd(SB, P_WMOD, 640*7680)
        self.srd(SC, P_X, 2048*1280)
        LDS_M = 158720
        LDS_L = 159744
        a(f"""; ---- phase 0 ----
v_and_b32 v2, 7, v1
v_lshrrev_b32 v3, 3, v1
; mod job: cg = id % 60, kq = id / 60 (ids >= 240 get out-of-range rows -> zeros, no store)
s_mul_hi_u32 s12, s2, {(2**32 + 59)//60}
s_mul_i32 s13, s12, 60
s_sub_u32 s13, s2, s13
s_mul_i32 s14, s12, 160
s_mul_i32 s15, {S_W}, 40
s_add_u32 s14, s14, s15
v_add_u32 v4, s14, v3
v_lshlrev_b32 v5, 1, v4
s_movk_i32 s15, 7680
v_mul_lo_u32 v6, v4, s15
s_lshl_b32 s15, s13, 7
v_lshl_add_u32 v7, v2, 4, s15
v_add_u32 v6, v6, v7""")
        for j in range(5):
            a(f"buffer_load_ushort v{8+j}, v5, {SA}, 0 offen offset:{16*j}")
        for j in range(5):
            a(f"s_mov_b32 s15, {j*8*7680}\nbuffer_load_dwordx4 v[{16+4*j}:{19+4*j}], v6, {SB}, s15 offen")
        a(f"""s_lshl_b32 s14, s2, 3
v_add_u32 v7, s14, v2
s_movk_i32 s15, 1280
v_mul_lo_u32 v7, v7, s15
s_mul_i32 s15, {S_W}, 20
v_add_u32 v13, s15, v3
v_lshl_add_u32 v7, v13, 4, v7
v_add_u32 v14, 256, v7
v_cmp_gt_u32 vcc, 4, v3
v_mov_b32 v15, {OOB:#x}
s_nop 0
v_cndmask_b32 v14, v15, v14, vcc
buffer_load_dwordx4 v[36:39], v7, {SC}, 0 offen
buffer_load_dwordx4 v[40:43], v7, {SC}, 0 offen offset:128
buffer_load_dwordx4 v[44:47], v14, {SC}, 0 offen""")
        l = self.lab("ep"); l2 = self.lab("epd")
        a(f"""s_cmp_lg_u32 {S_W}, 0
s_cbranch_scc1 {l2}
s_mov_b32 s64, 0
v_mov_b32 v251, 0
{l}:
buffer_load_dword v250, v251, {DBG}, 0 offen sc1
s_add_u32 s64, s64, 1
s_cmp_gt_u32 s64, {self.timeout}
s_cbranch_scc1 {l2}
s_waitcnt vmcnt(0)
v_readfirstlane_b32 {S_EP}, v250
s_cmp_eq_u32 {S_EP}, 0
s_cbranch_scc1 {l}
{l2}:""")
        a("s_waitcnt vmcnt(8)")
        for j in range(5):
            a(f"""v_lshlrev_b32 v{8+j}, 16, v{8+j}
v_mul_f32 v13, 0xbfb8aa3b, v{8+j}
v_exp_f32 v13, v13
v_add_f32 v13, 1.0, v13
v_rcp_f32 v13, v13
v_mul_f32 v13, v{8+j}, v13
v_cvt_pk_bf16_f32 v13, v13, v13
v_lshlrev_b32 v{8+j}, 16, v13""")
        for e in range(8):
            a(f"v_mov_b32 v{48+e}, 0")
        for j in range(5):
            a(f"s_waitcnt vmcnt({7-j})")
            for d in range(4):
                r = 16 + 4*j + d
                a(f"""v_lshlrev_b32 v13, 16, v{r}
v_and_b32 v15, 0xffff0000, v{r}
v_fmac_f32 v{48+2*d}, v{8+j}, v13
v_fmac_f32 v{49+2*d}, v{8+j}, v15""")
        for d in range(4):
            a(f"v_permlane32_swap_b32 v{48+2*d}, v{49+2*d}")
        for d in range(4):
            a(f"v_add_f32 v{48+2*d}, v{48+2*d}, v{49+2*d}")
        a("""v_permlane16_swap_b32 v48, v50
v_permlane16_swap_b32 v52, v54
v_add_f32 v48, v48, v50
v_add_f32 v52, v52, v54
v_add_f32_dpp v48, v48, v48 row_ror:8 row_mask:0xf bank_mask:0xf
v_add_f32_dpp v52, v52, v52 row_ror:8 row_mask:0xf bank_mask:0xf""")
        a(f"""v_lshrrev_b32 v13, 4, v1
v_and_b32 v15, 1, v13
v_lshlrev_b32 v15, 1, v15
v_lshrrev_b32 v13, 1, v13
v_add_u32 v13, v13, v15
v_bfe_u32 v15, v1, 3, 1
v_lshl_add_u32 v13, v15, 2, v13
v_lshl_add_u32 v13, v2, 3, v13
v_cmp_eq_u32 vcc, 1, v15
s_lshl_b32 s14, {S_W}, 8
s_add_u32 s14, s14, {LDS_M}
v_lshl_add_u32 v13, v13, 2, s14
v_cndmask_b32 v48, v48, v52, vcc
ds_write_b32 v13, v48""")
        a("s_waitcnt vmcnt(0)\nv_mov_b32 v56, 0\nv_mov_b32 v57, 0\nv_mov_b32 v58, 0x3f803f80")
        for r in range(36, 48):
            a(f"v_dot2_f32_bf16 v56, v{r}, v58, v56\nv_dot2_f32_bf16 v57, v{r}, v{r}, v57")
        a(f"""s_nop 1
v_permlane32_swap_b32 v56, v57
s_nop 1
v_add_f32 v56, v56, v57
v_mov_b32 v57, v56
s_nop 1
v_permlane16_swap_b32 v56, v57
s_nop 1
v_add_f32 v56, v56, v57
s_nop 1
v_add_f32_dpp v56, v56, v56 row_ror:8 row_mask:0xf bank_mask:0xf
v_lshrrev_b32 v13, 5, v1
v_lshl_add_u32 v13, v13, 3, v2
v_lshlrev_b32 v13, 4, v13
s_lshl_b32 s14, {S_W}, 2
s_add_u32 s14, s14, {LDS_L}
v_add_u32 v13, s14, v13
ds_write_b32 v13, v56
s_waitcnt lgkmcnt(0)
s_barrier""")
        l = self.lab("m0")
        a(f"""s_cmp_lg_u32 {S_W}, 0
s_cbranch_scc1 {l}
s_cmp_ge_u32 s2, 240
s_cbranch_scc1 {l}
v_lshlrev_b32 v13, 2, v1
v_add_u32 v15, {LDS_M}, v13
ds_read_b32 v48, v15
ds_read_b32 v49, v15 offset:256
ds_read_b32 v50, v15 offset:512
ds_read_b32 v51, v15 offset:768
s_mul_i32 s14, s12, 3840*4
s_lshl_b32 s15, s13, 8
s_add_u32 s14, s14, s15
s_add_u32 s14, s14, {WS_MODP:#x}
s_waitcnt lgkmcnt(0)
v_add_f32 v48, v48, v49
v_add_f32 v50, v50, v51
v_add_f32 v48, v48, v50
buffer_store_dword v48, v13, {WS}, s14 offen sc1
{l}:""")
        a(f"""v_lshlrev_b32 v13, 4, v2
v_add_u32 v13, {LDS_L}, v13
ds_read_b128 v[48:51], v13
ds_read_b128 v[52:55], v13 offset:128
s_waitcnt lgkmcnt(0)
v_add_f32 v48, v48, v49
v_add_f32 v50, v50, v51
v_add_f32 v52, v52, v53
v_add_f32 v54, v54, v55
v_add_f32 v48, v48, v50
v_add_f32 v52, v52, v54
v_mul_f32 v48, {f2h(1/640)}, v48
v_mul_f32 v52, {f2h(1/640)}, v52
v_fma_f32 v52, -v48, v48, v52
v_max_f32 v52, 0, v52
v_add_f32 v52, {f2h(1e-5)}, v52
v_rsq_f32 v52, v52
s_nop 0
v_mul_f32 v48, v48, v52
v_sub_f32 v48, 0, v48""")
        for r in range(36, 48):
            a(f"""v_lshlrev_b32 v13, 16, v{r}
v_and_b32 v15, 0xffff0000, v{r}
v_fma_f32 v13, v13, v52, v48
v_fma_f32 v15, v15, v52, v48
v_cvt_pk_f16_f32 v{r}, v13, v15""")
        a(f"""s_mul_i32 s15, {S_W}, 20
v_add_u32 v13, s15, v3
v_lshrrev_b32 v15, 1, v13
v_lshlrev_b32 v15, 10, v15
v_and_b32 v13, 1, v13
v_lshl_add_u32 v15, v13, 9, v15
s_and_b32 s14, s2, 3
s_lshl_b32 s14, s14, 3
v_add_u32 v13, s14, v2
v_lshl_add_u32 v15, v13, 4, v15
v_add_u32 v13, 8192, v15
v_cmp_gt_u32 vcc, 4, v3
v_mov_b32 v7, {OOB:#x}
s_lshr_b32 s14, s2, 2
s_mul_i32 s14, s14, 40960
v_cndmask_b32 v13, v7, v13, vcc
s_add_u32 s14, s14, {WS_NF:#x}
buffer_store_dwordx4 v[36:39], v15, {WS}, s14 offen sc1
s_add_u32 s15, s14, 4096
buffer_store_dwordx4 v[40:43], v15, {WS}, s15 offen sc1
buffer_store_dwordx4 v[44:47], v13, {WS}, s14 offen sc1
s_waitcnt vmcnt(0)
s_barrier""")
        self.flag_store(0, "s2")

    def dma_wqkv(self):
        a = self.a
        self.srd(SA, P_WQKV, 640*3840)
        for jj in range(4):
            a(f"""v_add_u32 v8, {256*jj}, v0
v_mul_u32_u24 v9, 4370, v8
v_lshrrev_b32 v9, 16, v9
v_mul_u32_u24 v10, 15, v9
v_sub_u32 v10, v8, v10
v_and_b32 v11, 3, v10
v_lshrrev_b32 v10, 2, v10
v_lshl_add_u32 v10, v11, 2, v10
v_mul_u32_u24 v11, 52, v10
v_lshrrev_b32 v11, 8, v11
v_mul_u32_u24 v12, 5, v11
v_sub_u32 v10, v10, v12
v_add_u32 v11, 1, v11
v_cmp_eq_u32 vcc, 3, v11
v_mul_u32_u24 v12, 1280, v11
v_lshl_add_u32 v10, v10, 4, v12
v_subrev_u32 v12, 3840, v10
v_mul_u32_u24 v9, 3840, v9
v_cndmask_b32 v10, v10, v12, vcc
v_add_u32 v{4+jj}, v9, v10""")
        a(f"""s_mul_i32 s12, {S_P}, 80
s_lshl_b32 s13, {S_W}, 10""")
        for g in range(10):
            for jj in range(4):
                if jj == 3:
                    l = self.lab("d3")
                    a(f"s_cmp_eq_u32 {S_W}, 3\ns_cbranch_scc1 {l}")
                a(f"s_add_u32 m0, s13, {(15*g + 4*jj)*1024}\ns_nop 0\nbuffer_load_dwordx4 v{4+jj}, {SA}, s12 offen lds")
                if jj == 3:
                    a(f"{l}:")
            if g < 9:
                a(f"s_add_u32 s12, s12, {64*3840}")

    def phase_qkv(self):
        a = self.a
        LDS_GS = 153600
        a("""; ---- phase 1: QKV ----
v_lshlrev_b32 v8, 7, v1
v_add_u32 v9, 64*128, v8
v_add_u32 v10, 128*128, v8
v_add_u32 v11, 192*128, v8""")
        self.poll(["v8", "v9", "v10", "v11"])
        self.stamp(2)
        a(f"""v_lshlrev_b32 v2, 4, v1
s_lshl_b32 s12, {S_T}, 2
s_add_u32 s12, s12, {S_W}
s_mul_i32 s12, s12, 40960
s_add_u32 s12, s12, {WS_NF:#x}""")
        a(f"""v_lshlrev_b32 v8, 4, v0
v_cmp_gt_u32 vcc, 160, v0
s_and_saveexec_b64 s[66:67], vcc
s_cbranch_execz L_gs_skip""")
        for kq in range(4):
            a(f"s_mov_b32 s14, {WS_MODP + kq*15360}\nbuffer_load_dwordx4 v[{16+4*kq}:{19+4*kq}], v8, {WS}, s14 offen sc1")
            a(f"buffer_load_dwordx4 v[{32+4*kq}:{35+4*kq}], v8, {WS}, s14 offen offset:2560 sc1")
        a("s_waitcnt vmcnt(0)")
        for e in range(4):
            a(f"""v_add_f32 v{16+e}, v{16+e}, v{20+e}
v_add_f32 v{24+e}, v{24+e}, v{28+e}
v_add_f32 v{32+e}, v{32+e}, v{36+e}
v_add_f32 v{40+e}, v{40+e}, v{44+e}
v_add_f32 v{16+e}, v{16+e}, v{24+e}
v_add_f32 v{32+e}, v{32+e}, v{40+e}""")
        a("""v_cvt_pk_bf16_f32 v20, v16, v17
v_cvt_pk_bf16_f32 v21, v18, v19
v_cvt_pk_bf16_f32 v22, v32, v33
v_cvt_pk_bf16_f32 v23, v34, v35
v_lshlrev_b32 v16, 16, v20
v_and_b32 v17, 0xffff0000, v20
v_lshlrev_b32 v18, 16, v21
v_and_b32 v19, 0xffff0000, v21
v_lshlrev_b32 v32, 16, v22
v_and_b32 v33, 0xffff0000, v22
v_lshlrev_b32 v34, 16, v23
v_and_b32 v35, 0xffff0000, v23
v_add_f32 v32, 1.0, v32
v_add_f32 v33, 1.0, v33
v_add_f32 v34, 1.0, v34
v_add_f32 v35, 1.0, v35
v_cvt_pk_bf16_f32 v22, v32, v33
v_cvt_pk_bf16_f32 v23, v34, v35
v_lshlrev_b32 v32, 16, v22
v_and_b32 v33, 0xffff0000, v22
v_lshlrev_b32 v34, 16, v23
v_and_b32 v35, 0xffff0000, v23""")
        a(f"""v_lshrrev_b32 v9, 2, v0
v_lshlrev_b32 v9, 7, v9
v_bfe_u32 v10, v0, 1, 1
v_lshl_add_u32 v9, v10, 6, v9
v_and_b32 v10, 1, v0
v_lshl_add_u32 v9, v10, 4, v9
v_add_u32 v9, {LDS_GS}, v9
ds_write_b128 v9, v[32:35]
ds_write_b128 v9, v[16:19] offset:32
L_gs_skip:
s_mov_b64 exec, s[66:67]""")
        NB = 64
        PF = 8
        def nload(s):
            if s % 4 == 0 and s > 0:
                a("s_add_u32 s12, s12, 4096")
            a(f"buffer_load_dwordx4 v[{NB+4*s}:{NB+4*s+3}], v2, {WS}, s12 offen offset:{(s%4)*1024} sc1")
        for s in range(PF):
            nload(s)
        a(f"""v_lshrrev_b32 v8, 5, v1           ; h
v_lshlrev_b32 v3, 6, v8
v_add_u32 v3, {LDS_GS}, v3          ; g/s base
v_bfe_u32 v9, v1, 2, 2              ; r
v_lshl_add_u32 v9, v8, 3, v9        ; 8h + r
v_mul_u32_u24 v9, 240, v9
v_bfe_u32 v10, v1, 4, 1
v_and_b32 v11, 3, v1
v_lshl_add_u32 v10, v10, 2, v11     ; c' = 4*(G&1)+c
v_lshrrev_b32 v11, 1, v10
v_lshl_add_u32 v9, v11, 6, v9       ; (c'>>1)*64
v_and_b32 v10, 1, v10
v_lshl_add_u32 v4, v10, 3, v9       ; base0
v_add_u32 v5, {16*3840}, v4
v_add_u32 v6, {32*3840}, v4
s_waitcnt lgkmcnt(0)
s_barrier""")
        AB = 64
        GSB = 16
        def aread(s):
            base = f"v{4 + s//16}"
            st = AB + 16*(s % 3)
            out = []
            for t in range(4):
                for rd in range(2):
                    out.append(f"ds_read_b64_tr_b16 a[{st+4*t+2*rd}:{st+4*t+2*rd+1}], {base} offset:{(s%16)*3840 + rd*960 + t*16}")
            return out
        def gsread(s):
            st = GSB + 16*(s % 2)
            return [f"ds_read_b128 v[{st+4*j}:{st+4*j+3}], v3 offset:{s*128+16*j}" for j in range(4)]
        def modulate(s):
            st = GSB + 16*(s % 2)
            out = []
            for d in range(4):
                r = NB + 4*s + d
                t0, t1 = 48 + 2*(d % 2), 49 + 2*(d % 2)
                out.append(f"v_fma_mix_f32 v{t0}, v{r}, v{st+2*d}, v{st+8+2*d} op_sel_hi:[1,0,0]")
                out.append(f"v_fma_mix_f32 v{t1}, v{r}, v{st+2*d+1}, v{st+8+2*d+1} op_sel:[1,0,0] op_sel_hi:[1,0,0]")
                out.append(f"v_cvt_pk_bf16_f32 v{r}, v{t0}, v{t1}")
            return out
        for x in gsread(0) + gsread(1) + aread(0): a(x)
        a(f"s_waitcnt vmcnt({PF-1}) lgkmcnt(12)")
        for x in modulate(0): a(x)
        for x in aread(1): a(x)
        for s in range(40):
            issued = min(s + PF - 1, 39)
            w = []
            if s + 1 < 40:
                w.append(f"vmcnt({issued - (s+1)})")
            w.append("lgkmcnt(8)" if s + 1 < 40 else "lgkmcnt(0)")
            a("s_waitcnt " + " ".join(w))
            lds = []
            if s + 2 < 40:
                lds = gsread(s+2) + aread(s+2)
            va = modulate(s+1) if s + 1 < 40 else []
            fill = []
            st = AB + 16*(s % 3)
            nl = len(lds); nv = len(va)
            li = vi = 0
            for t in range(4):
                a(f"v_mfma_f32_32x32x16_bf16 a[{16*t}:{16*t+15}], a[{st+4*t}:{st+4*t+3}], v[{NB+4*s}:{NB+4*s+3}], " + (f"a[{16*t}:{16*t+15}]" if s else "0"))
                for _ in range(3):
                    if li < nl: a(lds[li]); li += 1
                for _ in range(3):
                    if vi < nv: a(va[vi]); vi += 1
                if t == 0 and s + PF < 40:
                    nload(s + PF)
        self.stamp(3)
        def quad_pack(src, dst, scale=None):
            for e in range(4):
                a(f"v_accvgpr_read_b32 v{48+e}, a{src+e}")
            if scale:
                for e in range(4):
                    a(f"v_mul_f32 v{48+e}, {scale}, v{48+e}")
            a(f"v_cvt_pk_bf16_f32 v{dst}, v48, v49\nv_cvt_pk_bf16_f32 v{dst+1}, v50, v51")
        a("s_nop 7")
        quad_pack(0, 16); quad_pack(4, 18); quad_pack(8, 20); quad_pack(12, 24); quad_pack(16, 26)
        a(f"""s_lshl_b32 s12, {S_T}, 2
s_add_u32 s12, s12, {S_W}
s_lshl_b32 s13, {S_P}, 6
s_add_u32 s12, s12, s13
s_mul_i32 s13, s12, 2560
s_add_u32 s13, s13, {WS_KF:#x}
v_lshlrev_b32 v9, 3, v1
buffer_store_dwordx4 v[16:19], v2, {WS}, s13 offen sc1
buffer_store_dwordx2 v[20:21], v9, {WS}, s13 offen offset:1024 sc1
buffer_store_dwordx4 v[24:27], v2, {WS}, s13 offen offset:1536 sc1""")
        quad_pack(20, 28); quad_pack(24, 30); quad_pack(28, 32); quad_pack(32, 36); quad_pack(36, 38)
        a(f"""v_bfe_u32 v10, v1, 2, 3          ; a
v_and_b32 v11, 3, v1               ; r
v_lshrrev_b32 v12, 5, v1           ; hh
v_lshlrev_b32 v13, 7, v10
v_lshl_add_u32 v13, v12, 6, v13
v_lshl_add_u32 v13, v11, 4, v13
v_lshrrev_b32 v14, 1, v10
v_lshlrev_b32 v14, 8, v14          ; (a>>1)*256
v_and_b32 v10, 1, v10
v_xor_b32 v10, 1, v10
v_lshl_add_u32 v14, v10, 7, v14
v_lshl_add_u32 v14, v12, 5, v14
v_lshl_add_u32 v14, v11, 3, v14
s_mul_i32 s13, s12, 3072
s_add_u32 s13, s13, {WS_VF:#x}
buffer_store_dwordx4 v[28:31], v13, {WS}, s13 offen sc1
buffer_store_dwordx4 v[36:39], v13, {WS}, s13 offen offset:1024 sc1
buffer_store_dwordx2 v[32:33], v14, {WS}, s13 offen offset:2048 sc1""")
        QS = f2h(20**-0.5 * 1.4426950408889634)
        quad_pack(40, 224, QS); quad_pack(44, 226, QS); quad_pack(48, 228, QS); quad_pack(52, 232, QS); quad_pack(56, 234, QS)
        a("s_waitcnt vmcnt(0)\ns_barrier")
        a(f"s_lshl_b32 s12, {S_P}, 4\ns_add_u32 s12, s12, {S_T}")
        self.flag_store(1, "s12")


    def wo_dma_setup(self):
        a = self.a
        self.srd(SB, P_WO, 640*1280)
        for j in range(5):
            a(f"""v_add_u32 v8, {64*j}, v1
v_mul_u32_u24 v9, 6554, v8
v_lshrrev_b32 v9, 16, v9
v_mul_u32_u24 v10, 10, v9
v_sub_u32 v10, v8, v10
v_mul_u32_u24 v9, 1280, v9
v_lshl_add_u32 v{240+j}, v10, 4, v9""")
    def wo_dma_list(self):
        out = []
        for gi in range(5):
            for j in range(5):
                pre = ""
                if j == 0:
                    if gi == 0:
                        pre = f"s_mul_i32 s14, {S_V}, 160\ns_mul_i32 s15, {S_W}, {32*1280}\ns_add_u32 s14, s14, s15\ns_mul_i32 s15, {S_W}, 5120\n"
                    else:
                        pre = f"s_add_u32 s14, s14, {4*32*1280}\n"
                out.append(pre + f"s_add_u32 m0, s15, {(gi*20 + j)*1024}\ns_nop 0\nbuffer_load_dwordx4 v{240+j}, {SB}, s14 offen lds")
        return out

    def phase_att(self):
        a = self.a
        VB = 102400
        a(f"""; ---- phase 2: attention ----
v_and_b32 v8, 1, v1
v_add_u32 v8, 1, v8
v_sub_u32 v8, {S_T}, v8
v_max_i32 v8, 0, v8
s_lshl_b32 s12, {S_P}, 4
v_add_u32 v8, s12, v8
v_lshlrev_b32 v8, 7, v8
v_add_u32 v14, {WS_FLAGS + 0x8000:#x}, v8""")
        self.wo_dma_setup()
        self.tables_issue()
        self.poll("v14")
        self.tables_finish()
        self.stamp(5)
        a(f"""s_lshl_b32 s12, {S_T}, 2
s_add_u32 s12, s12, {S_W}
s_sub_i32 s13, 8, s12
s_max_i32 s13, s13, 0
v_lshlrev_b32 v2, 4, v1
v_lshlrev_b32 v3, 3, v1""")
        for i in range(3):
            a(f"""s_mul_i32 s14, {S_W}, 3
s_add_u32 s14, s14, {i}
s_lshl_b32 s15, {S_T}, 2
s_add_u32 s15, s15, s14
s_sub_i32 s15, s15, 8
s_max_i32 s15, s15, 0
s_lshl_b32 s64, {S_P}, 6
s_add_u32 s15, s15, s64
s_mul_i32 s15, s15, 3072
s_add_u32 s15, s15, {WS_VF:#x}
s_mul_i32 s14, s14, 3072
s_add_u32 m0, s14, {VB}
s_nop 0
buffer_load_dwordx4 v2, {WS}, s15 offen sc1 lds
s_add_u32 m0, s14, {VB + 1024}
s_add_u32 s15, s15, 1024
buffer_load_dwordx4 v2, {WS}, s15 offen sc1 lds
s_add_u32 m0, s14, {VB + 2048}
s_add_u32 s15, s15, 1024
s_mov_b32 exec_lo, 0x0f0f0f0f
s_mov_b32 exec_hi, 0x0f0f0f0f
buffer_load_dwordx4 v2, {WS}, s15 offen sc1 lds
s_mov_b64 exec, -1""")
        a(f"""s_lshl_b32 s14, {S_P}, 6
s_add_u32 s14, s14, s12""")
        for b in range(8, -1, -1):
            a(f"""s_sub_i32 s15, s12, {8-b}
s_max_i32 s15, s15, 0
s_lshl_b32 s64, {S_P}, 6
s_add_u32 s15, s15, s64
s_mul_i32 s15, s15, 2560
s_add_u32 s15, s15, {WS_KF:#x}
buffer_load_dwordx4 a[{10*b}:{10*b+3}], v2, {WS}, s15 offen sc1
buffer_load_dwordx2 a[{10*b+4}:{10*b+5}], v3, {WS}, s15 offen offset:1024 sc1
buffer_load_dwordx4 a[{10*b+6}:{10*b+9}], v2, {WS}, s15 offen offset:1536 sc1""")
        for x in self.wo_dma_list(): a(x)
        a(f"""v_lshrrev_b32 v8, 3, v1
s_mul_i32 s14, {S_W}, 3
v_add_u32 v8, s14, v8
v_mul_u32_u24 v8, 3072, v8
v_bfe_u32 v9, v1, 1, 2
v_lshl_add_u32 v8, v9, 8, v8
v_and_b32 v9, 1, v1
v_lshl_add_u32 v8, v9, 7, v8
v_add_u32 v8, {VB + 2048 + 64}, v8
v_mov_b32 v10, 0x3f80
v_mov_b32 v11, 0
v_cmp_gt_u32 vcc, 24, v1
s_and_saveexec_b64 s[66:67], vcc
ds_write_b64 v8, v[10:11]
s_mov_b64 exec, s[66:67]""")
        a("""v_and_b32 v8, 31, v1
v_lshrrev_b32 v9, 5, v1
v_lshlrev_b32 v10, 2, v9
v_sub_u32 v8, v8, v10""")
        for i in range(16):
            kap = 8*(i >> 2) + (i & 3)
            a(f"v_cmp_le_i32 s[{68+2*i}:{69+2*i}], {kap}, v8")
        a("v_mov_b32 v10, 0xffff\nv_mov_b32 v11, 0xffff0000")
        for j in range(8):
            a(f"""v_cndmask_b32 v12, 0, v10, s[{68+4*j}:{69+4*j}]
v_cndmask_b32 v13, 0, v11, s[{70+4*j}:{71+4*j}]
v_or_b32 v{112+j}, v12, v13""")
        a("""v_cmp_eq_u32 vcc, 0, v9
v_mov_b32 v12, 0
s_nop 0
v_cndmask_b32 v236, v12, v228, vcc
v_cndmask_b32 v237, v12, v229, vcc
v_cndmask_b32 v238, v228, v12, vcc
v_cndmask_b32 v239, v229, v12, vcc""")
        a(f"""v_lshrrev_b32 v8, 5, v1            ; hw
v_bfe_u32 v9, v1, 2, 2             ; r
v_bfe_u32 v10, v1, 4, 1
v_and_b32 v11, 3, v1
v_lshl_add_u32 v10, v10, 2, v11    ; cc
v_lshlrev_b32 v12, 7, v8           ; hw*128
v_lshl_add_u32 v12, v9, 4, v12     ; + r*16
v_xor_b32 v13, 1, v8
v_lshlrev_b32 v13, 7, v13
v_lshl_add_u32 v13, v9, 3, v13
v_add_u32 v13, 2048, v13
v_xor_b32 v14, 1, v8
v_lshlrev_b32 v14, 7, v14
v_add_u32 v14, {2048+64}, v14
; head A
v_and_b32 v15, 1, v10
v_lshl_add_u32 v6, v15, 6, v12
v_lshrrev_b32 v15, 1, v10
v_lshl_add_u32 v6, v15, 3, v6
v_cmp_eq_u32 vcc, 4, v10
s_nop 1
v_cndmask_b32 v6, v6, v13, vcc
v_cmp_lt_u32 vcc, 4, v10
s_nop 1
v_cndmask_b32 v6, v6, v14, vcc
; head B
v_subrev_u32 v15, 2, v10
v_and_b32 v7, 1, v15
v_lshl_add_u32 v7, v7, 6, v12
v_lshrrev_b32 v15, 1, v15
v_and_b32 v15, 1, v15
v_lshl_add_u32 v7, v15, 3, v7
v_add_u32 v7, 1024, v7
v_add_u32 v13, 32, v13
v_cmp_eq_u32 vcc, 1, v10
s_nop 1
v_cndmask_b32 v7, v7, v13, vcc
v_cmp_eq_u32 vcc, 0, v10
s_nop 1
v_cndmask_b32 v7, v7, v14, vcc
v_cmp_lt_u32 vcc, 5, v10
s_nop 1
v_cndmask_b32 v7, v7, v14, vcc
s_mul_i32 s14, {S_W}, 3072
s_add_u32 s14, s14, {VB}
v_add_u32 v4, s14, v6
v_add_u32 v5, s14, v7
s_waitcnt vmcnt(25) lgkmcnt(0)
s_barrier""")
        self.stamp(6)
        NEG = "0xff800000"
        for hd in range(2):
            Kx = (lambda b: f"a[{10*b}:{10*b+3}]") if hd == 0 else (lambda b: f"a[{10*b+6}:{10*b+9}]")
            K5 = lambda b: f"a[{10*b+4}:{10*b+5}]"
            Qx = "v[224:227]" if hd == 0 else "v[232:235]"
            Q5 = "v[236:237]" if hd == 0 else "v[238:239]"
            VA = "v4" if hd == 0 else "v5"
            def qk(b, dst, c="0"):
                a(f"v_mfma_f32_32x32x16_bf16 v[{dst}:{dst+15}], {Kx(b)}, {Qx}, {c}")
                a(f"v_mfma_f32_32x32x8bf16_1k v[{dst}:{dst+15}], {K5(b)}, {Q5}, v[{dst}:{dst+15}]")
            def vread(b, st):
                for mm in range(2):
                    for rd in range(2):
                        a(f"ds_read_b64_tr_b16 a[{st+4*mm+2*rd}:{st+4*mm+2*rd+1}], {VA} offset:{b*3072 + mm*512 + rd*256}")
            qk(8, 32)
            l0 = self.lab("s0"); l1 = self.lab("s1")
            a(f"s_cmp_eq_u32 s13, 0\ns_cbranch_scc0 {l0}")
            qk(0, 16)
            a(f"s_branch {l1}\n{l0}:")
            for i in range(16): a(f"v_mov_b32 v{16+i}, {NEG}")
            a(f"{l1}:\ns_nop 7\ns_nop 7")
            for i in range(16):
                a(f"v_cndmask_b32 v{48+i}, v{16+i}, v{32+i}, s[{68+2*i}:{69+2*i}]")
            qk(7, 16)
            a("v_max3_f32 v8, v48, v49, v50")
            for i in range(3, 15, 2):
                a(f"v_max3_f32 v8, v8, v{48+i}, v{49+i}")
            a("v_max_f32 v8, v8, v63")
            ld = self.lab("p1d")
            for b in range(7, 0, -1):
                cur = 16 if (7 - b) % 2 == 0 else 32
                nxt = 48 - cur
                a(f"s_cmp_gt_u32 s13, {b}\ns_cbranch_scc1 {ld}")
                if b > 1: qk(b-1, nxt)
                else: a("s_nop 7\ns_nop 3")
                for i in range(0, 16, 2):
                    a(f"v_max3_f32 v8, v8, v{cur+i}, v{cur+i+1}")
            a(f"""{ld}:
v_mov_b32 v9, v8
s_nop 1
v_permlane32_swap_b32 v8, v9
s_nop 1
v_max_f32 v8, v8, v9
v_sub_f32 v9, 0, v8""")
            for i in range(16): a(f"v_mov_b32 v{64+i}, v9")
            vread(8, 96)
            vread(0, 104)
            qk(7, 16, "v[64:79]")
            for i in range(16):
                a(f"v_add_f32 v{48+i}, v{48+i}, v9")
            for i in range(16):
                a(f"v_exp_f32 v{48+i}, v{48+i}")
            for j in range(8):
                a(f"v_cvt_pk_bf16_f32 v{80+j}, v{48+2*j}, v{49+2*j}")
            for j in range(8):
                a(f"v_and_b32 v{88+j}, v{112+j}, v{80+j}")
            for j in range(8):
                a(f"v_xor_b32 v{80+j}, v{80+j}, v{88+j}")
            a("s_waitcnt lgkmcnt(4)")
            a(f"v_mfma_f32_32x32x16_bf16 v[96:111], a[96:99], v[88:91], 0")
            a(f"v_mfma_f32_32x32x16_bf16 v[96:111], a[100:103], v[92:95], v[96:111]")
            l2 = self.lab("v0")
            a(f"s_waitcnt lgkmcnt(0)\ns_cmp_eq_u32 s13, 0\ns_cbranch_scc0 {l2}")
            a(f"v_mfma_f32_32x32x16_bf16 v[96:111], a[104:107], v[80:83], v[96:111]")
            a(f"v_mfma_f32_32x32x16_bf16 v[96:111], a[108:111], v[84:87], v[96:111]")
            a(f"{l2}:")
            ld = self.lab("p2d")
            for b in range(7, 0, -1):
                cur = 16 if (7 - b) % 2 == 0 else 32
                nxt = 48 - cur
                pst = 80 + 8*(b % 2)
                vst = 96 + 8*(b % 2)
                a(f"s_cmp_gt_u32 s13, {b}\ns_cbranch_scc1 {ld}")
                vread(b, vst)
                if b > 1: qk(b-1, nxt, "v[64:79]")
                for i in range(16):
                    a(f"v_exp_f32 v{cur+i}, v{cur+i}")
                    if i % 2 == 1 and i >= 3:
                        j = (i - 3)//2
                        a(f"v_cvt_pk_bf16_f32 v{pst+j}, v{cur+2*j}, v{cur+2*j+1}")
                a(f"v_cvt_pk_bf16_f32 v{pst+7}, v{cur+14}, v{cur+15}")
                a("s_waitcnt lgkmcnt(0)")
                a(f"v_mfma_f32_32x32x16_bf16 v[96:111], a[{vst}:{vst+3}], v[{pst}:{pst+3}], v[96:111]")
                a(f"v_mfma_f32_32x32x16_bf16 v[96:111], a[{vst+4}:{vst+7}], v[{pst+4}:{pst+7}], v[96:111]")
            a(f"{ld}:\ns_nop 7\ns_nop 7")
            lreg = 104 if hd == 0 else 96
            a(f"""v_mov_b32 v8, v{lreg}
v_mov_b32 v9, v{lreg}
s_nop 1
v_permlane32_swap_b32 v8, v9
s_nop 1
v_rcp_f32 v8, v{9 if hd == 0 else 8}
s_nop 0""")
            for i in range(12):
                a(f"v_mul_f32 v{96+i}, v8, v{96+i}")
            if hd == 0:
                for j, d in enumerate((120, 121, 122, 123, 124, 125)):
                    a(f"v_cvt_pk_bf16_f32 v{d}, v{96+2*j}, v{97+2*j}")
            else:
                for j, d in enumerate((126, 127, 128, 129, 130, 131)):
                    a(f"v_cvt_pk_bf16_f32 v{d}, v{96+2*j}, v{97+2*j}")
        a(f"""v_lshrrev_b32 v9, 5, v1
v_cmp_eq_u32 vcc, 1, v9
v_and_b32 v10, 15, v1
v_bfe_u32 v11, v1, 4, 1
v_cndmask_b32 v124, v124, v126, vcc
v_cndmask_b32 v125, v125, v127, vcc
s_lshl_b32 s14, s12, 1
v_add_u32 v11, s14, v11
v_mul_u32_u24 v11, 20480, v11
v_lshl_add_u32 v11, v10, 4, v11
v_lshl_add_u32 v12, v9, 8, v11
s_lshl_b32 s14, {S_P}, 10
s_add_u32 s14, s14, {WS_OF:#x}
buffer_store_dwordx4 v[120:123], v12, {WS}, s14 offen sc1
buffer_store_dwordx4 v[128:131], v12, {WS}, s14 offen offset:512 sc1
s_and_b32 s15, {S_P}, 1
v_xor_b32 v9, s15, v9
v_lshl_add_u32 v11, v9, 3, v11
s_lshr_b32 s14, {S_P}, 2
s_add_u32 s14, s14, 16
s_lshl_b32 s14, s14, 10
s_and_b32 s15, {S_P}, 3
s_lshl_b32 s15, s15, 8
s_add_u32 s14, s14, s15
s_add_u32 s14, s14, {WS_OF:#x}
buffer_store_dwordx2 v[124:125], v11, {WS}, s14 offen sc1
s_waitcnt vmcnt(0)
s_barrier
s_lshl_b32 s12, {S_P}, 4
s_add_u32 s12, s12, {S_T}""")
        self.flag_store(2, "s12")


    def tables_issue(self):
        a = self.a
        self.srd(SA, P_B2, 1280)
        self.srd(SC, P_B1, 3072)
        a(f"""v_lshlrev_b32 v8, 4, v0
v_mov_b32 v9, {OOB:#x}
v_cmp_gt_u32 vcc, 160, v0
s_nop 1
v_cndmask_b32 v8, v9, v8, vcc""")
        for vec in range(4):
            for kq in range(4):
                r = 16 + 16*vec + 4*kq
                a(f"s_mov_b32 s14, {WS_MODP + kq*15360 + (1280 + 640*vec)*4}\nbuffer_load_dwordx4 v[{r}:{r+3}], v8, {WS}, s14 offen sc1")
        a(f"""v_lshlrev_b32 v8, 3, v0
v_cmp_gt_u32 vcc, 20, v0
s_mul_i32 s14, {S_V}, 160
v_cndmask_b32 v10, v9, v8, vcc
buffer_load_dwordx2 v[80:81], v10, {SA}, s14 offen
v_cmp_gt_u32 vcc, 24, v0
s_mul_i32 s14, {S_J}, 192
v_cndmask_b32 v10, v9, v8, vcc
buffer_load_dwordx2 v[82:83], v10, {SC}, s14 offen""")

    def tables_finish(self):
        a = self.a
        for vec in range(4):
            b = 16 + 16*vec
            for e in range(4):
                a(f"""v_add_f32 v{b+e}, v{b+e}, v{b+4+e}
v_add_f32 v{b+8+e}, v{b+8+e}, v{b+12+e}
v_add_f32 v{b+e}, v{b+e}, v{b+8+e}""")
            a(f"v_cvt_pk_bf16_f32 v{b+4}, v{b}, v{b+1}\nv_cvt_pk_bf16_f32 v{b+5}, v{b+2}, v{b+3}")
            if vec != 1:
                a(f"""v_lshlrev_b32 v{b}, 16, v{b+4}
v_and_b32 v{b+1}, 0xffff0000, v{b+4}
v_lshlrev_b32 v{b+2}, 16, v{b+5}
v_and_b32 v{b+3}, 0xffff0000, v{b+5}""")
        a("""v_add_f32 v48, 1.0, v48
v_add_f32 v49, 1.0, v49
v_add_f32 v50, 1.0, v50
v_add_f32 v51, 1.0, v51
v_cvt_pk_bf16_f32 v52, v48, v49
v_cvt_pk_bf16_f32 v53, v50, v51
v_lshlrev_b32 v48, 16, v52
v_and_b32 v49, 0xffff0000, v52
v_lshlrev_b32 v50, 16, v53
v_and_b32 v51, 0xffff0000, v53""")
        a(f"""v_cmp_gt_u32 vcc, 160, v0
s_and_saveexec_b64 s[66:67], vcc
v_lshlrev_b32 v8, 3, v0
v_add_u32 v9, {PT_G2B}, v8
ds_write_b64 v9, v[52:53]
ds_write_b64 v9, v[36:37] offset:{PT_S2B - PT_G2B}
s_mul_i32 s14, {S_V}, 20
v_subrev_u32 v10, s14, v0
v_cmp_gt_u32 vcc, 20, v10
s_and_b64 exec, exec, vcc
v_lshlrev_b32 v10, 4, v10
v_add_u32 v10, {PT_GA}, v10
ds_write_b128 v10, v[16:19]
ds_write_b128 v10, v[48:51] offset:{PT_G2 - PT_GA}
ds_write_b128 v10, v[64:67] offset:{PT_GB - PT_GA}
s_mov_b64 exec, s[66:67]
v_lshlrev_b32 v84, 16, v80
v_and_b32 v85, 0xffff0000, v80
v_lshlrev_b32 v86, 16, v81
v_and_b32 v87, 0xffff0000, v81
v_lshlrev_b32 v88, 16, v82
v_and_b32 v89, 0xffff0000, v82
v_lshlrev_b32 v90, 16, v83
v_and_b32 v91, 0xffff0000, v83
v_lshlrev_b32 v8, 4, v0
v_cmp_gt_u32 vcc, 20, v0
s_and_saveexec_b64 s[66:67], vcc
v_add_u32 v9, {PT_B2}, v8
ds_write_b128 v9, v[84:87]
s_mov_b64 exec, s[66:67]
v_cmp_gt_u32 vcc, 24, v0
s_and_saveexec_b64 s[66:67], vcc
v_add_u32 v9, {PT_B1}, v8
ds_write_b128 v9, v[88:91]
s_mov_b64 exec, s[66:67]""")

    def phase_wo(self):
        a = self.a
        SCR = 122880
        a(f"""; ---- phase 3: W_o ----
v_and_b32 v8, 15, v1
v_lshlrev_b32 v8, 4, v8
s_lshr_b32 s12, {S_U}, 1
v_add_u32 v8, s12, v8
v_lshlrev_b32 v8, 7, v8
v_add_u32 v14, {WS_FLAGS + 2*0x8000:#x}, v8""")
        a(f"""s_and_b32 s12, {S_W}, 1
s_lshl_b32 s12, s12, 1
s_lshl_b32 s13, {S_U}, 2
s_add_u32 s12, s12, s13
s_lshr_b32 s13, {S_W}, 1
s_add_u32 s42, s12, s13          ; tgF
s_xor_b32 s13, s13, 1
s_add_u32 s43, s12, s13""")
        self.srd(SC, P_X, 2048*1280)
        a(f"""v_and_b32 v8, 15, v1
s_lshl_b32 s12, s42, 4
v_add_u32 v8, s12, v8
v_mul_u32_u24 v8, 1280, v8
v_lshrrev_b32 v9, 4, v1
v_lshl_add_u32 v15, v9, 3, v8     ; row*1280 + q*8
s_mul_i32 s12, {S_V}, 160""")
        for j in range(5):
            a(f"buffer_load_dwordx2 v[{104+2*j}:{105+2*j}], v15, {SC}, s12 offen offset:{32*j}")
        self.poll("v14")
        self.stamp(8)
        a(f"""v_lshlrev_b32 v2, 4, v1
s_lshr_b32 s13, {S_W}, 1
s_mul_i32 s12, s42, 20480
s_add_u32 s12, s12, {WS_OF:#x}
s_mul_i32 s14, s43, 20480
s_add_u32 s14, s14, {WS_OF:#x}
s_lshl_b32 s15, s13, 13
s_add_u32 s64, s12, s15
s_add_u32 s65, s14, s15
s_lshl_b32 s15, s13, 11
s_add_u32 s15, s15, 16384
s_add_u32 s12, s12, s15
s_add_u32 s14, s14, s15""")
        for sl in range(10):
            for u in range(2):
                st = (u*10 + sl)*4
                if sl < 8:
                    so = "s64" if u == 0 else "s65"
                    if sl == 4: a(f"s_add_u32 {so}, {so}, 4096")
                    a(f"buffer_load_dwordx4 a[{st}:{st+3}], v2, {WS}, {so} offen offset:{(sl%4)*1024} sc1")
                else:
                    so = "s12" if u == 0 else "s14"
                    a(f"buffer_load_dwordx4 a[{st}:{st+3}], v2, {WS}, {so} offen offset:{(sl-8)*1024} sc1")
        a(f"""v_lshrrev_b32 v8, 4, v1            ; q
v_bfe_u32 v9, v1, 2, 2             ; r
v_and_b32 v10, 3, v1
v_lshlrev_b32 v10, 3, v10          ; c*8
s_lshr_b32 s13, {S_W}, 1
s_mul_i32 s13, s13, 51200
v_add_u32 v10, s13, v10
v_and_b32 v11, 1, v8               ; q&1
v_lshrrev_b32 v12, 1, v8
v_mul_u32_u24 v12, 24, v12
v_lshl_add_u32 v12, v11, 2, v12
v_add_u32 v12, v12, v9
v_mul_u32_u24 v12, 160, v12
v_add_u32 v4, v12, v10             ; F0 base
v_mul_u32_u24 v12, 40, v8
v_add_u32 v12, v12, v9
v_add_u32 v12, 16, v12
v_lshl_add_u32 v13, v11, 2, v12
v_mul_u32_u24 v13, 160, v13
v_add_u32 v5, v13, v10
v_xor_b32 v11, 1, v11
v_lshl_add_u32 v13, v11, 2, v12
v_mul_u32_u24 v13, 160, v13
v_add_u32 v6, v13, v10""")
        def aread(sl):
            st = 16 + 20*(sl % 2)
            out = []
            for j in range(5):
                for rd in range(2):
                    if sl < 8:
                        out.append(f"ds_read_b64_tr_b16 v[{st+4*j+2*rd}:{st+4*j+2*rd+1}], v4 offset:{sl*6400 + rd*1280 + j*32}")
                    else:
                        out.append(f"ds_read_b64_tr_b16 v[{st+4*j+2*rd}:{st+4*j+2*rd+1}], v{5+rd} offset:{(sl-8)*25600 + j*32}")
            return out
        for x in aread(0): a(x)
        for sl in range(10):
            nxt = aread(sl+1) if sl < 9 else []
            a(f"s_waitcnt vmcnt({18 - 2*sl}) lgkmcnt(0)")
            st = 16 + 20*(sl % 2)
            ni = 0
            for j in range(5):
                for u in range(2):
                    acc = 64 + (u*5 + j)*4
                    b = (u*10 + sl)*4
                    c = f"v[{acc}:{acc+3}]" if sl else "0"
                    a(f"v_mfma_f32_16x16x32_bf16 v[{acc}:{acc+3}], v[{st+4*j}:{st+4*j+3}], a[{b}:{b+3}], {c}")
                    if ni < len(nxt): a(nxt[ni]); ni += 1
        self.stamp(9)
        a(f"""s_mul_i32 s12, {S_W}, 5120
s_add_u32 s12, s12, {SCR}
v_add_u32 v8, s12, v2
s_nop 4""")
        for j in range(5):
            a(f"ds_write_b128 v8, v[{84+4*j}:{87+4*j}] offset:{1024*j}")
        a(f"""s_xor_b32 s12, {S_W}, 2
s_mul_i32 s12, s12, 5120
s_add_u32 s12, s12, {SCR}
v_add_u32 v9, s12, v2
v_lshrrev_b32 v10, 4, v1
v_lshlrev_b32 v11, 4, v10
v_add_u32 v11, {PT_GA}, v11
v_lshlrev_b32 v12, 3, v10
s_mul_i32 s12, {S_V}, 160
s_add_u32 s12, s12, {PT_G2B}
v_add_u32 v12, s12, v12
s_waitcnt lgkmcnt(0)
s_barrier""")
        self.after_wo_main()
        for j in range(5):
            a(f"ds_read_b128 v[{16+4*j}:{19+4*j}], v9 offset:{1024*j}")
        for j in range(5):
            a(f"ds_read_b128 v[{36+4*j}:{39+4*j}], v11 offset:{64*j}")
        a("s_waitcnt lgkmcnt(5)")
        for j in range(5):
            for e in range(4):
                a(f"v_add_f32 v{64+4*j+e}, v{64+4*j+e}, v{16+4*j+e}")
        for j in range(5):
            a(f"ds_read_b128 v[{16+4*j}:{19+4*j}], v11 offset:{PT_G2 - PT_GA + 64*j}")
        a("s_waitcnt lgkmcnt(5) vmcnt(0)")
        for j in range(5):
            for d in range(2):
                x = 104 + 2*j + d
                a(f"""v_lshlrev_b32 v56, 16, v{x}
v_and_b32 v57, 0xffff0000, v{x}
v_fmac_f32 v56, v{36+4*j+2*d}, v{64+4*j+2*d}
v_fmac_f32 v57, v{36+4*j+2*d+1}, v{64+4*j+2*d+1}
v_cvt_pk_bf16_f32 v{214+2*j+d}, v56, v57
v_lshlrev_b32 v{64+4*j+2*d}, 16, v{214+2*j+d}
v_and_b32 v{64+4*j+2*d+1}, 0xffff0000, v{214+2*j+d}""")
        for j in range(5):
            a(f"ds_read_b64 v[{36+2*j}:{37+2*j}], v12 offset:{32*j}")
            a(f"ds_read_b64 v[{46+2*j}:{47+2*j}], v12 offset:{PT_S2B - PT_G2B + 32*j}")
        a("s_waitcnt lgkmcnt(10)")
        for j in range(5):
            for d in range(2):
                a(f"""v_mul_f32 v56, v{64+4*j+2*d}, v{16+4*j+2*d}
v_mul_f32 v57, v{64+4*j+2*d+1}, v{16+4*j+2*d+1}
v_cvt_pk_bf16_f32 v{84+2*j+d}, v56, v57""")
        a(f"""s_lshr_b32 s12, s42, 1            ; tb
s_and_b32 s13, s42, 1
s_lshl_b32 s13, s13, 4
v_and_b32 v8, 15, v1
v_add_u32 v8, s13, v8              ; tok32
v_lshrrev_b32 v10, 4, v1           ; q
v_lshrrev_b32 v13, 1, v10
v_and_b32 v14, 1, v10
v_lshlrev_b32 v15, 4, v8
v_lshl_add_u32 v56, v13, 10, v15
v_lshl_add_u32 v56, v14, 9, v56
v_lshl_add_u32 v57, v13, 9, v15
v_lshl_add_u32 v57, v14, 3, v57
s_mul_i32 s13, s12, 40
s_mul_i32 s14, {S_V}, 5
s_add_u32 s13, s13, s14
s_lshl_b32 s13, s13, 10
s_add_u32 s13, s13, {WS_UF:#x}
buffer_store_dwordx4 v[84:87], v56, {WS}, s13 offen sc1
buffer_store_dwordx4 v[88:91], v56, {WS}, s13 offen offset:2048 sc1
s_add_u32 s13, s13, 4096
buffer_store_dwordx2 v[92:93], v57, {WS}, s13 offen sc1""")
        a("""s_waitcnt lgkmcnt(0)
v_mov_b32 v58, 0x3f803f80""")
        for k in range(6): a(f"v_mov_b32 v{96+k}, 0")
        for jd in range(10):
            up, tp = 214 + jd, 84 + jd
            a(f"""v_dot2_f32_bf16 v96, v{up}, v58, v96
v_dot2_f32_bf16 v97, v{up}, v{up}, v97
v_dot2_f32_bf16 v98, v{tp}, v58, v98
v_dot2_f32_bf16 v99, v{tp}, v{tp}, v99
v_dot2_f32_bf16 v100, v{tp}, v{36+jd}, v100
v_dot2_f32_bf16 v101, v{tp}, v{46+jd}, v101""")
        a(f"""v_mov_b32 v102, 0
s_nop 2
v_permlane32_swap_b32 v96, v97
v_permlane32_swap_b32 v98, v99
v_permlane32_swap_b32 v100, v101
s_nop 1
v_add_f32 v96, v96, v97
v_add_f32 v98, v98, v99
v_add_f32 v100, v100, v101
s_nop 1
v_permlane16_swap_b32 v96, v98
v_permlane16_swap_b32 v100, v102
s_nop 1
v_add_f32 v96, v96, v98
v_add_f32 v100, v100, v102
v_lshlrev_b32 v15, 5, v8
v_lshl_add_u32 v15, v10, 2, v15
s_lshl_b32 s13, s12, 3
s_add_u32 s13, s13, {S_V}
s_lshl_b32 s13, s13, 10
s_add_u32 s13, s13, {WS_ST:#x}
buffer_store_dword v96, v15, {WS}, s13 offen sc1
buffer_store_dword v100, v15, {WS}, s13 offen offset:16 sc1
s_waitcnt vmcnt(0)
s_barrier
s_lshl_b32 s12, {S_U}, 3
s_add_u32 s12, s12, {S_V}""")
        self.flag_store(3, "s12")

    def after_wo_main(self):
        pass

    def dma_w1(self):
        a = self.a
        self.srd(SB, P_W1, 640*3072)
        for jj in range(3):
            a(f"""v_add_u32 v8, {64*jj}, v1
v_mul_u32_u24 v9, 5462, v8
v_lshrrev_b32 v9, 16, v9
v_mul_u32_u24 v10, 12, v9
v_sub_u32 v10, v8, v10
v_mul_u32_u24 v9, 3072, v9
v_lshl_add_u32 v{245+jj}, v10, 4, v9""")
        a(f"""s_mul_i32 s14, {S_J}, 192
s_mul_i32 s15, {S_W}, {16*3072}
s_add_u32 s14, s14, s15
s_mul_i32 s15, {S_W}, 3072""")
        for gi in range(10):
            for jj in range(3):
                a(f"s_add_u32 m0, s15, {(gi*12 + jj)*1024}\ns_nop 0\nbuffer_load_dwordx4 v{245+jj}, {SB}, s14 offen lds")
            if gi < 9: a(f"s_add_u32 s14, s14, {4*16*3072}")

    def phase_w1(self):
        a = self.a
        a("; ---- phase 4: W1 ----")
        a(f"""v_lshrrev_b32 v8, 5, v1            ; h
v_bfe_u32 v9, v1, 2, 2             ; r
v_bfe_u32 v10, v1, 4, 1
v_and_b32 v11, 3, v1
v_lshl_add_u32 v10, v10, 2, v11    ; c'
v_lshlrev_b32 v10, 3, v10
v_lshl_add_u32 v11, v8, 2, v9
v_mul_u32_u24 v11, 192, v11
v_add_u32 v4, v11, v10
v_add_u32 v5, 61440, v4
v_lshl_add_u32 v11, v8, 3, v9
v_mul_u32_u24 v11, 192, v11
v_add_u32 v6, v11, v10
v_add_u32 v7, 61440, v6""")
        def aoff(s, t, rd):
            Vp, i = divmod(s, 5)
            hi = Vp >= 4
            Vl = Vp - 4 if hi else Vp
            if i < 4:
                return (f"v{5 if hi else 4}", (80*Vl + 32*(i >> 1) + 8*(i & 1) + 16*rd)*192 + 64*t)
            return (f"v{7 if hi else 6}", (80*Vl + 64 + 4*rd)*192 + 64*t)
        a("s_waitcnt vmcnt(0)\ns_barrier")
        a(f"""v_and_b32 v8, 15, v1               ; col
v_lshrrev_b32 v9, 4, v1            ; G
v_xor_b32 v10, v8, v9
v_and_b32 v10, 1, v10
v_lshrrev_b32 v11, 1, v8           ; vec
v_cmp_eq_u32 vcc, 0, v10
v_cmp_gt_u32 s[66:67], 2, v11
s_nop 1
s_and_b64 s[66:67], s[66:67], vcc
v_mov_b32 v12, 0
v_mov_b32 v13, -1
v_cndmask_b32 v104, v12, v13, s[66:67]     ; and-mask
v_cmp_eq_u32 s[66:67], 2, v11
s_nop 1
s_and_b64 s[66:67], s[66:67], vcc
v_mov_b32 v13, 0x3f803f80
v_cndmask_b32 v105, v12, v13, s[66:67]     ; or-constant
v_and_b32 v11, 1, v11
v_mul_u32_u24 v11, {PT_S2B - PT_G2B}, v11
v_lshrrev_b32 v9, 1, v9            ; h
v_lshl_add_u32 v106, v9, 3, v11    ; + 4h*2 B
v_add_u32 v106, {PT_G2B}, v106
v_lshl_add_u32 v107, v9, 4, v11    ; + 8h*2 B
v_add_u32 v107, {PT_G2B}, v107""")
        labs = [self.lab(f"gsc{w}") for w in range(4)]
        lend = self.lab("gsce")
        for w in range(1, 4):
            a(f"s_cmp_eq_u32 {S_W}, {w}\ns_cbranch_scc1 {labs[w]}")
        for w in range(4):
            a(f"{labs[w]}:")
            for si in range(10):
                s = 10*w + si
                Vp, i = divmod(s, 5)
                for t in range(3):
                    for rd in range(2):
                        b, off = aoff(s, t, rd)
                        a(f"ds_read_b64_tr_b16 v[{16+4*t+2*rd}:{16+4*t+2*rd+1}], {b} offset:{off}")
                if i < 4:
                    k0 = 80*Vp + 32*(i >> 1) + 8*(i & 1)
                    a(f"ds_read_b64 v[28:29], v106 offset:{2*k0}\nds_read_b64 v[30:31], v106 offset:{2*(k0+16)}")
                else:
                    k0 = 80*Vp + 64
                    a(f"ds_read_b64 v[28:29], v107 offset:{2*k0}\nds_read_b64 v[30:31], v107 offset:{2*(k0+4)}")
                a("s_waitcnt lgkmcnt(0)")
                for d in range(4):
                    a(f"v_and_or_b32 v{28+d}, v{28+d}, v104, v105")
                for t in range(3):
                    c = f"v[{32+4*t}:{35+4*t}]" if si else "0"
                    a(f"v_mfma_f32_16x16x32_bf16 v[{32+4*t}:{35+4*t}], v[{16+4*t}:{19+4*t}], v[28:31], {c}")
            if w < 3: a(f"s_branch {lend}")
        a(f"""{lend}:
v_and_b32 v8, 15, v1
v_lshrrev_b32 v9, 4, v1
v_lshrrev_b32 v10, 1, v8
v_mul_u32_u24 v10, 384, v10
v_and_b32 v11, 1, v8
v_lshl_add_u32 v10, v11, 6, v10
v_lshl_add_u32 v10, v9, 4, v10
s_mul_i32 s12, {S_W}, 1152
s_add_u32 s12, s12, {PT_PART}
v_add_u32 v10, s12, v10
v_cmp_gt_u32 vcc, 6, v8
s_and_saveexec_b64 s[66:67], vcc
s_nop 4""")
        for t in range(3):
            a(f"ds_write_b128 v10, v[{32+4*t}:{35+4*t}] offset:{128*t}")
        a(f"""s_mov_b64 exec, s[66:67]
s_waitcnt lgkmcnt(0)
s_barrier
v_lshlrev_b32 v8, 4, v0
v_cmp_gt_u32 vcc, 72, v0
s_and_saveexec_b64 s[66:67], vcc
v_add_u32 v9, {PT_PART}, v8
ds_read_b128 v[16:19], v9
ds_read_b128 v[20:23], v9 offset:1152
ds_read_b128 v[24:27], v9 offset:2304
ds_read_b128 v[28:31], v9 offset:3456
s_waitcnt lgkmcnt(0)""")
        for e in range(4):
            a(f"v_add_f32 v{16+e}, v{16+e}, v{20+e}\nv_add_f32 v{24+e}, v{24+e}, v{28+e}\nv_add_f32 v{16+e}, v{16+e}, v{24+e}")
        a(f"""v_add_u32 v9, {PT_VEC}, v8
ds_write_b128 v9, v[16:19]
s_mov_b64 exec, s[66:67]""")
        a(f"""v_mul_u32_u24 v8, 20, v1
v_add_u32 v8, {PT_G2B}, v8""")
        for d in range(5):
            a(f"ds_read_b32 v{16+d}, v8 offset:{4*d}\nds_read_b32 v{24+d}, v8 offset:{PT_S2B - PT_G2B + 4*d}")
        a("v_mov_b32 v58, 0x3f803f80")
        for k in range(5): a(f"v_mov_b32 v{148+k}, 0")
        a("s_waitcnt lgkmcnt(0)")
        for d in range(5):
            a(f"""v_dot2_f32_bf16 v148, v{16+d}, v58, v148
v_dot2_f32_bf16 v149, v{16+d}, v{16+d}, v149
v_dot2_f32_bf16 v150, v{16+d}, v{24+d}, v150
v_dot2_f32_bf16 v151, v{24+d}, v58, v151
v_dot2_f32_bf16 v152, v{24+d}, v{24+d}, v152""")
        a("s_nop 2")
        for ror in (1, 2, 4, 8):
            for k in range(5):
                a(f"v_add_f32_dpp v{148+k}, v{148+k}, v{148+k} row_ror:{ror} row_mask:0xf bank_mask:0xf")
        for k in range(5):
            a(f"""v_mov_b32 v16, v{148+k}
s_nop 1
v_permlane16_swap_b32 v{148+k}, v16
s_nop 1
v_add_f32 v{148+k}, v{148+k}, v16
v_mov_b32 v16, v{148+k}
s_nop 1
v_permlane32_swap_b32 v{148+k}, v16
s_nop 1
v_add_f32 v{148+k}, v{148+k}, v16""")
        a(f"""v_and_b32 v8, 15, v1
s_lshl_b32 s12, {S_T1}, 4
v_add_u32 v8, s12, v8
v_lshlrev_b32 v8, 7, v8
v_add_u32 v14, {WS_FLAGS + 3*0x8000:#x}, v8
s_waitcnt lgkmcnt(0)""")
        self.poll("v14")
        self.stamp(11)
        a(f"""v_lshlrev_b32 v2, 4, v1
s_lshl_b32 s12, {S_T1}, 2
s_add_u32 s12, s12, {S_W}          ; tb
s_lshl_b32 s13, s12, 13
s_add_u32 s13, s13, {WS_ST:#x}
v_and_b32 v8, 31, v1
v_lshlrev_b32 v8, 5, v8
v_lshrrev_b32 v9, 5, v1
v_lshl_add_u32 v8, v9, 4, v8""")
        for Vp in range(8):
            if Vp == 4: a("s_add_u32 s13, s13, 4096")
            a(f"buffer_load_dwordx4 v[{116+4*Vp}:{119+4*Vp}], v8, {WS}, s13 offen offset:{(Vp%4)*1024} sc1")
        a(f"s_mul_i32 s13, s12, 40960\ns_add_u32 s13, s13, {WS_UF:#x}")
        PF = 8
        def uload(s):
            if s % 4 == 0 and s > 0: a("s_add_u32 s13, s13, 4096")
            a(f"buffer_load_dwordx4 a[{4*s}:{4*s+3}], v2, {WS}, s13 offen offset:{(s%4)*1024} sc1")
        for s in range(PF): uload(s)
        def aread(s):
            st = 16 + 12*(s % 3)
            out = []
            for t in range(3):
                for rd in range(2):
                    b, off = aoff(s, t, rd)
                    out.append(f"ds_read_b64_tr_b16 v[{st+4*t+2*rd}:{st+4*t+2*rd+1}], {b} offset:{off}")
            return out
        for x in aread(0) + aread(1): a(x)
        for s in range(40):
            issued = min(s + PF - 1, 39)
            a(f"s_waitcnt vmcnt({issued - s}) lgkmcnt({6 if s < 39 else 0})")
            nxt = aread(s+2) if s + 2 < 40 else []
            st = 16 + 12*(s % 3)
            for t in range(3):
                c = f"v[{64+16*t}:{79+16*t}]" if s else "0"
                a(f"v_mfma_f32_32x32x16_bf16 v[{64+16*t}:{79+16*t}], v[{st+4*t}:{st+4*t+3}], a[{4*s}:{4*s+3}], {c}")
                for x in nxt[2*t:2*t+2]: a(x)
                if t == 0 and s + PF < 40: uload(s + PF)
        self.stamp(12)
        for e in range(4):
            a(f"""v_add_f32 v{116+e}, v{116+e}, v{120+e}
v_add_f32 v{124+e}, v{124+e}, v{128+e}
v_add_f32 v{132+e}, v{132+e}, v{136+e}
v_add_f32 v{140+e}, v{140+e}, v{144+e}
v_add_f32 v{116+e}, v{116+e}, v{124+e}
v_add_f32 v{132+e}, v{132+e}, v{140+e}
v_add_f32 v{116+e}, v{116+e}, v{132+e}""")
        for e in range(4): a(f"v_mov_b32 v{120+e}, v{116+e}")
        a("s_nop 1")
        for e in range(4): a(f"v_permlane32_swap_b32 v{116+e}, v{120+e}")
        inv = f2h(1/640); eps = f2h(1e-5)
        a(f"""s_nop 1
v_mul_f32 v124, {inv}, v116                 ; m1
v_mul_f32 v125, {inv}, v118
v_fma_f32 v125, -v124, v124, v125
v_max_f32 v125, 0, v125
v_add_f32 v125, {eps}, v125
v_rsq_f32 v125, v125                        ; r1
v_fma_f32 v126, -v124, v148, v117           ; P3 - m1*Sg
v_fma_f32 v126, v126, v125, v151            ; sum h2
v_mul_f32 v126, {inv}, v126                 ; m2
v_mul_f32 v127, v124, v149                  ; m1*Sg2
v_fma_f32 v127, -2.0, v120, v127            ; m1*Sg2 - 2*P5
v_fma_f32 v127, v124, v127, v119            ; P4 - 2 m1 P5 + m1^2 Sg2
v_mul_f32 v127, v127, v125
v_fma_f32 v128, -v124, v150, v122           ; P6 - m1*Sgs
v_fma_f32 v127, 2.0, v128, v127             ; r1*(..) + 2*(..)
v_fma_f32 v127, v127, v125, v152            ; sum h2^2
v_mul_f32 v127, {inv}, v127
v_fma_f32 v127, -v126, v126, v127
v_max_f32 v127, 0, v127
v_add_f32 v127, {eps}, v127
v_rsq_f32 v127, v127                        ; r2
s_nop 0
v_mul_f32 v116, v125, v127                  ; A
v_mul_f32 v117, v116, v124
v_sub_f32 v117, 0, v117                     ; B
v_mov_b32 v118, v127                        ; C
v_mul_f32 v119, v127, v126
v_sub_f32 v119, 0, v119                     ; D""")
        kk = 2*0.7978845608028654*1.4426950408889634
        a(f"""v_lshrrev_b32 v8, 5, v1
v_lshlrev_b32 v9, 4, v8
v_add_u32 v9, {PT_B1}, v9          ; + h*16
v_and_b32 v10, 15, v1
v_bfe_u32 v11, v1, 4, 1
s_lshl_b32 s13, s12, 1
v_add_u32 v11, s13, v11             ; tg16
v_mul_u32_u24 v11, 49152, v11
v_lshl_add_u32 v11, v10, 4, v11
v_lshl_add_u32 v11, v8, 8, v11
s_mul_i32 s13, {S_J}, 3072
s_add_u32 s13, s13, {WS_HF:#x}
s_mov_b32 s14, {f2h(-kk*0.044715)}
v_mov_b32 v59, {f2h(-kk)}""")
        for t in range(3):
            for i in range(4):
                o = 128*t + 32*i
                a(f"""ds_read_b128 v[16:19], v9 offset:{PT_VEC - PT_B1 + o}
ds_read_b128 v[20:23], v9 offset:{PT_VEC - PT_B1 + 384 + o}
ds_read_b128 v[24:27], v9 offset:{PT_VEC - PT_B1 + 768 + o}
ds_read_b128 v[28:31], v9 offset:{o}
s_waitcnt lgkmcnt(0)""")
                for e in range(4):
                    z = 64 + 16*t + 4*i + e
                    a(f"""v_fma_f32 v{z}, v116, v{z}, v{28+e}
v_fmac_f32 v{z}, v117, v{16+e}
v_fmac_f32 v{z}, v118, v{20+e}
v_fmac_f32 v{z}, v119, v{24+e}""")
                for e in range(4):
                    z = 64 + 16*t + 4*i + e
                    a(f"v_mul_f32 v{32+e}, v{z}, v{z}")
                for e in range(4):
                    a(f"v_fma_f32 v{36+e}, v{32+e}, s14, v59")
                for e in range(4):
                    z = 64 + 16*t + 4*i + e
                    a(f"v_mul_f32 v{36+e}, v{z}, v{36+e}")
                for e in range(4):
                    a(f"v_exp_f32 v{36+e}, v{36+e}")
                for e in range(4):
                    a(f"v_add_f32 v{36+e}, 1.0, v{36+e}")
                for e in range(4):
                    a(f"v_rcp_f32 v{36+e}, v{36+e}")
                for e in range(4):
                    z = 64 + 16*t + 4*i + e
                    a(f"v_mul_f32 v{z}, v{z}, v{36+e}")
                z = 64 + 16*t + 4*i
                d = 40 + 2*i
                a(f"v_cvt_pk_bf16_f32 v{d}, v{z}, v{z+1}\nv_cvt_pk_bf16_f32 v{d+1}, v{z+2}, v{z+3}")
                if i % 2 == 1:
                    a(f"buffer_store_dwordx4 v[{40+4*(i>>1)}:{43+4*(i>>1)}], v11, {WS}, s13 offen offset:{1024*t + 512*(i>>1)} sc1")
        a(f"""s_waitcnt vmcnt(0)
s_barrier
s_lshl_b32 s12, {S_T1}, 4
s_add_u32 s12, s12, {S_J}""")
        self.flag_store(4, "s12")

    def dma_w2(self, phis, slots):
        a = self.a
        for par in range(2):
            l = self.lab("w2d")
            a(f"s_and_b32 s12, {S_W}, 1\ns_cmp_eq_u32 s12, {par}\ns_cbranch_scc0 {l}")
            a(f"""s_lshr_b32 s13, {S_W}, 1
s_mul_i32 s14, s13, {24*32*1280}
s_mul_i32 s15, {S_V}, 160
s_add_u32 s14, s14, s15
s_mul_i32 s15, s13, 76800""")
            for i in range(par, len(phis), 2):
                a(f"s_add_u32 s64, s14, {phis[i]*32*1280}")
                for j in range(5):
                    a(f"s_add_u32 m0, s15, {slots[i]*5120 + j*1024}\ns_nop 0\nbuffer_load_dwordx4 v{240+j}, {SB}, s64 offen lds")
            a(f"{l}:")

    def phase_w2(self):
        a = self.a
        SCR = 0
        a("; ---- phase 5: W2 ----")
        a(f"""v_and_b32 v8, 15, v1
s_lshr_b32 s12, {S_U}, 1
s_lshl_b32 s12, s12, 4
v_add_u32 v8, s12, v8
v_lshlrev_b32 v8, 7, v8
v_add_u32 v14, {WS_FLAGS + 4*0x8000:#x}, v8""")
        self.poll("v14")
        self.stamp(14)
        a(f"""v_lshlrev_b32 v2, 4, v1
s_lshr_b32 s13, {S_W}, 1
s_mul_i32 s13, s13, 24576
s_add_u32 s13, s13, {WS_HF:#x}
s_mul_i32 s12, s42, 49152
s_add_u32 s12, s12, s13
s_mul_i32 s14, s43, 49152
s_add_u32 s14, s14, s13""")
        PF = 4
        def hload(ph):
            if ph % 4 == 0 and ph > 0: a("s_add_u32 s12, s12, 4096\ns_add_u32 s14, s14, 4096")
            for u, so in ((0, "s12"), (1, "s14")):
                st = (u*24 + ph)*4
                a(f"buffer_load_dwordx4 a[{st}:{st+3}], v2, {WS}, {so} offen offset:{(ph%4)*1024} sc1")
        for ph in range(PF): hload(ph)
        a(f"""v_lshrrev_b32 v8, 4, v1            ; q
v_bfe_u32 v9, v1, 2, 2             ; r
v_and_b32 v10, 3, v1
v_lshlrev_b32 v10, 3, v10
s_lshr_b32 s13, {S_W}, 1
s_mul_i32 s13, s13, 76800
v_add_u32 v10, s13, v10
v_and_b32 v11, 1, v8
v_lshrrev_b32 v12, 1, v8
v_lshlrev_b32 v12, 4, v12
v_lshl_add_u32 v12, v11, 2, v12
v_add_u32 v12, v12, v9
v_mul_u32_u24 v12, 160, v12
v_add_u32 v4, v12, v10
v_add_u32 v5, {8*5120}, v4""")
        slot = lambda ph: ph if ph < 15 else ph - 15
        def aread(ph):
            st = 16 + 20*(ph % 2)
            sl = slot(ph)
            b, o = ("v4", sl*5120) if sl < 8 else ("v5", (sl-8)*5120)
            return [f"ds_read_b64_tr_b16 v[{st+4*j+2*rd}:{st+4*j+2*rd+1}], {b} offset:{o + rd*1280 + j*32}" for j in range(5) for rd in range(2)]
        for x in aread(0): a(x)
        for ph in range(24):
            if ph == 15:
                a("s_waitcnt vmcnt(0) lgkmcnt(0)\ns_barrier")
                for x in aread(15): a(x)
            if ph <= 8:
                issued = min(ph + PF - 1, 23)
                a(f"s_waitcnt vmcnt({2*(issued - ph)}) lgkmcnt(0)")
            elif ph < 15:
                a(f"s_waitcnt vmcnt({2*(23 - ph) + 20}) lgkmcnt(0)")
            else:
                a("s_waitcnt lgkmcnt(0)")
            nxt = aread(ph+1) if (ph < 23 and ph != 14) else []
            st = 16 + 20*(ph % 2)
            ni = 0
            for j in range(5):
                for u in range(2):
                    acc = 64 + (u*5 + j)*4
                    b = (u*24 + ph)*4
                    c = f"v[{acc}:{acc+3}]" if ph else "0"
                    a(f"v_mfma_f32_16x16x32_bf16 v[{acc}:{acc+3}], v[{st+4*j}:{st+4*j+3}], a[{b}:{b+3}], {c}")
                    if ni < len(nxt): a(nxt[ni]); ni += 1
            if ph <= 8:
                if ph + PF < 24: hload(ph + PF)
            if ph == 8:
                for p2 in range(13, 24): hload(p2)
                a("s_waitcnt lgkmcnt(0)\ns_barrier")
                self.dma_w2(list(range(15, 24)), list(range(0, 9)))
        self.stamp(15)
        a(f"""s_barrier
s_mul_i32 s12, {S_W}, 5120
s_add_u32 s12, s12, {SCR}
v_add_u32 v8, s12, v2
s_nop 4""")
        for j in range(5):
            a(f"ds_write_b128 v8, v[{84+4*j}:{87+4*j}] offset:{1024*j}")
        a(f"""s_xor_b32 s12, {S_W}, 2
s_mul_i32 s12, s12, 5120
s_add_u32 s12, s12, {SCR}
v_add_u32 v9, s12, v2
v_lshrrev_b32 v10, 4, v1
v_lshlrev_b32 v11, 4, v10
v_add_u32 v11, {PT_GA}, v11
s_waitcnt lgkmcnt(0)
s_barrier""")
        for j in range(5):
            a(f"ds_read_b128 v[{16+4*j}:{19+4*j}], v9 offset:{1024*j}")
        for j in range(5):
            a(f"ds_read_b128 v[{36+4*j}:{39+4*j}], v11 offset:{PT_B2 - PT_GA + 64*j}")
        a("s_waitcnt lgkmcnt(0)")
        for j in range(5):
            for e in range(4):
                a(f"v_add_f32 v{64+4*j+e}, v{64+4*j+e}, v{16+4*j+e}\nv_add_f32 v{64+4*j+e}, v{64+4*j+e}, v{36+4*j+e}")
        for j in range(5):
            a(f"ds_read_b128 v[{16+4*j}:{19+4*j}], v11 offset:{PT_GB - PT_GA + 64*j}")
        self.srd(SC, P_OUT, 2048*1280)
        a(f"""v_and_b32 v8, 15, v1
s_lshl_b32 s12, s42, 4
v_add_u32 v8, s12, v8
v_mul_u32_u24 v8, 1280, v8
v_lshl_add_u32 v15, v10, 3, v8
s_mul_i32 s12, {S_V}, 160
s_waitcnt lgkmcnt(0)""")
        for j in range(5):
            for d in range(2):
                x = 214 + 2*j + d
                a(f"""v_lshlrev_b32 v56, 16, v{x}
v_and_b32 v57, 0xffff0000, v{x}
v_fmac_f32 v56, v{16+4*j+2*d}, v{64+4*j+2*d}
v_fmac_f32 v57, v{16+4*j+2*d+1}, v{64+4*j+2*d+1}
v_cvt_pk_bf16_f32 v{104+2*j+d}, v56, v57""")
            a(f"buffer_store_dwordx2 v[{104+2*j}:{105+2*j}], v15, {SC}, s12 offen offset:{32*j}")

    def debug_dump_q(self):
        a = self.a
        a(f"""s_lshl_b32 s12, s2, 2
s_add_u32 s12, s12, {S_W}
s_mul_i32 s12, s12, 4096
s_add_u32 s12, s12, {WS_TS + 0x100000:#x}
v_lshlrev_b32 v9, 4, v1
buffer_store_dwordx4 v[224:227], v9, {WS}, s12 offen
buffer_store_dwordx4 v[228:231], v9, {WS}, s12 offen offset:1024
buffer_store_dwordx4 v[232:235], v9, {WS}, s12 offen offset:2048""")

    def build(self):
        a = self.a
        a.label("L_code_begin")
        self.prologue()
        self.stamp(0)
        self.phase0()
        self.stamp(1)
        if self.stop_after >= 1:
            self.dma_wqkv()
            self.phase_qkv()
            self.stamp(4)
            if self.stop_after == 1:
                self.debug_dump_q()
        if self.stop_after >= 2:
            self.phase_att()
            self.stamp(7)
        if self.stop_after >= 3:
            self.phase_wo()
            self.stamp(10)
        if self.stop_after >= 4:
            self.dma_w1()
            self.phase_w1()
            self.stamp(13)
        if self.stop_after >= 5:
            self.srd(SB, P_W2, 1536*1280)
            self.dma_w2(list(range(15)), list(range(15)))
            self.phase_w2()
            self.stamp(16)
        a("s_waitcnt vmcnt(0) lgkmcnt(0)")
        a.label("L_end")
        a("s_endpgm")
        a.label("L_code_end")
        body = a.finish()
        hdr = open(os.path.join(os.path.dirname(os.path.abspath(__file__)), "header.txt")).read()
        return f"""{hdr}; @launch grid=(256,1,1) block=(256,1,1) lds=163840
.amdgcn_target "amdgcn-amd-amdhsa--gfx950"
.text
.globl {NAME}_kernel
.p2align 8
.type {NAME}_kernel,@function
{NAME}_kernel:
{body}
.section .rodata,"a"
.p2align 6
.amdhsa_kernel {NAME}_kernel
  .amdhsa_next_free_vgpr 512
  .amdhsa_next_free_sgpr 102
  .amdhsa_accum_offset 256
  .amdhsa_group_segment_fixed_size 0
  .amdhsa_kernarg_size 104
  .amdhsa_user_sgpr_count 2
  .amdhsa_user_sgpr_kernarg_segment_ptr 1
  .amdhsa_system_sgpr_workgroup_id_x 1
  .amdhsa_float_denorm_mode_32 3
.end_amdhsa_kernel
"""

import struct
def f2h(x):
    return hex(struct.unpack("<I", struct.pack("<f", x))[0])

if __name__ == "__main__":
    import argparse
    ap = argparse.ArgumentParser()
    ap.add_argument("-o", default=f"cdna_kernels/{NAME}.s")
    ap.add_argument("--stop", type=int, default=99)
    ap.add_argument("--prof", action="store_true")
    args = ap.parse_args()
    g = G(stop_after=args.stop, prof=args.prof)
    s = g.build()
    open(args.o, "w").write(s)
    print("wrote", args.o, len(s), "bytes; nops inserted:", g.a.inserted)
```

```python
import sys, os, struct, re
sys.path.insert(0, os.path.dirname(os.path.abspath(__file__)))
from asm import Asm

NAME = "adaLN_cond__sliding_block__mixer_channel_mlp__prompt"

WS_FLAGS = 0x0
WS_MODP = 0x40000
WS_ST = 0x50000
WS_NF = 0x100000
WS_KF = 0x400000
WS_VF = 0x700000
WS_OF = 0xA00000
WS_UF = 0xD00000
WS_HF = 0x1000000
WS_TS = 0x1800000
WS_SIZE = 0x10000000
OOB = 0x7F000000
PT = 153600
PT_GA, PT_G2, PT_GB, PT_B2, PT_B1 = PT, PT + 320, PT + 640, PT + 960, PT + 1280
PT_G2B, PT_S2B, PT_VEC, PT_PART = PT + 1664, PT + 2944, PT + 4224, PT + 5376
KB_ = 81920
VB_ = KB_ + 12*2560
W1B = 30720

S_W, S_EP, S_P, S_T, S_U, S_V, S_T1, S_J = "s4", "s5", "s6", "s7", "s8", "s9", "s10", "s11"
S_TGF, S_TG1, S_R = "s42", "s43", "s3"
P_X, P_WQKV, P_WO, P_W1, P_B1, P_W2, P_B2, P_C, P_WMOD, P_OUT, P_DBG, P_WS = 16, 18, 20, 24, 26, 28, 30, 32, 34, 36, 38, 40
WS = "s[44:47]"; SA = "s[48:51]"; SB = "s[52:55]"; SC = "s[56:59]"; DBG = "s[60:63]"

def f2h(x):
    return hex(struct.unpack("<I", struct.pack("<f", x))[0])

class G:
    def __init__(self, stop_after=99, prof=False, timeout=1 << 20, opts=None):
        self.a = Asm()
        self.stop_after = stop_after
        self.prof = prof
        self.timeout = timeout
        self.nlab = 0
        self.q = []
        self.o = opts or {}
        self.stamps = []
    def lab(self, s):
        self.nlab += 1
        return f"L_{s}_{self.nlab}"
    def srd(self, q, ptr, size):
        b = int(q[2:q.index(":")])
        self.a(f"""s_mov_b32 s{b}, s{ptr}
s_mov_b32 s{b+1}, s{ptr+1}
s_mov_b32 s{b+2}, {size:#x}
s_mov_b32 s{b+3}, 0x00020000""")
    def vm(self, text, tag="x"):
        self.a(text)
        for l in text.split("\n"):
            if l.strip().startswith(("buffer_", "global_")):
                self.q.append(tag)
    def vmn(self, tag):
        idx = [i for i, t in enumerate(self.q) if t == tag]
        if not idx:
            return None
        return len(self.q) - 1 - idx[-1]
    def waitvm(self, tag, extra=""):
        n = self.vmn(tag)
        if n is None:
            if extra: self.a(f"s_waitcnt {extra}")
            return
        last = len(self.q) - 1 - n
        self.q = self.q[last+1:]
        if n > 63:
            n = 63
        self.a(f"s_waitcnt vmcnt({n}) {extra}".strip())
    def waitall(self, extra=""):
        self.q = []
        self.a(f"s_waitcnt vmcnt(0) {extra}".strip())
    def stamp(self, name, real=False, fine=False):
        if not self.prof or (fine and not self.o.get("fine")):
            return
        if real:
            idx = {"start": 62, "end": 63}[name]
        else:
            idx = len(self.stamps); self.stamps.append(name)
            assert idx < 62
        self.a(f"""{'s_memrealtime' if real else 's_memtime'} s[100:101]
s_waitcnt lgkmcnt(0)
v_writelane_b32 v255, s100, {idx}""")
    def stamp_flush(self):
        if not self.prof:
            return
        self.a(f"""s_lshl_b32 s12, s2, 2
s_add_u32 s12, s12, {S_W}
s_lshl_b32 s12, s12, 8
s_add_u32 s12, s12, {WS_TS:#x}
v_lshlrev_b32 v254, 2, v1
buffer_store_dword v255, v254, {WS}, s12 offen""")

    def flag_store(self, phase, idx_sgpr):
        a = self.a
        l = self.lab("fs")
        a(f"""s_cmp_lg_u32 {S_W}, 0
s_cbranch_scc1 {l}
s_lshl_b32 s64, {idx_sgpr}, 7
s_add_u32 s64, s64, {WS_FLAGS + phase*0x8000:#x}
v_mov_b32 v252, {S_EP}
v_mov_b32 v253, 0
s_mov_b64 exec, 1
buffer_store_dword v252, v253, {WS}, s64 offen sc1
s_mov_b64 exec, -1
{l}:""")

    def poll(self, vaddrs, drain=None, extra=""):
        a = self.a
        if isinstance(vaddrs, str): vaddrs = [vaddrs]
        l = self.lab("pl"); l2 = self.lab("pd")
        a(f"""s_cmp_lg_u32 {S_W}, 0
s_cbranch_scc1 {l2}
s_mov_b32 s64, 0
{l}:""")
        for i, v in enumerate(vaddrs):
            a(f"buffer_load_dword v{250+i}, {v}, {WS}, 0 offen sc1")
        a(f"""s_add_u32 s64, s64, 1
s_cmp_gt_u32 s64, {self.timeout}
s_cbranch_scc1 {l2}
s_waitcnt vmcnt(0)
v_cmp_ne_u32 vcc, {S_EP}, v250""")
        for i in range(1, len(vaddrs)):
            a(f"""v_cmp_ne_u32 s[66:67], {S_EP}, v{250+i}
s_nop 3
s_or_b64 vcc, vcc, s[66:67]""")
        a(f"""s_nop 3
s_cmp_eq_u64 vcc, 0
s_cbranch_scc0 {l}
{l2}:""")
        if drain:
            self.waitvm(drain, extra)
        elif extra:
            a(f"s_waitcnt {extra}")
        a("s_barrier")

    def touch(self, srd_q, per_wave, i, cnt, dst):
        self.vm(f"""s_mul_i32 s12, {S_R}, {4*per_wave}
s_mul_i32 s13, {S_W}, {per_wave}
s_add_u32 s12, s12, s13
s_add_u32 s12, s12, {i*cnt}
s_lshl_b32 s12, s12, 7
v_lshlrev_b32 v8, 7, v1
v_mov_b32 v9, {OOB:#x}
v_cmp_gt_u32 vcc, {cnt}, v1
s_nop 1
v_cndmask_b32 v8, v9, v8, vcc
buffer_load_dword v{dst}, v8, {srd_q}, s12 offen""", "touch")
    def touch_setup(self, reg, cnt):
        self.a(f"""v_lshlrev_b32 v{reg}, 7, v1
v_mov_b32 v9, {OOB:#x}
v_cmp_gt_u32 vcc, {cnt}, v1
s_nop 1
v_cndmask_b32 v{reg}, v9, v{reg}, vcc""")
    def touch_base(self, sreg, per_wave, i, cnt):
        self.a(f"""s_mul_i32 {sreg}, {S_R}, {4*per_wave*128}
s_mul_i32 s65, {S_W}, {per_wave*128}
s_add_u32 {sreg}, {sreg}, s65
s_add_u32 {sreg}, {sreg}, {i*cnt*128}""")

    def prologue(self):
        a = self.a
        a(f"""s_cmp_ge_u32 s2, 256
s_cbranch_scc1 L_end
s_load_dwordx16 s[16:31], s[0:1], 0
s_load_dwordx8 s[32:39], s[0:1], 64
s_load_dwordx2 s[40:41], s[0:1], 96
s_getpc_b64 s[64:65]
L_pc:
s_add_u32 s64, s64, L_code_begin-L_pc
s_addc_u32 s65, s65, -1
v_and_b32 v1, 63, v0
v_lshrrev_b32 v2, 6, v0
s_lshr_b32 {S_R}, s2, 3
v_readfirstlane_b32 {S_W}, v2
s_and_b32 s13, s2, 7
s_cmp_lg_u32 {S_W}, 3
s_cbranch_scc1 L_nopf
s_lshl_b32 s14, {S_R}, 6
v_add_u32 v3, s14, v1
v_lshlrev_b32 v3, 6, v3
v_min_u32 v3, L_code_end-L_code_begin-4, v3
global_load_dword v248, v3, s[64:65]
L_nopf:
s_lshr_b32 s14, s13, 2
s_lshl_b32 s14, s14, 3
s_and_b32 s15, {S_R}, 7
s_add_u32 {S_T}, s14, s15
s_and_b32 s14, s13, 3
s_lshl_b32 s14, s14, 2
s_lshr_b32 s15, {S_R}, 3
s_add_u32 {S_P}, s14, s15
; wo / w2: U = 4x + (r&3), V = r>>2
s_lshl_b32 s14, s13, 2
s_and_b32 s15, {S_R}, 3
s_add_u32 {S_U}, s14, s15
s_lshr_b32 {S_V}, {S_R}, 2
; w1: T1 = 2x + (r&1), j = r>>1
s_lshl_b32 s14, s13, 1
s_and_b32 s15, {S_R}, 1
s_add_u32 {S_T1}, s14, s15
s_lshr_b32 {S_J}, {S_R}, 1""")
        if self.prof:
            a("v_mov_b32 v255, 0")
        a("s_waitcnt lgkmcnt(0)")
        self.srd(WS, P_WS, WS_SIZE)
        self.srd(DBG, P_DBG, 256)
        a(f"""s_cmp_lg_u32 s2, 0
s_cbranch_scc1 L_noep
s_cmp_lg_u32 {S_W}, 0
s_cbranch_scc1 L_noep
s_memrealtime s[66:67]
s_waitcnt lgkmcnt(0)
s_or_b32 s66, s66, 1
v_mov_b32 v3, s66
v_mov_b32 v4, 0
s_mov_b64 exec, 1
buffer_store_dword v3, v4, {DBG}, 0 offen sc1
s_mov_b64 exec, -1
L_noep:""")

    def phase0(self):
        a = self.a
        self.srd(SA, P_C, 1280)
        self.srd(SB, P_WMOD, 640*7680)
        self.srd(SC, P_X, 2048*1280)
        LDS_M = 158720
        LDS_L = 159744
        a(f"""; ---- phase 0 ----
v_and_b32 v2, 7, v1
v_lshrrev_b32 v3, 3, v1
s_mul_hi_u32 s12, s2, {(2**32 + 59)//60}
s_mul_i32 s13, s12, 60
s_sub_u32 s13, s2, s13
s_mul_i32 s14, s12, 160
s_mul_i32 s15, {S_W}, 40
s_add_u32 s14, s14, s15
v_add_u32 v4, s14, v3
v_lshlrev_b32 v5, 1, v4
s_movk_i32 s15, 7680
v_mul_lo_u32 v6, v4, s15
s_lshl_b32 s15, s13, 7
v_lshl_add_u32 v7, v2, 4, s15
v_add_u32 v6, v6, v7""")
        for j in range(5):
            self.vm(f"buffer_load_ushort v{8+j}, v5, {SA}, 0 offen offset:{16*j}", "c")
        for j in range(5):
            self.vm(f"s_mov_b32 s15, {j*8*7680}\nbuffer_load_dwordx4 v[{16+4*j}:{19+4*j}], v6, {SB}, s15 offen", f"w{j}")
        self.vm(f"""s_lshl_b32 s14, s2, 3
v_add_u32 v7, s14, v2
s_movk_i32 s15, 1280
v_mul_lo_u32 v7, v7, s15
s_mul_i32 s15, {S_W}, 20
v_add_u32 v13, s15, v3
v_lshl_add_u32 v7, v13, 4, v7
v_add_u32 v14, 256, v7
v_cmp_gt_u32 vcc, 4, v3
v_mov_b32 v15, {OOB:#x}
s_nop 0
v_cndmask_b32 v14, v15, v14, vcc
buffer_load_dwordx4 v[36:39], v7, {SC}, 0 offen
buffer_load_dwordx4 v[40:43], v7, {SC}, 0 offen offset:128
buffer_load_dwordx4 v[44:47], v14, {SC}, 0 offen""", "xrow")
        self.vm(f"""v_mul_u32_u24 v13, 7282, v0
v_lshrrev_b32 v13, 16, v13          ; tid/9
v_mul_u32_u24 v14, 9, v13
v_sub_u32 v14, v0, v14              ; rem
v_mul_u32_u24 v15, 21846, v14
v_lshrrev_b32 v15, 16, v15
v_mul_u32_u24 v56, 3, v15
v_sub_u32 v14, v14, v56             ; ln
s_mul_i32 s14, {S_R}, 20
v_add_u32 v13, s14, v13
v_mul_u32_u24 v13, 3840, v13
v_mul_u32_u24 v15, 1280, v15
v_add_u32 v13, v13, v15
v_lshl_add_u32 v13, v14, 7, v13
s_and_b32 s14, s2, 3
s_mul_i32 s14, s14, 320
s_and_b32 s14, s14, 0xffffff80
v_mov_b32 v15, {OOB:#x}
v_cmp_gt_u32 vcc, 180, v0
s_nop 1
v_cndmask_b32 v13, v15, v13, vcc
buffer_load_dword v249, v13, s[72:75], s14 offen""", "touch")
        l = self.lab("ep"); l2 = self.lab("epd")
        a(f"""s_cmp_lg_u32 {S_W}, 0
s_cbranch_scc1 {l2}
s_mov_b32 s64, 0
v_mov_b32 v251, 0
{l}:
buffer_load_dword v250, v251, {DBG}, 0 offen sc1
s_add_u32 s64, s64, 1
s_cmp_gt_u32 s64, {self.timeout}
s_cbranch_scc1 {l2}
s_waitcnt vmcnt(0)
v_readfirstlane_b32 {S_EP}, v250
s_cmp_eq_u32 {S_EP}, 0
s_cbranch_scc1 {l}
{l2}:""")
        for jj in range(4):
            a(f"""v_add_u32 v56, {256*jj}, v0
v_mul_u32_u24 v57, 4370, v56
v_lshrrev_b32 v57, 16, v57
v_mul_u32_u24 v58, 15, v57
v_sub_u32 v58, v56, v58
v_and_b32 v59, 3, v58
v_lshrrev_b32 v58, 2, v58
v_lshl_add_u32 v58, v59, 2, v58
v_mul_u32_u24 v59, 52, v58
v_lshrrev_b32 v59, 8, v59
v_mul_u32_u24 v13, 5, v59
v_sub_u32 v58, v58, v13
v_add_u32 v59, 1, v59
v_cmp_eq_u32 vcc, 3, v59
v_mul_u32_u24 v13, 1280, v59
v_lshl_add_u32 v58, v58, 4, v13
v_subrev_u32 v13, 3840, v58
v_mul_u32_u24 v57, 3840, v57
v_cndmask_b32 v58, v58, v13, vcc
v_add_u32 v{60+jj}, v57, v58""")
        a(f"""s_cmp_eq_u32 {S_W}, 3
s_cselect_b32 s69, 0, 12288
s_cbranch_scc0 L_w3ok
v_mov_b32 v63, v60
L_w3ok:""")
        self.stamp("p0_setup", fine=True)
        self.waitvm("c")
        self.stamp("p0_c", fine=True)
        for j in range(5):
            a(f"""v_lshlrev_b32 v{8+j}, 16, v{8+j}
v_mul_f32 v13, 0xbfb8aa3b, v{8+j}
v_exp_f32 v13, v13
v_add_f32 v13, 1.0, v13
v_rcp_f32 v13, v13
v_mul_f32 v13, v{8+j}, v13
v_cvt_pk_bf16_f32 v13, v13, v13
v_lshlrev_b32 v{8+j}, 16, v13""")
        for e in range(8):
            a(f"v_mov_b32 v{48+e}, 0")
        for j in range(5):
            self.waitvm(f"w{j}")
            for d in range(4):
                r = 16 + 4*j + d
                a(f"""v_lshlrev_b32 v13, 16, v{r}
v_and_b32 v15, 0xffff0000, v{r}
v_fmac_f32 v{48+2*d}, v{8+j}, v13
v_fmac_f32 v{49+2*d}, v{8+j}, v15""")
        for d in range(4):
            a(f"v_permlane32_swap_b32 v{48+2*d}, v{49+2*d}")
        for d in range(4):
            a(f"v_add_f32 v{48+2*d}, v{48+2*d}, v{49+2*d}")
        a("""v_permlane16_swap_b32 v48, v50
v_permlane16_swap_b32 v52, v54
v_add_f32 v48, v48, v50
v_add_f32 v52, v52, v54
v_add_f32_dpp v48, v48, v48 row_ror:8 row_mask:0xf bank_mask:0xf
v_add_f32_dpp v52, v52, v52 row_ror:8 row_mask:0xf bank_mask:0xf""")
        a(f"""v_lshrrev_b32 v13, 4, v1
v_and_b32 v15, 1, v13
v_lshlrev_b32 v15, 1, v15
v_lshrrev_b32 v13, 1, v13
v_add_u32 v13, v13, v15
v_bfe_u32 v15, v1, 3, 1
v_lshl_add_u32 v13, v15, 2, v13
v_lshl_add_u32 v13, v2, 3, v13
v_cmp_eq_u32 vcc, 1, v15
s_lshl_b32 s14, {S_W}, 8
s_add_u32 s14, s14, {LDS_M}
v_lshl_add_u32 v13, v13, 2, s14
v_cndmask_b32 v48, v48, v52, vcc
ds_write_b32 v13, v48""")
        self.stamp("p0_mod", fine=True)
        self.waitvm("xrow")
        a("v_mov_b32 v56, 0\nv_mov_b32 v57, 0\nv_mov_b32 v58, 0x3f803f80")
        for r in range(36, 48):
            a(f"v_dot2_f32_bf16 v56, v{r}, v58, v56\nv_dot2_f32_bf16 v57, v{r}, v{r}, v57")
        a(f"""v_permlane32_swap_b32 v56, v57
v_add_f32 v56, v56, v57
v_mov_b32 v57, v56
v_permlane16_swap_b32 v56, v57
v_add_f32 v56, v56, v57
v_add_f32_dpp v56, v56, v56 row_ror:8 row_mask:0xf bank_mask:0xf
v_lshrrev_b32 v13, 5, v1
v_lshl_add_u32 v13, v13, 3, v2
v_lshlrev_b32 v13, 4, v13
s_lshl_b32 s14, {S_W}, 2
s_add_u32 s14, s14, {LDS_L}
v_add_u32 v13, s14, v13
ds_write_b32 v13, v56
s_waitcnt lgkmcnt(0)
s_barrier""")
        l = self.lab("m0")
        a(f"""s_cmp_lg_u32 {S_W}, 0
s_cbranch_scc1 {l}
s_cmp_ge_u32 s2, 240
s_cbranch_scc1 {l}
v_lshlrev_b32 v13, 2, v1
v_add_u32 v15, {LDS_M}, v13
ds_read_b32 v48, v15
ds_read_b32 v49, v15 offset:256
ds_read_b32 v50, v15 offset:512
ds_read_b32 v51, v15 offset:768
s_mul_i32 s14, s12, 3840*4
s_lshl_b32 s15, s13, 8
s_add_u32 s14, s14, s15
s_add_u32 s14, s14, {WS_MODP:#x}
s_waitcnt lgkmcnt(0)
v_add_f32 v48, v48, v49
v_add_f32 v50, v50, v51
v_add_f32 v48, v48, v50
buffer_store_dword v48, v13, {WS}, s14 offen sc1
{l}:""")
        a(f"""v_lshlrev_b32 v13, 4, v2
v_add_u32 v13, {LDS_L}, v13
ds_read_b128 v[48:51], v13
ds_read_b128 v[52:55], v13 offset:128
s_waitcnt lgkmcnt(0)
v_add_f32 v48, v48, v49
v_add_f32 v50, v50, v51
v_add_f32 v52, v52, v53
v_add_f32 v54, v54, v55
v_add_f32 v48, v48, v50
v_add_f32 v52, v52, v54
v_mul_f32 v48, {f2h(1/640)}, v48
v_mul_f32 v52, {f2h(1/640)}, v52
v_fma_f32 v52, -v48, v48, v52
v_max_f32 v52, 0, v52
v_add_f32 v52, {f2h(1e-5)}, v52
v_rsq_f32 v52, v52
s_nop 0
v_mul_f32 v48, v48, v52
v_sub_f32 v48, 0, v48""")
        for r in range(36, 48):
            a(f"""v_lshlrev_b32 v13, 16, v{r}
v_and_b32 v15, 0xffff0000, v{r}
v_fma_f32 v13, v13, v52, v48
v_fma_f32 v15, v15, v52, v48
v_cvt_pk_f16_f32 v{r}, v13, v15""")
        self.vm(f"""s_mul_i32 s15, {S_W}, 20
v_add_u32 v13, s15, v3
v_lshrrev_b32 v15, 1, v13
v_lshlrev_b32 v15, 10, v15
v_and_b32 v13, 1, v13
v_lshl_add_u32 v15, v13, 9, v15
s_and_b32 s14, s2, 3
s_lshl_b32 s14, s14, 3
v_add_u32 v13, s14, v2
v_lshl_add_u32 v15, v13, 4, v15
v_add_u32 v13, 8192, v15
v_cmp_gt_u32 vcc, 4, v3
v_mov_b32 v7, {OOB:#x}
s_lshr_b32 s14, s2, 2
s_mul_i32 s14, s14, 40960
v_cndmask_b32 v13, v7, v13, vcc
s_add_u32 s14, s14, {WS_NF:#x}
buffer_store_dwordx4 v[36:39], v15, {WS}, s14 offen sc1
s_add_u32 s15, s14, 4096
buffer_store_dwordx4 v[40:43], v15, {WS}, s15 offen sc1
buffer_store_dwordx4 v[44:47], v13, {WS}, s14 offen sc1""", "nst")
        dma = self.wqkv_dma_list()
        k = self.o.get("p0_dma_first", 6)
        for x in dma[:k]: self.vm(x, "wq")
        self.stamp("p0_stored", fine=True)
        self.waitvm("nst")
        a("s_barrier")
        self.flag_store(0, "s2")
        self.stamp("p0_flag", fine=True)
        for x in dma[k:]: self.vm(x, "wq")

    def wqkv_dma_list(self):
        out = []
        for g in range(10):
            for jj in range(4):
                pre = ""
                if g == 0 and jj == 0:
                    pre = f"s_mul_i32 s12, {S_P}, 80\ns_lshl_b32 s13, {S_W}, 10\ns_add_u32 s68, s13, s69\n"
                elif jj == 0:
                    pre = f"s_add_u32 s12, s12, {64*3840}\n"
                if jj < 3:
                    m = f"s_add_u32 m0, s13, {(15*g + 4*jj)*1024}"
                else:
                    m = f"s_add_u32 m0, s68, {15*g*1024}"
                out.append(pre + f"{m}\ns_nop 0\nbuffer_load_dwordx4 v{60+jj}, s[72:75], s12 offen lds")
        return out

    def phase_qkv(self):
        a = self.a
        LDS_GS = 153600
        a("""; ---- phase 1: QKV ----
v_lshlrev_b32 v8, 7, v1
v_add_u32 v9, 64*128, v8
v_add_u32 v10, 128*128, v8
v_add_u32 v11, 192*128, v8""")
        for j in range(5):
            a(f"""v_add_u32 v12, {64*j}, v1
v_mul_u32_u24 v13, 6554, v12
v_lshrrev_b32 v13, 16, v13
v_mul_u32_u24 v14, 10, v13
v_sub_u32 v14, v12, v14
v_mul_u32_u24 v13, 1280, v13
v_lshl_add_u32 v{240+j}, v14, 4, v13""")
        for jj in range(3):
            a(f"""v_add_u32 v12, {64*jj}, v1
v_mul_u32_u24 v13, 5462, v12
v_lshrrev_b32 v13, 16, v13
v_mul_u32_u24 v14, 12, v13
v_sub_u32 v14, v12, v14
v_mul_u32_u24 v13, 3072, v13
v_lshl_add_u32 v{245+jj}, v14, 4, v13""")
        self.poll(["v8", "v9", "v10", "v11"], drain="wq")
        self.stamp("qkv_poll")
        a(f"""v_lshlrev_b32 v2, 4, v1
s_lshl_b32 s12, {S_T}, 2
s_add_u32 s12, s12, {S_W}
s_mul_i32 s12, s12, 40960
s_add_u32 s12, s12, {WS_NF:#x}
v_lshlrev_b32 v8, 4, v0
v_mov_b32 v9, {OOB:#x}
v_cmp_gt_u32 vcc, 160, v0
s_nop 1
v_cndmask_b32 v8, v9, v8, vcc""")
        for kq in range(4):
            self.vm(f"s_mov_b32 s14, {WS_MODP + kq*15360}\nbuffer_load_dwordx4 v[{16+4*kq}:{19+4*kq}], v8, {WS}, s14 offen sc1\n"
                    f"buffer_load_dwordx4 v[{32+4*kq}:{35+4*kq}], v8, {WS}, s14 offen offset:2560 sc1", "gs")
        NB = 64
        PF = 8
        def nload(s):
            pre = "s_add_u32 s12, s12, 4096\n" if (s % 4 == 0 and s > 0) else ""
            return pre + f"buffer_load_dwordx4 v[{NB+4*s}:{NB+4*s+3}], v2, {WS}, s12 offen offset:{(s%4)*1024} sc1"
        for s in range(PF):
            self.vm(nload(s), f"n{s}")
        a(f"""v_lshrrev_b32 v8, 5, v1           ; h
v_lshlrev_b32 v3, 6, v8
v_add_u32 v3, {LDS_GS}, v3          ; g/s base
v_bfe_u32 v9, v1, 2, 2              ; r
v_lshl_add_u32 v9, v8, 3, v9        ; 8h + r
v_mul_u32_u24 v9, 240, v9
v_bfe_u32 v10, v1, 4, 1
v_and_b32 v11, 3, v1
v_lshl_add_u32 v10, v10, 2, v11     ; c' = 4*(G&1)+c
v_lshrrev_b32 v11, 1, v10
v_lshl_add_u32 v9, v11, 6, v9       ; (c'>>1)*64
v_and_b32 v10, 1, v10
v_lshl_add_u32 v4, v10, 3, v9       ; base0
v_add_u32 v5, {16*3840}, v4
v_add_u32 v6, {32*3840}, v4
v_lshrrev_b32 v9, 2, v0
v_lshlrev_b32 v9, 7, v9
v_bfe_u32 v10, v0, 1, 1
v_lshl_add_u32 v9, v10, 6, v9
v_and_b32 v10, 1, v0
v_lshl_add_u32 v9, v10, 4, v9
v_add_u32 v9, {LDS_GS}, v9""")
        AB = 64
        GSB = 16
        def aread(s):
            base = f"v{4 + s//16}"
            st = AB + 16*(s % 3)
            return [f"ds_read_b64_tr_b16 a[{st+4*t+2*rd}:{st+4*t+2*rd+1}], {base} offset:{(s%16)*3840 + rd*960 + t*16}" for t in range(4) for rd in range(2)]
        for x in aread(0): a(x)
        self.waitvm("gs")
        for e in range(4):
            a(f"""v_add_f32 v{16+e}, v{16+e}, v{20+e}
v_add_f32 v{24+e}, v{24+e}, v{28+e}
v_add_f32 v{32+e}, v{32+e}, v{36+e}
v_add_f32 v{40+e}, v{40+e}, v{44+e}
v_add_f32 v{16+e}, v{16+e}, v{24+e}
v_add_f32 v{32+e}, v{32+e}, v{40+e}""")
        a("""v_cvt_pk_bf16_f32 v20, v16, v17
v_cvt_pk_bf16_f32 v21, v18, v19
v_cvt_pk_bf16_f32 v22, v32, v33
v_cvt_pk_bf16_f32 v23, v34, v35
v_lshlrev_b32 v16, 16, v20
v_and_b32 v17, 0xffff0000, v20
v_lshlrev_b32 v18, 16, v21
v_and_b32 v19, 0xffff0000, v21
v_lshlrev_b32 v32, 16, v22
v_and_b32 v33, 0xffff0000, v22
v_lshlrev_b32 v34, 16, v23
v_and_b32 v35, 0xffff0000, v23
v_add_f32 v32, 1.0, v32
v_add_f32 v33, 1.0, v33
v_add_f32 v34, 1.0, v34
v_add_f32 v35, 1.0, v35
v_cvt_pk_bf16_f32 v22, v32, v33
v_cvt_pk_bf16_f32 v23, v34, v35
v_lshlrev_b32 v32, 16, v22
v_and_b32 v33, 0xffff0000, v22
v_lshlrev_b32 v34, 16, v23
v_and_b32 v35, 0xffff0000, v23
v_cmp_gt_u32 vcc, 160, v0
s_and_saveexec_b64 s[66:67], vcc
ds_write_b128 v9, v[32:35]
ds_write_b128 v9, v[16:19] offset:32
s_mov_b64 exec, s[66:67]
s_waitcnt lgkmcnt(0)
s_barrier""")
        def gsread(s):
            st = GSB + 16*(s % 2)
            return [f"ds_read_b128 v[{st+4*j}:{st+4*j+3}], v3 offset:{s*128+16*j}" for j in range(4)]
        def modulate(s):
            st = GSB + 16*(s % 2)
            out = []
            for d in range(4):
                r = NB + 4*s + d
                t0, t1 = 48 + 2*(d % 2), 49 + 2*(d % 2)
                out.append(f"v_fma_mix_f32 v{t0}, v{r}, v{st+2*d}, v{st+8+2*d} op_sel_hi:[1,0,0]")
                out.append(f"v_fma_mix_f32 v{t1}, v{r}, v{st+2*d+1}, v{st+8+2*d+1} op_sel:[1,0,0] op_sel_hi:[1,0,0]")
                out.append(f"v_cvt_pk_bf16_f32 v{r}, v{t0}, v{t1}")
            return out
        self.stamp("qkv_gs")
        for x in gsread(0) + gsread(1): a(x)
        self.waitvm("n0", "lgkmcnt(4)")
        for x in modulate(0): a(x)
        for x in aread(1): a(x)
        nxt_n = PF
        self.srd(SA, P_WO, 640*1280)
        self.srd(SC, P_W1, 640*3072)
        self.touch_setup(12, 50); self.touch_setup(13, 60)
        self.touch_base("s14", 50, 0, 50); self.touch_base("s15", 120, 0, 60)
        touches = [f"buffer_load_dword v248, v12, {SA}, s14 offen", f"buffer_load_dword v249, v13, {SC}, s15 offen"]
        for s in range(40):
            if s in (1, 10, 20, 30): self.stamp(f"qkv_s{s}", fine=True)
            ex = "lgkmcnt(8)" if s + 1 < 40 else "lgkmcnt(0)"
            if s + 1 < 40: self.waitvm(f"n{s+1}", ex)
            else: a(f"s_waitcnt {ex}")
            lds = gsread(s+2) + aread(s+2) if s + 2 < 40 else []
            va = modulate(s+1) if s + 1 < 40 else []
            st = AB + 16*(s % 3)
            li = vi = 0
            for t in range(4):
                c = f"a[{16*t}:{16*t+15}]" if s else "0"
                a(f"v_mfma_f32_32x32x16_bf16 a[{16*t}:{16*t+15}], a[{st+4*t}:{st+4*t+3}], v[{NB+4*s}:{NB+4*s+3}], {c}")
                for _ in range(3):
                    if li < len(lds): a(lds[li]); li += 1
                for _ in range(3):
                    if vi < len(va): a(va[vi]); vi += 1
                if t in (0, 2):
                    per = self.o.get("n_per_slab", 1)
                    if (t == 0 or (per > 1 and s % 2 == 0)) and nxt_n < 40:
                        self.vm(nload(nxt_n), f"n{nxt_n}"); nxt_n += 1
                    elif nxt_n >= 40 and touches and t == 0:
                        self.vm(touches.pop(0), "touch")
        self.stamp("qkv_main")
        def quad_pack(src, dst, scale=None):
            for e in range(4):
                a(f"v_accvgpr_read_b32 v{48+e}, a{src+e}")
            if scale:
                for e in range(4):
                    a(f"v_mul_f32 v{48+e}, {scale}, v{48+e}")
            a(f"v_cvt_pk_bf16_f32 v{dst}, v48, v49\nv_cvt_pk_bf16_f32 v{dst+1}, v50, v51")
        quad_pack(0, 16); quad_pack(4, 18); quad_pack(12, 20); quad_pack(16, 22); quad_pack(8, 24)
        self.vm(f"""s_lshl_b32 s12, {S_T}, 2
s_add_u32 s12, s12, {S_W}
s_lshl_b32 s13, {S_P}, 6
s_add_u32 s12, s12, s13
s_mul_i32 s13, s12, 2560
s_add_u32 s13, s13, {WS_KF:#x}
v_lshlrev_b32 v9, 3, v1
buffer_store_dwordx4 v[16:19], v2, {WS}, s13 offen sc1
buffer_store_dwordx4 v[20:23], v2, {WS}, s13 offen offset:1024 sc1
buffer_store_dwordx2 v[24:25], v9, {WS}, s13 offen offset:2048 sc1""", "kvst")
        quad_pack(20, 28); quad_pack(24, 30); quad_pack(28, 32); quad_pack(32, 36); quad_pack(36, 38)
        self.vm(f"""v_bfe_u32 v10, v1, 2, 3          ; a
v_and_b32 v11, 3, v1               ; r
v_lshrrev_b32 v12, 5, v1           ; hh
v_lshlrev_b32 v13, 7, v10
v_lshl_add_u32 v13, v12, 6, v13
v_lshl_add_u32 v13, v11, 4, v13
v_lshrrev_b32 v14, 1, v10
v_lshlrev_b32 v14, 8, v14          ; (a>>1)*256
v_and_b32 v10, 1, v10
v_xor_b32 v10, 1, v10
v_lshl_add_u32 v14, v10, 7, v14
v_lshl_add_u32 v14, v12, 5, v14
v_lshl_add_u32 v14, v11, 3, v14
s_mul_i32 s13, s12, 3072
s_add_u32 s13, s13, {WS_VF:#x}
buffer_store_dwordx4 v[28:31], v13, {WS}, s13 offen sc1
buffer_store_dwordx4 v[36:39], v13, {WS}, s13 offen offset:1024 sc1
buffer_store_dwordx2 v[32:33], v14, {WS}, s13 offen offset:2048 sc1""", "kvst")
        QS = f2h(20**-0.5 * 1.4426950408889634)
        quad_pack(40, 224, QS); quad_pack(44, 226, QS); quad_pack(48, 228, QS); quad_pack(52, 232, QS); quad_pack(56, 234, QS)
        self.stamp("qkv_epi", fine=True)
        self.waitvm("kvst")
        a("s_barrier")
        a(f"s_lshl_b32 s12, {S_P}, 4\ns_add_u32 s12, s12, {S_T}")
        self.flag_store(1, "s12")

    def dma160(self, srd_q, soff_sgpr, lds_sgpr, lds_const):
        return [f"s_add_u32 m0, {lds_sgpr}, {lds_const + j*1024}\ns_nop 0\nbuffer_load_dwordx4 v{240+j}, {srd_q}, {soff_sgpr} offen lds" for j in range(5)]
    def wo_dma(self, groups_per_wave, g0):
        out = []
        for gi in range(groups_per_wave):
            if gi == 0:
                pre = f"s_mul_i32 s14, {S_V}, 160\ns_add_u32 s15, {S_W}, {g0}\ns_mul_i32 s65, s15, {32*1280}\ns_add_u32 s14, s14, s65\ns_mul_i32 s15, s15, 5120\n"
            else:
                pre = f"s_add_u32 s14, s14, {4*32*1280}\n"
            l = self.dma160(SB, "s14", "s15", gi*4*5120)
            l[0] = pre + l[0]
            out += l
        return out
    def w1_dma(self, groups_per_wave, g0):
        out = []
        for gi in range(groups_per_wave):
            for jj in range(3):
                pre = ""
                if jj == 0:
                    if gi == 0:
                        pre = f"s_mul_i32 s76, {S_J}, 192\ns_add_u32 s77, {S_W}, {g0}\ns_mul_i32 s65, s77, {16*3072}\ns_add_u32 s76, s76, s65\ns_mul_i32 s77, s77, 3072\n"
                    else:
                        pre = f"s_add_u32 s76, s76, {4*16*3072}\n"
                out.append(pre + f"s_add_u32 m0, s77, {W1B + (gi*12 + jj)*1024}\ns_nop 0\nbuffer_load_dwordx4 v{245+jj}, {SC}, s76 offen lds")
        return out

    def tables_issue(self):
        a = self.a
        self.srd(SA, P_B2, 1280)
        self.srd(SC, P_B1, 3072)
        a(f"""v_lshlrev_b32 v8, 4, v0
v_mov_b32 v9, {OOB:#x}
v_cmp_gt_u32 vcc, 160, v0
s_nop 1
v_cndmask_b32 v8, v9, v8, vcc""")
        for vec in range(4):
            for kq in range(4):
                r = 16 + 16*vec + 4*kq
                self.vm(f"s_mov_b32 s14, {WS_MODP + kq*15360 + (1280 + 640*vec)*4}\nbuffer_load_dwordx4 v[{r}:{r+3}], v8, {WS}, s14 offen sc1", "tab")
        self.vm(f"""v_lshlrev_b32 v8, 3, v0
v_cmp_gt_u32 vcc, 20, v0
s_mul_i32 s14, {S_V}, 160
v_cndmask_b32 v10, v9, v8, vcc
buffer_load_dwordx2 v[80:81], v10, {SA}, s14 offen
v_cmp_gt_u32 vcc, 24, v0
s_mul_i32 s14, {S_J}, 192
v_cndmask_b32 v10, v9, v8, vcc
buffer_load_dwordx2 v[82:83], v10, {SC}, s14 offen""", "tab")

    def tables_finish(self):
        a = self.a
        self.waitvm("tab")
        for vec in range(4):
            b = 16 + 16*vec
            for e in range(4):
                a(f"""v_add_f32 v{b+e}, v{b+e}, v{b+4+e}
v_add_f32 v{b+8+e}, v{b+8+e}, v{b+12+e}
v_add_f32 v{b+e}, v{b+e}, v{b+8+e}""")
            a(f"v_cvt_pk_bf16_f32 v{b+4}, v{b}, v{b+1}\nv_cvt_pk_bf16_f32 v{b+5}, v{b+2}, v{b+3}")
            if vec != 1:
                a(f"""v_lshlrev_b32 v{b}, 16, v{b+4}
v_and_b32 v{b+1}, 0xffff0000, v{b+4}
v_lshlrev_b32 v{b+2}, 16, v{b+5}
v_and_b32 v{b+3}, 0xffff0000, v{b+5}""")
        a("""v_add_f32 v48, 1.0, v48
v_add_f32 v49, 1.0, v49
v_add_f32 v50, 1.0, v50
v_add_f32 v51, 1.0, v51
v_cvt_pk_bf16_f32 v52, v48, v49
v_cvt_pk_bf16_f32 v53, v50, v51
v_lshlrev_b32 v48, 16, v52
v_and_b32 v49, 0xffff0000, v52
v_lshlrev_b32 v50, 16, v53
v_and_b32 v51, 0xffff0000, v53""")
        a(f"""v_cmp_gt_u32 vcc, 160, v0
s_and_saveexec_b64 s[66:67], vcc
v_lshlrev_b32 v8, 3, v0
v_add_u32 v9, {PT_G2B}, v8
ds_write_b64 v9, v[52:53]
ds_write_b64 v9, v[36:37] offset:{PT_S2B - PT_G2B}
s_mul_i32 s14, {S_V}, 20
v_subrev_u32 v10, s14, v0
v_cmp_gt_u32 vcc, 20, v10
s_and_b64 exec, exec, vcc
v_lshlrev_b32 v10, 4, v10
v_add_u32 v10, {PT_GA}, v10
ds_write_b128 v10, v[16:19]
ds_write_b128 v10, v[48:51] offset:{PT_G2 - PT_GA}
ds_write_b128 v10, v[64:67] offset:{PT_GB - PT_GA}
s_mov_b64 exec, s[66:67]
v_lshlrev_b32 v84, 16, v80
v_and_b32 v85, 0xffff0000, v80
v_lshlrev_b32 v86, 16, v81
v_and_b32 v87, 0xffff0000, v81
v_lshlrev_b32 v88, 16, v82
v_and_b32 v89, 0xffff0000, v82
v_lshlrev_b32 v90, 16, v83
v_and_b32 v91, 0xffff0000, v83
v_lshlrev_b32 v8, 4, v0
v_cmp_gt_u32 vcc, 20, v0
s_and_saveexec_b64 s[66:67], vcc
v_add_u32 v9, {PT_B2}, v8
ds_write_b128 v9, v[84:87]
s_mov_b64 exec, s[66:67]
v_cmp_gt_u32 vcc, 24, v0
s_and_saveexec_b64 s[66:67], vcc
v_add_u32 v9, {PT_B1}, v8
ds_write_b128 v9, v[88:91]
s_mov_b64 exec, s[66:67]""")

    def phase_att(self):
        a = self.a
        a(f"""; ---- phase 2: attention ----
v_and_b32 v8, 1, v1
v_add_u32 v8, 1, v8
v_sub_u32 v8, {S_T}, v8
v_max_i32 v8, 0, v8
s_lshl_b32 s12, {S_P}, 4
v_add_u32 v8, s12, v8
v_lshlrev_b32 v8, 7, v8
v_add_u32 v14, {WS_FLAGS + 0x8000:#x}, v8""")
        self.tables_issue()
        self.srd(SB, P_WO, 640*1280)
        for x in self.wo_dma(4, 0): self.vm(x, "wo1")
        self.stamp("att_wodma", fine=True)
        self.tables_finish()
        self.stamp("att_tab", fine=True)
        a("""v_and_b32 v8, 31, v1
v_lshrrev_b32 v9, 5, v1
v_lshlrev_b32 v10, 2, v9
v_sub_u32 v8, v8, v10""")
        for i in range(16):
            kap = 8*(i >> 2) + (i & 3)
            a(f"v_cmp_le_i32 s[{68+2*i}:{69+2*i}], {kap}, v8")
        a("v_mov_b32 v10, 0xffff\nv_mov_b32 v11, 0xffff0000")
        for j in range(8):
            a(f"""v_cndmask_b32 v12, 0, v10, s[{68+4*j}:{69+4*j}]
v_cndmask_b32 v13, 0, v11, s[{70+4*j}:{71+4*j}]
v_or_b32 v{112+j}, v12, v13""")
        a("""v_cmp_eq_u32 vcc, 0, v9
v_mov_b32 v12, 0
s_nop 0
v_cndmask_b32 v236, v12, v228, vcc
v_cndmask_b32 v237, v12, v229, vcc
v_cndmask_b32 v238, v228, v12, vcc
v_cndmask_b32 v239, v229, v12, vcc""")
        a(f"""v_lshrrev_b32 v8, 5, v1            ; hw
v_bfe_u32 v9, v1, 2, 2             ; r
v_bfe_u32 v10, v1, 4, 1
v_and_b32 v11, 3, v1
v_lshl_add_u32 v10, v10, 2, v11    ; cc
v_lshlrev_b32 v12, 7, v8           ; hw*128
v_lshl_add_u32 v12, v9, 4, v12     ; + r*16
v_xor_b32 v13, 1, v8
v_lshlrev_b32 v13, 7, v13
v_lshl_add_u32 v13, v9, 3, v13
v_add_u32 v13, 2048, v13
v_xor_b32 v15, 1, v8
v_lshlrev_b32 v15, 7, v15
v_add_u32 v15, {2048+64}, v15
v_and_b32 v16, 1, v10
v_lshl_add_u32 v6, v16, 6, v12
v_lshrrev_b32 v16, 1, v10
v_lshl_add_u32 v6, v16, 3, v6
v_cmp_eq_u32 vcc, 4, v10
s_nop 1
v_cndmask_b32 v6, v6, v13, vcc
v_cmp_lt_u32 vcc, 4, v10
s_nop 1
v_cndmask_b32 v6, v6, v15, vcc
v_subrev_u32 v16, 2, v10
v_and_b32 v7, 1, v16
v_lshl_add_u32 v7, v7, 6, v12
v_lshrrev_b32 v16, 1, v16
v_and_b32 v16, 1, v16
v_lshl_add_u32 v7, v16, 3, v7
v_add_u32 v7, 1024, v7
v_add_u32 v13, 32, v13
v_cmp_eq_u32 vcc, 1, v10
s_nop 1
v_cndmask_b32 v7, v7, v13, vcc
v_cmp_eq_u32 vcc, 0, v10
s_nop 1
v_cndmask_b32 v7, v7, v15, vcc
v_cmp_lt_u32 vcc, 5, v10
s_nop 1
v_cndmask_b32 v7, v7, v15, vcc
s_mul_i32 s15, {S_W}, 3072
s_add_u32 s15, s15, {VB_}
v_add_u32 v4, s15, v6
v_add_u32 v5, s15, v7
s_mul_i32 s15, {S_W}, 2560
s_add_u32 s15, s15, {KB_}
v_lshl_add_u32 v6, v1, 4, s15
s_add_u32 s15, s15, 2048
v_lshl_add_u32 v7, v1, 3, s15
v_lshrrev_b32 v8, 3, v1
s_mul_i32 s15, {S_W}, 3
v_add_u32 v8, s15, v8
v_mul_u32_u24 v8, 3072, v8
v_bfe_u32 v9, v1, 1, 2
v_lshl_add_u32 v8, v9, 8, v8
v_and_b32 v9, 1, v1
v_lshl_add_u32 v8, v9, 7, v8
v_add_u32 v8, {VB_ + 2048 + 64}, v8
v_mov_b32 v10, 0x3f80
v_mov_b32 v11, 0
v_cmp_gt_u32 vcc, 24, v1
s_and_saveexec_b64 s[66:67], vcc
ds_write_b64 v8, v[10:11]
s_mov_b64 exec, s[66:67]
v_lshlrev_b32 v2, 4, v1""")
        self.stamp("att_setup", fine=True)
        self.poll("v14")
        self.stamp("att_poll")
        a(f"""s_lshl_b32 s12, {S_T}, 2
s_add_u32 s12, s12, {S_W}
s_sub_i32 s13, 8, s12
s_max_i32 s13, s13, 0""")
        for kind in ("k", "v"):
            for i in range(3):
                sz, base, lds = (2560, WS_KF, KB_) if kind == "k" else (3072, WS_VF, VB_)
                m_lo, m_hi = (0xffffffff, 0) if kind == "k" else (0x0f0f0f0f, 0x0f0f0f0f)
                self.vm(f"""s_mul_i32 s14, {S_W}, 3
s_add_u32 s14, s14, {i}
s_lshl_b32 s15, {S_T}, 2
s_add_u32 s15, s15, s14
s_sub_i32 s15, s15, 8
s_max_i32 s15, s15, 0
s_lshl_b32 s64, {S_P}, 6
s_add_u32 s15, s15, s64
s_mul_i32 s15, s15, {sz}
s_add_u32 s15, s15, {base:#x}
s_mul_i32 s14, s14, {sz}
s_add_u32 m0, s14, {lds}
s_nop 0
buffer_load_dwordx4 v2, {WS}, s15 offen sc1 lds
s_add_u32 m0, s14, {lds + 1024}
s_add_u32 s15, s15, 1024
buffer_load_dwordx4 v2, {WS}, s15 offen sc1 lds
s_add_u32 m0, s14, {lds + 2048}
s_add_u32 s15, s15, 1024
s_mov_b32 exec_lo, {m_lo:#x}
s_mov_b32 exec_hi, {m_hi:#x}
buffer_load_dwordx4 v2, {WS}, s15 offen sc1 lds
s_mov_b64 exec, -1""", kind + "dma")
        self.srd(SC, P_W1, 640*3072)
        self.touch_setup(13, 60)
        self.touch_base("s15", 120, 1, 60)
        self.vm(f"buffer_load_dword v249, v13, {SC}, s15 offen", "touch")
        self.srd(SA, P_W2, 1536*1280)
        self.touch_base("s15", 120, 0, 60)
        self.vm(f"buffer_load_dword v248, v13, {SA}, s15 offen", "touch")
        self.waitvm("kdma", "lgkmcnt(0)")
        a("s_barrier")
        self.stamp("att_kdma")
        NEG = "0xff800000"
        KR = [0, 8, 16]
        for hd in range(2):
            Qx = "v[224:227]" if hd == 0 else "v[232:235]"
            Q5 = "v[236:237]" if hd == 0 else "v[238:239]"
            VA = "v4" if hd == 0 else "v5"
            def kread(b, st):
                return [f"ds_read_b128 a[{st}:{st+3}], v6 offset:{b*2560 + 1024*hd}", f"ds_read_b64 a[{st+4}:{st+5}], v7 offset:{b*2560}"]
            def qk(st, dst, c="0"):
                return [f"v_mfma_f32_32x32x16_bf16 v[{dst}:{dst+15}], a[{st}:{st+3}], {Qx}, {c}",
                        f"v_mfma_f32_32x32x8bf16_1k v[{dst}:{dst+15}], a[{st+4}:{st+5}], {Q5}, v[{dst}:{dst+15}]"]
            def vread(b, st):
                return [f"ds_read_b64_tr_b16 a[{st+4*mm+2*rd}:{st+4*mm+2*rd+1}], {VA} offset:{b*3072 + mm*512 + rd*256}" for mm in range(2) for rd in range(2)]
            ks = lambda b: KR[b % 3]
            for x in kread(8, ks(8)) + kread(0, ks(0)) + kread(7, ks(7)): a(x)
            a("s_waitcnt lgkmcnt(4)")
            for x in qk(ks(8), 32): a(x)
            a("s_waitcnt lgkmcnt(2)")
            for x in qk(ks(0), 16): a(x)
            for x in kread(6, ks(6)): a(x)
            l1 = self.lab("s1")
            a(f"s_nop 7\ns_nop 4\ns_cmp_eq_u32 s13, 0\ns_cbranch_scc1 {l1}")
            for i in range(16): a(f"v_mov_b32 v{16+i}, {NEG}")
            a(f"{l1}:")
            for i in range(16):
                a(f"v_cndmask_b32 v{48+i}, v{16+i}, v{32+i}, s[{68+2*i}:{69+2*i}]")
            a("s_waitcnt lgkmcnt(2)")
            for x in qk(ks(7), 16): a(x)
            a("v_max3_f32 v8, v48, v49, v50")
            for i in range(3, 15, 2):
                a(f"v_max3_f32 v8, v8, v{48+i}, v{49+i}")
            a("v_max_f32 v8, v8, v63")
            ld = self.lab("p1d")
            for b in range(7, 0, -1):
                cur = 16 if (7 - b) % 2 == 0 else 32
                nxt = 48 - cur
                a(f"s_cmp_gt_u32 s13, {b}\ns_cbranch_scc1 {ld}")
                if b - 2 >= 1:
                    for x in kread(b-2, ks(b-2)): a(x)
                if b > 1:
                    a(f"s_waitcnt lgkmcnt({2 if b-2 >= 1 else 0})")
                    m = qk(ks(b-1), nxt)
                    a(m[0])
                    for i in range(0, 8, 2): a(f"v_max3_f32 v8, v8, v{cur+i}, v{cur+i+1}")
                    a(m[1])
                    for i in range(8, 16, 2): a(f"v_max3_f32 v8, v8, v{cur+i}, v{cur+i+1}")
                else:
                    a("s_nop 7\ns_nop 3")
                    for i in range(0, 16, 2): a(f"v_max3_f32 v8, v8, v{cur+i}, v{cur+i+1}")
            a(f"{ld}:")
            self.stamp(f"att_p1_{hd}", fine=True)
            if hd == 0:
                self.waitvm("vdma")
                a("s_barrier")
            a("s_waitcnt lgkmcnt(0)")
            for x in kread(7, ks(7)) + vread(8, 96) + vread(0, 104) + kread(6, ks(6)): a(x)
            a(f"""v_mov_b32 v9, v8
s_nop 1
v_permlane32_swap_b32 v8, v9
v_max_f32 v8, v8, v9
v_sub_f32 v9, 0, v8""")
            for i in range(16): a(f"v_mov_b32 v{64+i}, v9")
            a("s_waitcnt lgkmcnt(10)")
            m = qk(ks(7), 16, "v[64:79]")
            a(m[0])
            for i in range(16):
                a(f"v_add_f32 v{48+i}, v{48+i}, v9")
                if i == 7: a(m[1])
            for i in range(16):
                a(f"v_exp_f32 v{48+i}, v{48+i}")
            for j in range(8):
                a(f"v_cvt_pk_bf16_f32 v{80+j}, v{48+2*j}, v{49+2*j}")
            for j in range(8):
                a(f"v_and_b32 v{88+j}, v{112+j}, v{80+j}")
            a("s_waitcnt lgkmcnt(2)")
            a(f"v_mfma_f32_32x32x16_bf16 v[96:111], a[96:99], v[88:91], 0")
            for j in range(4):
                a(f"v_xor_b32 v{80+j}, v{80+j}, v{88+j}")
            a(f"v_mfma_f32_32x32x16_bf16 v[96:111], a[100:103], v[92:95], v[96:111]")
            for j in range(4, 8):
                a(f"v_xor_b32 v{80+j}, v{80+j}, v{88+j}")
            l2 = self.lab("v0")
            a(f"s_cmp_eq_u32 s13, 0\ns_cbranch_scc0 {l2}")
            a(f"v_mfma_f32_32x32x16_bf16 v[96:111], a[104:107], v[80:83], v[96:111]")
            a(f"v_mfma_f32_32x32x16_bf16 v[96:111], a[108:111], v[84:87], v[96:111]")
            a(f"{l2}:")
            lend = self.lab("p2e"); lfl = [self.lab("fl0"), self.lab("fl1")]
            pv = lambda b: [f"v_mfma_f32_32x32x16_bf16 v[96:111], a[{96+8*(b%2)}:{99+8*(b%2)}], v[{80+8*(b%2)}:{83+8*(b%2)}], v[96:111]",
                            f"v_mfma_f32_32x32x16_bf16 v[96:111], a[{100+8*(b%2)}:{103+8*(b%2)}], v[{84+8*(b%2)}:{87+8*(b%2)}], v[96:111]"]
            for b in range(7, 0, -1):
                cur = 16 if (7 - b) % 2 == 0 else 32
                nxt = 48 - cur
                pst = 80 + 8*(b % 2)
                vst = 96 + 8*(b % 2)
                tgt = lend if b == 7 else lfl[(b+1) % 2]
                a(f"s_cmp_gt_u32 s13, {b}\ns_cbranch_scc1 {tgt}")
                mf = (pv(b+1) if b < 7 else []) + (qk(ks(b-1), nxt, "v[64:79]") if b > 1 else [])
                a("s_waitcnt lgkmcnt(0)")
                lds = vread(b, vst) + (kread(b-2, ks(b-2)) if b - 2 >= 1 else [])
                va = []
                for i in range(16):
                    va.append(f"v_exp_f32 v{cur+i}, v{cur+i}")
                    if i % 2 == 1 and i >= 3:
                        j = (i - 3)//2
                        va.append(f"v_cvt_pk_bf16_f32 v{pst+j}, v{cur+2*j}, v{cur+2*j+1}")
                va.append(f"v_cvt_pk_bf16_f32 v{pst+7}, v{cur+14}, v{cur+15}")
                vi = li = 0
                for k, mm in enumerate(mf):
                    a(mm)
                    for _ in range(3):
                        if vi < len(va): a(va[vi]); vi += 1
                    if k >= len(mf) - 2 or len(mf) <= 2:
                        for _ in range(3):
                            if li < len(lds): a(lds[li]); li += 1
                while li < len(lds): a(lds[li]); li += 1
                while vi < len(va): a(va[vi]); vi += 1
            a(f"{lfl[1]}:\ns_waitcnt lgkmcnt(0)")
            for x in pv(1): a(x)
            a(f"s_branch {lend}\n{lfl[0]}:\ns_waitcnt lgkmcnt(0)")
            for x in pv(0): a(x)
            a(f"{lend}:\ns_nop 7\ns_nop 7")
            self.stamp(f"att_p2_{hd}", fine=True)
            lreg = 104 if hd == 0 else 96
            a(f"""v_mov_b32 v8, v{lreg}
v_mov_b32 v9, v{lreg}
s_nop 1
v_permlane32_swap_b32 v8, v9
s_nop 1
v_rcp_f32 v8, v{9 if hd == 0 else 8}
s_nop 0""")
            for i in range(12):
                a(f"v_mul_f32 v{96+i}, v8, v{96+i}")
            d0 = 120 if hd == 0 else 126
            for j in range(6):
                a(f"v_cvt_pk_bf16_f32 v{d0+j}, v{96+2*j}, v{97+2*j}")
        self.vm(f"""v_lshrrev_b32 v9, 5, v1
v_cmp_eq_u32 vcc, 1, v9
v_and_b32 v10, 15, v1
v_bfe_u32 v11, v1, 4, 1
v_cndmask_b32 v124, v124, v126, vcc
v_cndmask_b32 v125, v125, v127, vcc
s_lshl_b32 s14, s12, 1
v_add_u32 v11, s14, v11
v_mul_u32_u24 v11, 20480, v11
v_lshl_add_u32 v11, v10, 4, v11
v_lshl_add_u32 v12, v9, 8, v11
s_lshl_b32 s14, {S_P}, 10
s_add_u32 s14, s14, {WS_OF:#x}
buffer_store_dwordx4 v[120:123], v12, {WS}, s14 offen sc1
buffer_store_dwordx4 v[128:131], v12, {WS}, s14 offen offset:512 sc1
s_and_b32 s15, {S_P}, 1
v_xor_b32 v9, s15, v9
v_lshl_add_u32 v11, v9, 3, v11
s_lshr_b32 s14, {S_P}, 2
s_add_u32 s14, s14, 16
s_lshl_b32 s14, s14, 10
s_and_b32 s15, {S_P}, 3
s_lshl_b32 s15, s15, 8
s_add_u32 s14, s14, s15
s_add_u32 s14, s14, {WS_OF:#x}
buffer_store_dwordx2 v[124:125], v11, {WS}, s14 offen sc1""", "ost")
        self.stamp("att_done", fine=True)
        self.waitvm("ost")
        a(f"""s_barrier
s_lshl_b32 s12, {S_P}, 4
s_add_u32 s12, s12, {S_T}""")
        self.flag_store(2, "s12")

    def phase_wo(self):
        a = self.a
        SCR = 0
        a("; ---- phase 3: W_o ----")
        for x in self.wo_dma(1, 16): self.vm(x, "wo2")
        a(f"""v_and_b32 v8, 15, v1
v_lshlrev_b32 v8, 4, v8
s_lshr_b32 s12, {S_U}, 1
v_add_u32 v8, s12, v8
v_lshlrev_b32 v8, 7, v8
v_add_u32 v14, {WS_FLAGS + 2*0x8000:#x}, v8
s_and_b32 s12, {S_W}, 1
s_lshl_b32 s12, s12, 1
s_lshl_b32 s13, {S_U}, 2
s_add_u32 s12, s12, s13
s_lshr_b32 s13, {S_W}, 1
s_add_u32 {S_TGF}, s12, s13
s_xor_b32 s13, s13, 1
s_add_u32 {S_TG1}, s12, s13""")
        self.srd(SA, P_X, 2048*1280)
        a(f"""v_and_b32 v8, 15, v1
s_lshl_b32 s12, {S_TGF}, 4
v_add_u32 v8, s12, v8
v_mul_u32_u24 v8, 1280, v8
v_lshrrev_b32 v9, 4, v1
v_lshl_add_u32 v15, v9, 3, v8     ; row*1280 + q*8
s_mul_i32 s12, {S_V}, 160""")
        for j in range(5):
            self.vm(f"buffer_load_dwordx2 v[{104+2*j}:{105+2*j}], v15, {SA}, s12 offen offset:{32*j}", "xt")
        for x in self.w1_dma(4, 24): self.vm(x, "w1a")
        a(f"""v_lshrrev_b32 v8, 4, v1            ; q
v_bfe_u32 v9, v1, 2, 2             ; r
v_and_b32 v10, 3, v1
v_lshlrev_b32 v10, 3, v10          ; c*8
s_lshr_b32 s13, {S_W}, 1
s_mul_i32 s13, s13, 51200
v_add_u32 v10, s13, v10
v_and_b32 v11, 1, v8               ; q&1
v_lshrrev_b32 v12, 1, v8
v_mul_u32_u24 v12, 24, v12
v_lshl_add_u32 v12, v11, 2, v12
v_add_u32 v12, v12, v9
v_mul_u32_u24 v12, 160, v12
v_add_u32 v4, v12, v10             ; F0 base
v_mul_u32_u24 v12, 40, v8
v_add_u32 v12, v12, v9
v_add_u32 v12, 16, v12
v_lshl_add_u32 v13, v11, 2, v12
v_mul_u32_u24 v13, 160, v13
v_add_u32 v5, v13, v10
v_xor_b32 v11, 1, v11
v_lshl_add_u32 v13, v11, 2, v12
v_mul_u32_u24 v13, 160, v13
v_add_u32 v6, v13, v10
v_lshlrev_b32 v2, 4, v1""")
        self.stamp("wo_pre", fine=True)
        self.poll("v14", drain="wo2")
        self.stamp("wo_poll")
        a(f"""s_lshr_b32 s13, {S_W}, 1
s_mul_i32 s12, {S_TGF}, 20480
s_add_u32 s12, s12, {WS_OF:#x}
s_mul_i32 s14, {S_TG1}, 20480
s_add_u32 s14, s14, {WS_OF:#x}
s_lshl_b32 s15, s13, 13
s_add_u32 s64, s12, s15
s_add_u32 s65, s14, s15
s_lshl_b32 s15, s13, 11
s_add_u32 s15, s15, 16384
s_add_u32 s12, s12, s15
s_add_u32 s14, s14, s15""")
        def oload(sl):
            out = ""
            for u in range(2):
                st = (u*10 + sl)*4
                if sl < 8:
                    so = "s64" if u == 0 else "s65"
                    if sl == 4: out += f"s_add_u32 {so}, {so}, 4096\n"
                    out += f"buffer_load_dwordx4 a[{st}:{st+3}], v2, {WS}, {so} offen offset:{(sl%4)*1024} sc1\n"
                else:
                    so = "s12" if u == 0 else "s14"
                    out += f"buffer_load_dwordx4 a[{st}:{st+3}], v2, {WS}, {so} offen offset:{(sl-8)*1024} sc1\n"
            return out
        for sl in range(10): self.vm(oload(sl), f"o{sl}")
        def aread(sl):
            st = 16 + 20*(sl % 2)
            out = []
            for j in range(5):
                for rd in range(2):
                    if sl < 8:
                        out.append(f"ds_read_b64_tr_b16 v[{st+4*j+2*rd}:{st+4*j+2*rd+1}], v4 offset:{sl*6400 + rd*1280 + j*32}")
                    else:
                        out.append(f"ds_read_b64_tr_b16 v[{st+4*j+2*rd}:{st+4*j+2*rd+1}], v{5+rd} offset:{(sl-8)*25600 + j*32}")
            return out
        for x in aread(0): a(x)
        for sl in range(10):
            nxt = aread(sl+1) if sl < 9 else []
            self.waitvm(f"o{sl}", "lgkmcnt(0)")
            st = 16 + 20*(sl % 2)
            ni = 0
            for j in range(5):
                for u in range(2):
                    acc = 64 + (u*5 + j)*4
                    b = (u*10 + sl)*4
                    c = f"v[{acc}:{acc+3}]" if sl else "0"
                    a(f"v_mfma_f32_16x16x32_bf16 v[{acc}:{acc+3}], v[{st+4*j}:{st+4*j+3}], a[{b}:{b+3}], {c}")
                    if ni < len(nxt): a(nxt[ni]); ni += 1
        self.stamp("wo_main")
        a(f"""s_mul_i32 s12, {S_W}, 5120
s_add_u32 s12, s12, {SCR}
v_add_u32 v8, s12, v2
s_xor_b32 s12, {S_W}, 2
s_mul_i32 s12, s12, 5120
s_add_u32 s12, s12, {SCR}
v_add_u32 v9, s12, v2
v_lshrrev_b32 v10, 4, v1
v_lshlrev_b32 v11, 4, v10
v_add_u32 v11, {PT_GA}, v11
v_lshlrev_b32 v12, 3, v10
s_mul_i32 s12, {S_V}, 160
s_add_u32 s12, s12, {PT_G2B}
v_add_u32 v12, s12, v12
s_barrier""")
        for j in range(5):
            a(f"ds_write_b128 v8, v[{84+4*j}:{87+4*j}] offset:{1024*j}")
        for j in range(5):
            a(f"ds_read_b128 v[{36+4*j}:{39+4*j}], v11 offset:{64*j}")
        for j in range(5):
            a(f"ds_read_b128 v[{132+4*j}:{135+4*j}], v11 offset:{PT_G2 - PT_GA + 64*j}")
        a("s_waitcnt lgkmcnt(10)\ns_barrier")
        for j in range(5):
            a(f"ds_read_b128 v[{16+4*j}:{19+4*j}], v9 offset:{1024*j}")
        for j in range(5):
            a(f"ds_read_b64 v[{152+2*j}:{153+2*j}], v12 offset:{32*j}")
            a(f"ds_read_b64 v[{162+2*j}:{163+2*j}], v12 offset:{PT_S2B - PT_G2B + 32*j}")
        self.waitvm("xt", "lgkmcnt(15)")
        for j in range(5):
            for d in range(2):
                x = 104 + 2*j + d
                a(f"""v_lshlrev_b32 v{172+4*j+2*d}, 16, v{x}
v_and_b32 v{172+4*j+2*d+1}, 0xffff0000, v{x}
v_fmac_f32 v{172+4*j+2*d}, v{36+4*j+2*d}, v{64+4*j+2*d}
v_fmac_f32 v{172+4*j+2*d+1}, v{36+4*j+2*d+1}, v{64+4*j+2*d+1}""")
        a("s_waitcnt lgkmcnt(10)")
        for j in range(5):
            for d in range(2):
                u0, u1 = 172+4*j+2*d, 172+4*j+2*d+1
                a(f"""v_fmac_f32 v{u0}, v{36+4*j+2*d}, v{16+4*j+2*d}
v_fmac_f32 v{u1}, v{36+4*j+2*d+1}, v{16+4*j+2*d+1}
v_cvt_pk_bf16_f32 v{214+2*j+d}, v{u0}, v{u1}
v_mul_f32 v{u0}, v{u0}, v{132+4*j+2*d}
v_mul_f32 v{u1}, v{u1}, v{132+4*j+2*d+1}
v_cvt_pk_bf16_f32 v{84+2*j+d}, v{u0}, v{u1}""")
        self.vm(f"""s_lshr_b32 s12, {S_TGF}, 1            ; tb
s_and_b32 s13, {S_TGF}, 1
s_lshl_b32 s13, s13, 4
v_and_b32 v8, 15, v1
v_add_u32 v8, s13, v8              ; tok32
v_lshrrev_b32 v13, 1, v10
v_and_b32 v14, 1, v10
v_lshlrev_b32 v15, 4, v8
v_lshl_add_u32 v56, v13, 10, v15
v_lshl_add_u32 v56, v14, 9, v56
v_lshl_add_u32 v57, v13, 9, v15
v_lshl_add_u32 v57, v14, 3, v57
s_mul_i32 s13, s12, 40
s_mul_i32 s14, {S_V}, 5
s_add_u32 s13, s13, s14
s_lshl_b32 s13, s13, 10
s_add_u32 s13, s13, {WS_UF:#x}
buffer_store_dwordx4 v[84:87], v56, {WS}, s13 offen sc1
buffer_store_dwordx4 v[88:91], v56, {WS}, s13 offen offset:2048 sc1
s_add_u32 s13, s13, 4096
buffer_store_dwordx2 v[92:93], v57, {WS}, s13 offen sc1""", "ust")
        a("""s_waitcnt lgkmcnt(0)
v_mov_b32 v58, 0x3f803f80""")
        for k in range(6): a(f"v_mov_b32 v{96+k}, 0")
        for jd in range(10):
            up, tp = 214 + jd, 84 + jd
            a(f"""v_dot2_f32_bf16 v96, v{up}, v58, v96
v_dot2_f32_bf16 v97, v{up}, v{up}, v97
v_dot2_f32_bf16 v98, v{tp}, v58, v98
v_dot2_f32_bf16 v99, v{tp}, v{tp}, v99
v_dot2_f32_bf16 v100, v{tp}, v{152+jd}, v100
v_dot2_f32_bf16 v101, v{tp}, v{162+jd}, v101""")
        self.vm(f"""v_mov_b32 v102, 0
s_nop 2
v_permlane32_swap_b32 v96, v97
v_permlane32_swap_b32 v98, v99
v_permlane32_swap_b32 v100, v101
v_add_f32 v96, v96, v97
v_add_f32 v98, v98, v99
v_add_f32 v100, v100, v101
v_lshlrev_b32 v15, 5, v8
v_lshl_add_u32 v15, v10, 2, v15
v_permlane16_swap_b32 v96, v98
v_permlane16_swap_b32 v100, v102
s_lshl_b32 s13, s12, 3
s_add_u32 s13, s13, {S_V}
s_lshl_b32 s13, s13, 10
s_add_u32 s13, s13, {WS_ST:#x}
v_add_f32 v96, v96, v98
v_add_f32 v100, v100, v102
buffer_store_dword v96, v15, {WS}, s13 offen sc1
buffer_store_dword v100, v15, {WS}, s13 offen offset:16 sc1""", "ust")
        dma = self.w1_dma(6, 0)
        self.stamp("wo_epi", fine=True)
        self.waitvm("ust")
        a(f"""s_barrier
s_lshl_b32 s12, {S_U}, 3
s_add_u32 s12, s12, {S_V}""")
        self.flag_store(3, "s12")
        self.stamp("wo_flag", fine=True)
        for x in dma: self.vm(x, "w1b")

    def phase_w1(self):
        a = self.a
        a("; ---- phase 4: W1 ----")
        a(f"""v_lshrrev_b32 v8, 5, v1            ; h
v_bfe_u32 v9, v1, 2, 2             ; r
v_bfe_u32 v10, v1, 4, 1
v_and_b32 v11, 3, v1
v_lshl_add_u32 v10, v10, 2, v11    ; c'
v_lshlrev_b32 v10, 3, v10
v_add_u32 v10, {W1B}, v10
v_lshl_add_u32 v11, v8, 2, v9
v_mul_u32_u24 v11, 192, v11
v_add_u32 v4, v11, v10
v_add_u32 v5, 61440, v4
v_lshl_add_u32 v11, v8, 3, v9
v_mul_u32_u24 v11, 192, v11
v_add_u32 v6, v11, v10
v_add_u32 v7, 61440, v6""")
        def aoff(s, t, rd):
            Vp, i = divmod(s, 5)
            hi = Vp >= 4
            Vl = Vp - 4 if hi else Vp
            if i < 4:
                return (f"v{5 if hi else 4}", (80*Vl + 32*(i >> 1) + 8*(i & 1) + 16*rd)*192 + 64*t)
            return (f"v{7 if hi else 6}", (80*Vl + 64 + 4*rd)*192 + 64*t)
        a(f"""v_mul_u32_u24 v8, 20, v1
v_add_u32 v8, {PT_G2B}, v8""")
        for d in range(5):
            a(f"ds_read_b32 v{16+d}, v8 offset:{4*d}\nds_read_b32 v{24+d}, v8 offset:{PT_S2B - PT_G2B + 4*d}")
        a("v_mov_b32 v58, 0x3f803f80")
        for k in range(5): a(f"v_mov_b32 v{148+k}, 0")
        a("s_waitcnt lgkmcnt(0)")
        for d in range(5):
            a(f"""v_dot2_f32_bf16 v148, v{16+d}, v58, v148
v_dot2_f32_bf16 v149, v{16+d}, v{16+d}, v149
v_dot2_f32_bf16 v150, v{16+d}, v{24+d}, v150
v_dot2_f32_bf16 v151, v{24+d}, v58, v151
v_dot2_f32_bf16 v152, v{24+d}, v{24+d}, v152""")
        for ror in (1, 2, 4, 8):
            for k in range(5):
                a(f"v_add_f32_dpp v{148+k}, v{148+k}, v{148+k} row_ror:{ror} row_mask:0xf bank_mask:0xf")
        for k in range(5): a(f"v_mov_b32 v{16+k}, v{148+k}")
        for k in range(5): a(f"v_permlane16_swap_b32 v{148+k}, v{16+k}")
        for k in range(5): a(f"v_add_f32 v{148+k}, v{148+k}, v{16+k}")
        for k in range(5): a(f"v_mov_b32 v{16+k}, v{148+k}")
        for k in range(5): a(f"v_permlane32_swap_b32 v{148+k}, v{16+k}")
        for k in range(5): a(f"v_add_f32 v{148+k}, v{148+k}, v{16+k}")
        a(f"""v_and_b32 v8, 15, v1               ; col
v_lshrrev_b32 v9, 4, v1            ; G
v_xor_b32 v10, v8, v9
v_and_b32 v10, 1, v10
v_lshrrev_b32 v11, 1, v8           ; vec
v_cmp_eq_u32 vcc, 0, v10
v_cmp_gt_u32 s[66:67], 2, v11
s_nop 1
s_and_b64 s[66:67], s[66:67], vcc
v_mov_b32 v12, 0
v_mov_b32 v13, -1
v_cndmask_b32 v104, v12, v13, s[66:67]     ; and-mask
v_cmp_eq_u32 s[66:67], 2, v11
s_nop 1
s_and_b64 s[66:67], s[66:67], vcc
v_mov_b32 v13, 0x3f803f80
v_cndmask_b32 v105, v12, v13, s[66:67]     ; or-constant
v_and_b32 v11, 1, v11
v_mul_u32_u24 v11, {PT_S2B - PT_G2B}, v11
v_lshrrev_b32 v9, 1, v9            ; h
v_lshl_add_u32 v106, v9, 3, v11
v_add_u32 v106, {PT_G2B}, v106
v_lshl_add_u32 v107, v9, 4, v11
v_add_u32 v107, {PT_G2B}, v107""")
        self.waitvm("w1b")
        a("s_barrier")
        self.stamp("w1_wland")
        labs = [self.lab(f"gsc{w}") for w in range(4)]
        lend = self.lab("gsce")
        for w in range(1, 4):
            a(f"s_cmp_eq_u32 {S_W}, {w}\ns_cbranch_scc1 {labs[w]}")
        for w in range(4):
            a(f"{labs[w]}:")
            def rd_(si):
                s = 10*w + si
                st = 16 + 16*(si % 2)
                Vp, i = divmod(s, 5)
                out = []
                if i < 4:
                    k0 = 80*Vp + 32*(i >> 1) + 8*(i & 1)
                    out += [f"ds_read_b64 v[{st+12}:{st+13}], v106 offset:{2*k0}", f"ds_read_b64 v[{st+14}:{st+15}], v106 offset:{2*(k0+16)}"]
                else:
                    k0 = 80*Vp + 64
                    out += [f"ds_read_b64 v[{st+12}:{st+13}], v107 offset:{2*k0}", f"ds_read_b64 v[{st+14}:{st+15}], v107 offset:{2*(k0+4)}"]
                for t in range(3):
                    for rd in range(2):
                        b, off = aoff(s, t, rd)
                        out.append(f"ds_read_b64_tr_b16 v[{st+4*t+2*rd}:{st+4*t+2*rd+1}], {b} offset:{off}")
                return out
            for x in rd_(0): a(x)
            for si in range(10):
                st = 16 + 16*(si % 2)
                if si < 9:
                    for x in rd_(si+1): a(x)
                    a("s_waitcnt lgkmcnt(8)")
                else:
                    a("s_waitcnt lgkmcnt(0)")
                for d in range(4):
                    a(f"v_and_or_b32 v{st+12+d}, v{st+12+d}, v104, v105")
                for t in range(3):
                    c = f"v[{48+4*t}:{51+4*t}]" if si else "0"
                    a(f"v_mfma_f32_16x16x32_bf16 v[{48+4*t}:{51+4*t}], v[{st+4*t}:{st+4*t+3}], v[{st+12}:{st+15}], {c}")
            if w < 3: a(f"s_branch {lend}")
        a(f"""{lend}:
v_and_b32 v8, 15, v1
v_lshrrev_b32 v9, 4, v1
v_lshrrev_b32 v10, 1, v8
v_mul_u32_u24 v10, 384, v10
v_and_b32 v11, 1, v8
v_lshl_add_u32 v10, v11, 6, v10
v_lshl_add_u32 v10, v9, 4, v10
s_mul_i32 s12, {S_W}, 1152
s_add_u32 s12, s12, {PT_PART}
v_add_u32 v10, s12, v10
v_cmp_gt_u32 vcc, 6, v8
s_and_saveexec_b64 s[66:67], vcc
s_nop 4""")
        for t in range(3):
            a(f"ds_write_b128 v10, v[{48+4*t}:{51+4*t}] offset:{128*t}")
        a(f"""s_mov_b64 exec, s[66:67]
s_waitcnt lgkmcnt(0)
s_barrier
v_lshlrev_b32 v8, 4, v0
v_cmp_gt_u32 vcc, 72, v0
s_and_saveexec_b64 s[66:67], vcc
v_add_u32 v9, {PT_PART}, v8
ds_read_b128 v[16:19], v9
ds_read_b128 v[20:23], v9 offset:1152
ds_read_b128 v[24:27], v9 offset:2304
ds_read_b128 v[28:31], v9 offset:3456
s_waitcnt lgkmcnt(0)""")
        for e in range(4):
            a(f"v_add_f32 v{16+e}, v{16+e}, v{20+e}\nv_add_f32 v{24+e}, v{24+e}, v{28+e}\nv_add_f32 v{16+e}, v{16+e}, v{24+e}")
        a(f"""v_add_u32 v9, {PT_VEC}, v8
ds_write_b128 v9, v[16:19]
s_mov_b64 exec, s[66:67]""")
        a(f"""v_and_b32 v8, 15, v1
s_lshl_b32 s12, {S_T1}, 4
v_add_u32 v8, s12, v8
v_lshlrev_b32 v8, 7, v8
v_add_u32 v14, {WS_FLAGS + 3*0x8000:#x}, v8
v_lshlrev_b32 v2, 4, v1""")
        self.stamp("w1_gsc", fine=True)
        self.poll("v14", extra="lgkmcnt(0)")
        self.stamp("w1_poll")
        a(f"""s_lshl_b32 s12, {S_T1}, 2
s_add_u32 s12, s12, {S_W}          ; tb
s_mul_i32 s13, s12, 40960
s_add_u32 s13, s13, {WS_UF:#x}""")
        PF = 8
        def uload(s):
            pre = "s_add_u32 s13, s13, 4096\n" if (s % 4 == 0 and s > 0) else ""
            return pre + f"buffer_load_dwordx4 a[{4*s}:{4*s+3}], v2, {WS}, s13 offen offset:{(s%4)*1024} sc1"
        for s in range(PF): self.vm(uload(s), f"u{s}")
        a(f"""s_lshl_b32 s14, s12, 13
s_add_u32 s14, s14, {WS_ST:#x}
v_and_b32 v8, 31, v1
v_lshlrev_b32 v8, 5, v8
v_lshrrev_b32 v9, 5, v1
v_lshl_add_u32 v8, v9, 4, v8""")
        for Vp in range(8):
            pre = "s_add_u32 s14, s14, 4096\n" if Vp == 4 else ""
            self.vm(pre + f"buffer_load_dwordx4 v[{116+4*Vp}:{119+4*Vp}], v8, {WS}, s14 offen offset:{(Vp%4)*1024} sc1", "st")
        def aread(s):
            st = 16 + 12*(s % 3)
            out = []
            for t in range(3):
                for rd in range(2):
                    b, off = aoff(s, t, rd)
                    out.append(f"ds_read_b64_tr_b16 v[{st+4*t+2*rd}:{st+4*t+2*rd+1}], {b} offset:{off}")
            return out
        for x in aread(0) + aread(1): a(x)
        self.srd(SA, P_W2, 1536*1280)
        self.touch_setup(13, 60)
        self.touch_base("s15", 120, 1, 60)
        touches = [f"buffer_load_dword v248, v13, {SA}, s15 offen"]
        nxt_u = PF
        for s in range(40):
            self.waitvm(f"u{s}", f"lgkmcnt({6 if s < 39 else 0})")
            nxt = aread(s+2) if s + 2 < 40 else []
            st = 16 + 12*(s % 3)
            for t in range(3):
                c = f"v[{64+16*t}:{79+16*t}]" if s else "0"
                a(f"v_mfma_f32_32x32x16_bf16 v[{64+16*t}:{79+16*t}], v[{st+4*t}:{st+4*t+3}], a[{4*s}:{4*s+3}], {c}")
                for x in nxt[2*t:2*t+2]: a(x)
                if t == 0 and nxt_u < 40:
                    self.vm(uload(nxt_u), f"u{nxt_u}"); nxt_u += 1
                elif t == 0 and touches:
                    self.vm(touches.pop(0), "touch")
        self.stamp("w1_main")
        self.waitvm("st")
        for e in range(4):
            a(f"""v_add_f32 v{116+e}, v{116+e}, v{120+e}
v_add_f32 v{124+e}, v{124+e}, v{128+e}
v_add_f32 v{132+e}, v{132+e}, v{136+e}
v_add_f32 v{140+e}, v{140+e}, v{144+e}
v_add_f32 v{116+e}, v{116+e}, v{124+e}
v_add_f32 v{132+e}, v{132+e}, v{140+e}
v_add_f32 v{116+e}, v{116+e}, v{132+e}""")
        for e in range(4): a(f"v_mov_b32 v{120+e}, v{116+e}")
        for e in range(4): a(f"v_permlane32_swap_b32 v{116+e}, v{120+e}")
        inv = f2h(1/640); eps = f2h(1e-5)
        a(f"""v_mul_f32 v124, {inv}, v116                 ; m1
v_mul_f32 v125, {inv}, v118
v_fma_f32 v125, -v124, v124, v125
v_max_f32 v125, 0, v125
v_add_f32 v125, {eps}, v125
v_rsq_f32 v125, v125                        ; r1
v_fma_f32 v126, -v124, v148, v117           ; P3 - m1*Sg
v_fma_f32 v126, v126, v125, v151            ; sum h2
v_mul_f32 v126, {inv}, v126                 ; m2
v_mul_f32 v127, v124, v149                  ; m1*Sg2
v_fma_f32 v127, -2.0, v120, v127            ; m1*Sg2 - 2*P5
v_fma_f32 v127, v124, v127, v119            ; P4 - 2 m1 P5 + m1^2 Sg2
v_mul_f32 v127, v127, v125
v_fma_f32 v128, -v124, v150, v122           ; P6 - m1*Sgs
v_fma_f32 v127, 2.0, v128, v127
v_fma_f32 v127, v127, v125, v152            ; sum h2^2
v_mul_f32 v127, {inv}, v127
v_fma_f32 v127, -v126, v126, v127
v_max_f32 v127, 0, v127
v_add_f32 v127, {eps}, v127
v_rsq_f32 v127, v127                        ; r2
s_nop 0
v_mul_f32 v116, v125, v127                  ; A
v_mul_f32 v117, v116, v124
v_sub_f32 v117, 0, v117                     ; B
v_mov_b32 v118, v127                        ; C
v_mul_f32 v119, v127, v126
v_sub_f32 v119, 0, v119                     ; D""")
        kk = 2*0.7978845608028654*1.4426950408889634
        a(f"""v_lshrrev_b32 v8, 5, v1
v_lshlrev_b32 v9, 4, v8
v_add_u32 v9, {PT_B1}, v9          ; + h*16
v_and_b32 v10, 15, v1
v_bfe_u32 v11, v1, 4, 1
s_lshl_b32 s13, s12, 1
v_add_u32 v11, s13, v11             ; tg16
v_mul_u32_u24 v11, 49152, v11
v_lshl_add_u32 v11, v10, 4, v11
v_lshl_add_u32 v11, v8, 8, v11
s_mul_i32 s13, {S_J}, 3072
s_add_u32 s13, s13, {WS_HF:#x}
s_mov_b32 s14, {f2h(-kk*0.044715)}
v_mov_b32 v60, {f2h(-kk)}""")
        def vreads(qi):
            t, i = divmod(qi, 4)
            o = 128*t + 32*i
            b = 16 + 16*(qi % 2)
            return [f"ds_read_b128 v[{b}:{b+3}], v9 offset:{PT_VEC - PT_B1 + o}", f"ds_read_b128 v[{b+4}:{b+7}], v9 offset:{PT_VEC - PT_B1 + 384 + o}",
                    f"ds_read_b128 v[{b+8}:{b+11}], v9 offset:{PT_VEC - PT_B1 + 768 + o}", f"ds_read_b128 v[{b+12}:{b+15}], v9 offset:{o}"]
        for x in vreads(0): a(x)
        for qi in range(12):
            t, i = divmod(qi, 4)
            b = 16 + 16*(qi % 2)
            if qi < 11:
                for x in vreads(qi+1): a(x)
                a("s_waitcnt lgkmcnt(4)")
            else:
                a("s_waitcnt lgkmcnt(0)")
            Z = [64 + 16*t + 4*i + e for e in range(4)]
            for e in range(4): a(f"v_fma_f32 v{Z[e]}, v116, v{Z[e]}, v{b+12+e}")
            for e in range(4): a(f"v_fmac_f32 v{Z[e]}, v117, v{b+e}")
            for e in range(4): a(f"v_fmac_f32 v{Z[e]}, v118, v{b+4+e}")
            for e in range(4): a(f"v_fmac_f32 v{Z[e]}, v119, v{b+8+e}")
            for e in range(4): a(f"v_mul_f32 v{48+e}, v{Z[e]}, v{Z[e]}")
            for e in range(4): a(f"v_fma_f32 v{48+e}, v{48+e}, s14, v60")
            for e in range(4): a(f"v_mul_f32 v{48+e}, v{Z[e]}, v{48+e}")
            for e in range(4): a(f"v_exp_f32 v{48+e}, v{48+e}")
            for e in range(4): a(f"v_add_f32 v{48+e}, 1.0, v{48+e}")
            for e in range(4): a(f"v_rcp_f32 v{48+e}, v{48+e}")
            for e in range(4): a(f"v_mul_f32 v{Z[e]}, v{Z[e]}, v{48+e}")
            d = 52 + 2*i
            a(f"v_cvt_pk_bf16_f32 v{d}, v{Z[0]}, v{Z[1]}\nv_cvt_pk_bf16_f32 v{d+1}, v{Z[2]}, v{Z[3]}")
            if i % 2 == 1:
                self.vm(f"buffer_store_dwordx4 v[{52+4*(i>>1)}:{55+4*(i>>1)}], v11, {WS}, s13 offen offset:{1024*t + 512*(i>>1)} sc1", "hst")
        self.stamp("w1_epi", fine=True)
        self.waitvm("hst")
        a(f"""s_barrier
s_lshl_b32 s12, {S_T1}, 4
s_add_u32 s12, s12, {S_J}""")
        self.flag_store(4, "s12")

    def w2_dma(self, lists):
        a = self.a
        n = len(lists[0])
        assert all(len(x) == n for x in lists)
        labs = [self.lab(f"w2d{w}") for w in range(4)]
        lend = self.lab("w2de")
        for w in range(1, 4):
            a(f"s_cmp_eq_u32 {S_W}, {w}\ns_cbranch_scc1 {labs[w]}")
        a(f"s_nop 0")
        for w in range(4):
            a(f"{labs[w]}:\ns_mul_i32 s78, {S_V}, 160\ns_mov_b32 s79, 0")
            for (kh, ph, slot) in lists[w]:
                a(f"s_add_u32 s76, s78, {(kh*24 + ph)*32*1280}")
                for x in self.dma160(SB, "s76", "s79", kh*76800 + slot*5120): a(x)
            if w < 3: a(f"s_branch {lend}")
        a(f"{lend}:")
        self.q += ["w2"]*(5*n)

    def phase_w2(self):
        a = self.a
        SCR = 0
        a("; ---- phase 5: W2 ----")
        self.srd(SB, P_W2, 1536*1280)
        g = [(kh, ph, ph) for ph in range(15) for kh in range(2)]
        g += g[:2]
        self.w2_dma([g[w::4] for w in range(4)])
        a(f"""v_and_b32 v8, 15, v1
s_lshr_b32 s12, {S_U}, 1
s_lshl_b32 s12, s12, 4
v_add_u32 v8, s12, v8
v_lshlrev_b32 v8, 7, v8
v_add_u32 v14, {WS_FLAGS + 4*0x8000:#x}, v8
v_lshrrev_b32 v8, 4, v1            ; q
v_bfe_u32 v9, v1, 2, 2             ; r
v_and_b32 v10, 3, v1
v_lshlrev_b32 v10, 3, v10
s_lshr_b32 s13, {S_W}, 1
s_mul_i32 s13, s13, 76800
v_add_u32 v10, s13, v10
v_and_b32 v11, 1, v8
v_lshrrev_b32 v12, 1, v8
v_lshlrev_b32 v12, 4, v12
v_lshl_add_u32 v12, v11, 2, v12
v_add_u32 v12, v12, v9
v_mul_u32_u24 v12, 160, v12
v_add_u32 v4, v12, v10
v_add_u32 v5, {8*5120}, v4
v_lshlrev_b32 v2, 4, v1""")
        self.stamp("w2_dmaiss", fine=True)
        self.poll("v14", drain="w2")
        self.stamp("w2_poll")
        a(f"""s_lshr_b32 s13, {S_W}, 1
s_mul_i32 s13, s13, 24576
s_add_u32 s13, s13, {WS_HF:#x}
s_mul_i32 s12, {S_TGF}, 49152
s_add_u32 s12, s12, s13
s_mul_i32 s14, {S_TG1}, 49152
s_add_u32 s14, s14, s13""")
        PF = 4
        def hload(ph):
            out = "s_add_u32 s12, s12, 4096\ns_add_u32 s14, s14, 4096\n" if (ph % 4 == 0 and ph > 0) else ""
            for u, so in ((0, "s12"), (1, "s14")):
                st = (u*24 + ph)*4
                out += f"buffer_load_dwordx4 a[{st}:{st+3}], v2, {WS}, {so} offen offset:{(ph%4)*1024} sc1\n"
            return out
        for ph in range(PF): self.vm(hload(ph), f"h{ph}")
        slot = lambda ph: ph if ph < 15 else ph - 15
        def aread(ph):
            st = 16 + 20*(ph % 2)
            sl = slot(ph)
            b, o = ("v4", sl*5120) if sl < 8 else ("v5", (sl-8)*5120)
            return [f"ds_read_b64_tr_b16 v[{st+4*j+2*rd}:{st+4*j+2*rd+1}], {b} offset:{o + rd*1280 + j*32}" for j in range(5) for rd in range(2)]
        for x in aread(0): a(x)
        nxt_h = PF
        for ph in range(24):
            if ph == 15:
                self.waitvm("w2", "lgkmcnt(0)")
                a("s_barrier")
                for x in aread(15): a(x)
            if ph in (1, 9, 15): self.stamp(f"w2_ph{ph}", fine=True)
            self.waitvm(f"h{ph}", "lgkmcnt(0)")
            nxt = aread(ph+1) if (ph < 23 and ph != 14) else []
            st = 16 + 20*(ph % 2)
            ni = 0
            for j in range(5):
                for u in range(2):
                    acc = 64 + (u*5 + j)*4
                    b = (u*24 + ph)*4
                    c = f"v[{acc}:{acc+3}]" if ph else "0"
                    a(f"v_mfma_f32_16x16x32_bf16 v[{acc}:{acc+3}], v[{st+4*j}:{st+4*j+3}], a[{b}:{b+3}], {c}")
                    if ni < len(nxt): a(nxt[ni]); ni += 1
                    if j == 1 and u == 1 and nxt_h < 24:
                        self.vm(hload(nxt_h), f"h{nxt_h}"); nxt_h += 1
            if ph == 8:
                a("s_waitcnt lgkmcnt(0)\ns_barrier")
                g = [(kh, p2, p2 - 15) for p2 in range(15, 24) for kh in range(2)]
                g += g[:2]
                self.w2_dma([g[w::4] for w in range(4)])
        self.stamp("w2_main")
        a(f"""s_mul_i32 s12, {S_W}, 5120
s_add_u32 s12, s12, {SCR}
v_add_u32 v8, s12, v2
s_xor_b32 s12, {S_W}, 2
s_mul_i32 s12, s12, 5120
s_add_u32 s12, s12, {SCR}
v_add_u32 v9, s12, v2
v_lshrrev_b32 v10, 4, v1
v_lshlrev_b32 v11, 4, v10
v_add_u32 v11, {PT_GA}, v11
s_barrier""")
        for j in range(5):
            a(f"ds_write_b128 v8, v[{84+4*j}:{87+4*j}] offset:{1024*j}")
        for j in range(5):
            a(f"ds_read_b128 v[{36+4*j}:{39+4*j}], v11 offset:{PT_B2 - PT_GA + 64*j}")
        for j in range(5):
            a(f"ds_read_b128 v[{132+4*j}:{135+4*j}], v11 offset:{PT_GB - PT_GA + 64*j}")
        self.srd(SC, P_OUT, 2048*1280)
        a(f"""v_and_b32 v8, 15, v1
s_lshl_b32 s12, {S_TGF}, 4
v_add_u32 v8, s12, v8
v_mul_u32_u24 v8, 1280, v8
v_lshl_add_u32 v15, v10, 3, v8
s_mul_i32 s12, {S_V}, 160
s_waitcnt lgkmcnt(10)
s_barrier""")
        for j in range(5):
            a(f"ds_read_b128 v[{16+4*j}:{19+4*j}], v9 offset:{1024*j}")
        a("s_waitcnt lgkmcnt(5)")
        for j in range(5):
            for e in range(4):
                a(f"v_add_f32 v{64+4*j+e}, v{64+4*j+e}, v{36+4*j+e}")
        a("s_waitcnt lgkmcnt(0)")
        for j in range(5):
            for e in range(4):
                a(f"v_add_f32 v{64+4*j+e}, v{64+4*j+e}, v{16+4*j+e}")
            for d in range(2):
                x = 214 + 2*j + d
                a(f"""v_lshlrev_b32 v56, 16, v{x}
v_and_b32 v57, 0xffff0000, v{x}
v_fmac_f32 v56, v{132+4*j+2*d}, v{64+4*j+2*d}
v_fmac_f32 v57, v{132+4*j+2*d+1}, v{64+4*j+2*d+1}
v_cvt_pk_bf16_f32 v{104+2*j+d}, v56, v57""")
            self.vm(f"buffer_store_dwordx2 v[{104+2*j}:{105+2*j}], v15, {SC}, s12 offen offset:{32*j}", "out")

    def build(self):
        a = self.a
        a.label("L_code_begin")
        self.prologue()
        self.stamp("start", real=True)
        self.stamp("t0")
        self.srd("s[72:75]", P_WQKV, 640*3840)
        self.phase0()
        self.stamp("p0_done")
        if self.stop_after >= 1:
            self.phase_qkv()
            self.stamp("qkv_pub")
        if self.stop_after >= 2:
            self.phase_att()
            self.stamp("att_pub")
        if self.stop_after >= 3:
            self.phase_wo()
            self.stamp("wo_pub")
        if self.stop_after >= 4:
            self.phase_w1()
            self.stamp("w1_pub")
        if self.stop_after >= 5:
            self.phase_w2()
            self.stamp("end")
        if self.prof:
            a("s_waitcnt vmcnt(0) lgkmcnt(0)")
            self.stamp("end", real=True)
            self.stamp_flush()
        a.label("L_end")
        a("s_endpgm")
        a.label("L_code_end")
        body = a.finish()
        hdr = open(os.path.join(os.path.dirname(os.path.abspath(__file__)), "header.txt")).read()
        return f"""{hdr}; @launch grid=(256,1,1) block=(256,1,1) lds=163840
.amdgcn_target "amdgcn-amd-amdhsa--gfx950"
.text
.globl {NAME}_kernel
.p2align 8
.type {NAME}_kernel,@function
{NAME}_kernel:
{body}
.section .rodata,"a"
.p2align 6
.amdhsa_kernel {NAME}_kernel
  .amdhsa_next_free_vgpr 512
  .amdhsa_next_free_sgpr 102
  .amdhsa_accum_offset 256
  .amdhsa_group_segment_fixed_size 0
  .amdhsa_kernarg_size 104
  .amdhsa_user_sgpr_count 2
  .amdhsa_user_sgpr_kernarg_segment_ptr 1
  .amdhsa_system_sgpr_workgroup_id_x 1
  .amdhsa_float_denorm_mode_32 3
.end_amdhsa_kernel
"""

if __name__ == "__main__":
    import argparse, json
    ap = argparse.ArgumentParser()
    ap.add_argument("-o", default=f"cdna_kernels/{NAME}.s")
    ap.add_argument("--stop", type=int, default=99)
    ap.add_argument("--prof", action="store_true")
    ap.add_argument("--opts", default="{}")
    args = ap.parse_args()
    g = G(stop_after=args.stop, prof=args.prof, opts=json.loads(args.opts))
    s = g.build()
    open(args.o, "w").write(s)
    json.dump(g.stamps, open(args.o + ".stamps.json", "w"))
    print("wrote", args.o, len(s), "bytes; nops inserted:", g.a.inserted)
```

```python
import sys, os, struct, re
sys.path.insert(0, os.path.dirname(os.path.abspath(__file__)))
from asm import Asm

NAME = "adaLN_cond__sliding_block__mixer_channel_mlp__prompt"

WS_FLAGS = 0x0
WS_MODP = 0x40000
WS_ST = 0x50000
WS_NF = 0x100000
WS_KF = 0x400000
WS_VF = 0x700000
WS_OF = 0xA00000
WS_UF = 0xD00000
WS_HF = 0x1000000
WS_TS = 0x1800000
WS_WQP = 0x2000000
WS_WOP = 0x2400000
WS_W1P = 0x2600000
WS_W2P = 0x2A00000
WS_SIZE = 0x10000000
OOB = 0x7F000000
PT = 153600
PT_GA, PT_G2, PT_GB, PT_B2, PT_B1 = PT, PT + 320, PT + 640, PT + 960, PT + 1280
PT_G2B, PT_S2B, PT_VEC, PT_PART = PT + 1664, PT + 2944, PT + 4224, PT + 5376
KB_ = 81920
VB_ = KB_ + 12*2560
PK = 128000
W1B = 30720

S_W, S_EP, S_P, S_T, S_U, S_V, S_T1, S_J = "s4", "s5", "s6", "s7", "s8", "s9", "s10", "s11"
S_TGF, S_TG1, S_R = "s42", "s43", "s3"
P_X, P_WQKV, P_WO, P_W1, P_B1, P_W2, P_B2, P_C, P_WMOD, P_OUT, P_DBG, P_WS = 16, 18, 20, 24, 26, 28, 30, 32, 34, 36, 38, 40
WS = "s[44:47]"; SA = "s[48:51]"; SB = "s[52:55]"; SC = "s[56:59]"; DBG = "s[60:63]"

def f2h(x):
    return hex(struct.unpack("<I", struct.pack("<f", x))[0])

class G:
    def __init__(self, stop_after=99, prof=False, timeout=1 << 20, opts=None):
        self.a = Asm()
        self.stop_after = stop_after
        self.prof = prof
        self.timeout = timeout
        self.nlab = 0
        self.q = []
        self.o = opts or {}
        self.stamps = []
        self.att_slow = []
    def lab(self, s):
        self.nlab += 1
        return f"L_{s}_{self.nlab}"
    def srd(self, q, ptr, size):
        b = int(q[2:q.index(":")])
        self.a(f"""s_mov_b32 s{b}, s{ptr}
s_mov_b32 s{b+1}, s{ptr+1}
s_mov_b32 s{b+2}, {size:#x}
s_mov_b32 s{b+3}, 0x00020000""")
    def vm(self, text, tag="x"):
        self.a(text)
        for l in text.split("\n"):
            if l.strip().startswith(("buffer_", "global_")):
                self.q.append(tag)
    def vmn(self, tag):
        idx = [i for i, t in enumerate(self.q) if t == tag]
        if not idx:
            return None
        return len(self.q) - 1 - idx[-1]
    def waitvm(self, tag, extra=""):
        n = self.vmn(tag)
        if n is None:
            if extra: self.a(f"s_waitcnt {extra}")
            return
        last = len(self.q) - 1 - n
        self.q = self.q[last+1:]
        if n > 63:
            n = 63
        self.a(f"s_waitcnt vmcnt({n}) {extra}".strip())
    def waitall(self, extra=""):
        self.q = []
        self.a(f"s_waitcnt vmcnt(0) {extra}".strip())
    def stamp(self, name, real=False, fine=False):
        if not self.prof or (fine and not self.o.get("fine")):
            return
        if real:
            idx = {"start": 62, "end": 63}[name]
        else:
            idx = len(self.stamps); self.stamps.append(name)
            assert idx < 61
        self.a(f"""{'s_memrealtime' if (real or self.o.get('rt')) else 's_memtime'} s[100:101]
s_waitcnt lgkmcnt(0)
v_writelane_b32 v255, s100, {idx}""")
    def stamp_flush(self):
        if not self.prof:
            return
        self.a(f"""s_lshl_b32 s12, s2, 2
s_add_u32 s12, s12, {S_W}
s_lshl_b32 s12, s12, 8
s_add_u32 s12, s12, {WS_TS:#x}
v_lshlrev_b32 v254, 2, v1
buffer_store_dword v255, v254, {WS}, s12 offen""")

    def code_touch(self):
        if self.o.get("no_ct"): return
        l = self.lab("ct")
        self.a(f"""s_cmp_lg_u32 {S_W}, 3
s_cbranch_scc1 {l}
s_lshl_b32 s64, {S_R}, 4
v_and_b32 v249, 15, v1
v_add_u32 v249, s64, v249
v_lshlrev_b32 v249, 7, v249
v_min_u32 v249, L_code_end-L_code_begin-4, v249
global_load_dword v249, v249, s[22:23]
{l}:""")

    def flag_store(self, phase, idx_sgpr):
        a = self.a
        l = self.lab("fs")
        a(f"""s_cmp_lg_u32 {S_W}, 0
s_cbranch_scc1 {l}
s_lshl_b32 s64, {idx_sgpr}, 7
s_add_u32 s64, s64, {WS_FLAGS + phase*0x8000:#x}
v_mov_b32 v252, {S_EP}
v_mov_b32 v253, 0
s_mov_b64 exec, 1
buffer_store_dword v252, v253, {WS}, s64 offen sc1
s_mov_b64 exec, -1
{l}:""")
        if phase != 5: self.code_touch()

    def poll(self, vaddrs, drain=None, extra=""):
        a = self.a
        if isinstance(vaddrs, str): vaddrs = [vaddrs]
        l = self.lab("pl"); l2 = self.lab("pd")
        a(f"""s_cmp_lg_u32 {S_W}, 0
s_cbranch_scc1 {l2}
s_mov_b32 s64, 0
{l}:""")
        for i, v in enumerate(vaddrs):
            a(f"buffer_load_dword v{250+i}, {v}, {WS}, 0 offen sc1")
        a(f"""s_add_u32 s64, s64, 1
s_cmp_gt_u32 s64, {self.timeout}
s_cbranch_scc1 {l2}
s_waitcnt vmcnt(0)
v_cmp_ne_u32 vcc, {S_EP}, v250""")
        for i in range(1, len(vaddrs)):
            a(f"""v_cmp_ne_u32 s[66:67], {S_EP}, v{250+i}
s_nop 3
s_or_b64 vcc, vcc, s[66:67]""")
        a(f"""s_nop 3
s_cmp_eq_u64 vcc, 0
s_cbranch_scc0 {l}
{l2}:""")
        if drain:
            self.waitvm(drain, extra)
        elif extra:
            a(f"s_waitcnt {extra}")
        a("s_barrier")

    def touch(self, srd_q, per_wave, i, cnt, dst):
        self.vm(f"""s_mul_i32 s12, {S_R}, {4*per_wave}
s_mul_i32 s13, {S_W}, {per_wave}
s_add_u32 s12, s12, s13
s_add_u32 s12, s12, {i*cnt}
s_lshl_b32 s12, s12, 7
v_lshlrev_b32 v8, 7, v1
v_mov_b32 v9, {OOB:#x}
v_cmp_gt_u32 vcc, {cnt}, v1
s_nop 1
v_cndmask_b32 v8, v9, v8, vcc
buffer_load_dword v{dst}, v8, {srd_q}, s12 offen""", "touch")
    def touch_setup(self, reg, cnt):
        self.a(f"""v_lshlrev_b32 v{reg}, 7, v1
v_mov_b32 v9, {OOB:#x}
v_cmp_gt_u32 vcc, {cnt}, v1
s_nop 1
v_cndmask_b32 v{reg}, v9, v{reg}, vcc""")
    def touch_base(self, sreg, per_wave, i, cnt):
        self.a(f"""s_mul_i32 {sreg}, {S_R}, {4*per_wave*128}
s_mul_i32 s65, {S_W}, {per_wave*128}
s_add_u32 {sreg}, {sreg}, s65
s_add_u32 {sreg}, {sreg}, {i*cnt*128}""")

    def prologue(self):
        a = self.a
        if self.prof: a("s_memrealtime s[98:99]")
        a(f"""s_cmp_ge_u32 s2, 256
s_cbranch_scc1 L_end
s_load_dwordx16 s[16:31], s[0:1], 0
s_load_dwordx8 s[32:39], s[0:1], 64
s_load_dwordx2 s[40:41], s[0:1], 96
s_getpc_b64 s[64:65]
L_pc:
s_add_u32 s64, s64, L_code_begin-L_pc
s_addc_u32 s65, s65, -1
v_and_b32 v1, 63, v0
v_lshrrev_b32 v2, 6, v0
s_lshr_b32 {S_R}, s2, 3
v_readfirstlane_b32 {S_W}, v2
s_and_b32 s13, s2, 7
s_cmp_lg_u32 {S_W}, 3
s_cbranch_scc1 L_nopf
s_lshl_b32 s14, {S_R}, 6
v_add_u32 v3, s14, v1
v_lshlrev_b32 v3, 6, v3
v_min_u32 v3, L_code_end-L_code_begin-4, v3
global_load_dword v248, v3, s[64:65]
L_nopf:
s_lshr_b32 s14, s13, 2
s_lshl_b32 s14, s14, 3
s_and_b32 s15, {S_R}, 7
s_add_u32 {S_T}, s14, s15
s_and_b32 s14, s13, 3
s_lshl_b32 s14, s14, 2
s_lshr_b32 s15, {S_R}, 3
s_add_u32 {S_P}, s14, s15
; wo / w2: U = 4x + (r&3), V = r>>2
s_lshl_b32 s14, s13, 2
s_and_b32 s15, {S_R}, 3
s_add_u32 {S_U}, s14, s15
s_lshr_b32 {S_V}, {S_R}, 2
; w1: T1 = 2x + (r&1), j = r>>1
s_lshl_b32 s14, s13, 1
s_and_b32 s15, {S_R}, 1
s_add_u32 {S_T1}, s14, s15
s_lshr_b32 {S_J}, {S_R}, 1""")
        if self.prof:
            a("v_mov_b32 v255, 0")
        a("s_waitcnt lgkmcnt(0)\ns_mov_b32 s22, s64\ns_mov_b32 s23, s65")
        if self.prof:
            a("v_writelane_b32 v255, s98, 61")
        self.srd(WS, P_WS, WS_SIZE)
        self.srd(DBG, P_DBG, 256)
        a(f"""s_cmp_lg_u32 s2, 0
s_cbranch_scc1 L_noep
s_cmp_lg_u32 {S_W}, 0
s_cbranch_scc1 L_noep
s_memrealtime s[66:67]
s_waitcnt lgkmcnt(0)
s_or_b32 s66, s66, 1
v_mov_b32 v3, s66
v_mov_b32 v4, 0
s_mov_b64 exec, 1
buffer_store_dword v3, v4, {DBG}, 0 offen sc1
s_mov_b64 exec, -1
L_noep:""")

    def phase0(self):
        a = self.a
        self.srd(SA, P_C, 1280)
        self.srd(SB, P_WMOD, 640*7680)
        self.srd(SC, P_X, 2048*1280)
        LDS_M = 158720
        LDS_L = 159744
        a(f"""; ---- phase 0 ----
v_and_b32 v2, 7, v1
v_lshrrev_b32 v3, 3, v1
s_mul_hi_u32 s12, s2, {(2**32 + 59)//60}
s_mul_i32 s13, s12, 60
s_sub_u32 s13, s2, s13
s_mul_i32 s14, s12, 160
s_mul_i32 s15, {S_W}, 40
s_add_u32 s14, s14, s15
v_add_u32 v4, s14, v3
v_lshlrev_b32 v5, 1, v4
s_movk_i32 s15, 7680
v_mul_lo_u32 v6, v4, s15
s_lshl_b32 s15, s13, 7
v_lshl_add_u32 v7, v2, 4, s15
v_add_u32 v6, v6, v7""")
        for j in range(5):
            self.vm(f"buffer_load_ushort v{8+j}, v5, {SA}, 0 offen offset:{16*j}", "c")
        for j in range(5):
            self.vm(f"s_mov_b32 s15, {j*8*7680}\nbuffer_load_dwordx4 v[{16+4*j}:{19+4*j}], v6, {SB}, s15 offen", f"w{j}")
        self.vm(f"""s_lshl_b32 s14, s2, 3
v_add_u32 v7, s14, v2
s_movk_i32 s15, 1280
v_mul_lo_u32 v7, v7, s15
s_mul_i32 s15, {S_W}, 20
v_add_u32 v13, s15, v3
v_lshl_add_u32 v7, v13, 4, v7
v_add_u32 v14, 256, v7
v_cmp_gt_u32 vcc, 4, v3
v_mov_b32 v15, {OOB:#x}
s_nop 0
v_cndmask_b32 v14, v15, v14, vcc
buffer_load_dwordx4 v[36:39], v7, {SC}, 0 offen
buffer_load_dwordx4 v[40:43], v7, {SC}, 0 offen offset:128
buffer_load_dwordx4 v[44:47], v14, {SC}, 0 offen""", "xrow")
        a(f"""s_sub_u32 s70, s2, 96
s_and_b32 s71, s70, 3               ; pg
s_lshr_b32 s70, s70, 2              ; sigma
s_mul_i32 s14, s71, 320
s_mul_i32 s15, s70, {16*3840}
s_add_u32 s14, s14, s15
s_cmp_ge_u32 s2, 96
s_cselect_b32 s14, s14, {OOB:#x}
s_lshl_b32 s15, {S_W}, 10""")
        for jj in range(4):
            a(f"""v_add_u32 v56, {256*jj}, v0
v_mul_u32_u24 v57, 1093, v56
v_lshrrev_b32 v57, 16, v57          ; row = c/60
v_mul_u32_u24 v58, 60, v57
v_sub_u32 v58, v56, v58             ; pos
v_mul_u32_u24 v59, 3277, v58
v_lshrrev_b32 v59, 16, v59
v_mul_u32_u24 v13, 20, v59
v_sub_u32 v58, v58, v13
v_mul_u32_u24 v57, 3840, v57
v_mul_u32_u24 v59, 1280, v59
v_lshl_add_u32 v57, v58, 4, v57
v_add_u32 v{60+jj}, v57, v59""")
        a(f"""v_mov_b32 v13, {OOB:#x}
v_cmp_gt_u32 vcc, 192, v0
s_nop 1
v_cndmask_b32 v63, v13, v63, vcc""")
        for jj in range(4):
            self.vm(f"s_add_u32 m0, s15, {4*jj*1024}\ns_nop 0\nbuffer_load_dwordx4 v{60+jj}, s[72:75], s14 offen lds", "wraw")
        self.stamp("p0_setup", fine=True)
        self.waitvm("c")
        self.stamp("p0_c", fine=True)
        for j in range(5):
            a(f"""v_lshlrev_b32 v{8+j}, 16, v{8+j}
v_mul_f32 v13, 0xbfb8aa3b, v{8+j}
v_exp_f32 v13, v13
v_add_f32 v13, 1.0, v13
v_rcp_f32 v13, v13
v_mul_f32 v13, v{8+j}, v13
v_cvt_pk_bf16_f32 v13, v13, v13
v_lshlrev_b32 v{8+j}, 16, v13""")
        for e in range(8):
            a(f"v_mov_b32 v{48+e}, 0")
        for j in range(5):
            self.waitvm(f"w{j}")
            for d in range(4):
                r = 16 + 4*j + d
                a(f"""v_lshlrev_b32 v13, 16, v{r}
v_and_b32 v15, 0xffff0000, v{r}
v_fmac_f32 v{48+2*d}, v{8+j}, v13
v_fmac_f32 v{49+2*d}, v{8+j}, v15""")
        for d in range(4):
            a(f"v_permlane32_swap_b32 v{48+2*d}, v{49+2*d}")
        for d in range(4):
            a(f"v_add_f32 v{48+2*d}, v{48+2*d}, v{49+2*d}")
        a("""v_permlane16_swap_b32 v48, v50
v_permlane16_swap_b32 v52, v54
v_add_f32 v48, v48, v50
v_add_f32 v52, v52, v54
v_add_f32_dpp v48, v48, v48 row_ror:8 row_mask:0xf bank_mask:0xf
v_add_f32_dpp v52, v52, v52 row_ror:8 row_mask:0xf bank_mask:0xf""")
        a(f"""v_lshrrev_b32 v13, 4, v1
v_and_b32 v15, 1, v13
v_lshlrev_b32 v15, 1, v15
v_lshrrev_b32 v13, 1, v13
v_add_u32 v13, v13, v15
v_bfe_u32 v15, v1, 3, 1
v_lshl_add_u32 v13, v15, 2, v13
v_lshl_add_u32 v13, v2, 3, v13
v_cmp_eq_u32 vcc, 1, v15
s_lshl_b32 s14, {S_W}, 8
s_add_u32 s14, s14, {LDS_M}
v_lshl_add_u32 v13, v13, 2, s14
v_cndmask_b32 v48, v48, v52, vcc
ds_write_b32 v13, v48""")
        self.stamp("p0_mod", fine=True)
        l = self.lab("ep0")
        a(f"""v_mov_b32 v251, 0
s_cmp_lg_u32 {S_W}, 0
s_cbranch_scc1 {l}
buffer_load_dword v250, v251, {DBG}, 0 offen sc1
{l}:""")
        self.waitvm("xrow")
        a("v_mov_b32 v56, 0\nv_mov_b32 v57, 0\nv_mov_b32 v58, 0x3f803f80")
        for r in range(36, 48):
            a(f"v_dot2_f32_bf16 v56, v{r}, v58, v56\nv_dot2_f32_bf16 v57, v{r}, v{r}, v57")
        a(f"""v_permlane32_swap_b32 v56, v57
v_add_f32 v56, v56, v57
v_mov_b32 v57, v56
v_permlane16_swap_b32 v56, v57
v_add_f32 v56, v56, v57
v_add_f32_dpp v56, v56, v56 row_ror:8 row_mask:0xf bank_mask:0xf
v_lshrrev_b32 v13, 5, v1
v_lshl_add_u32 v13, v13, 3, v2
v_lshlrev_b32 v13, 4, v13
s_lshl_b32 s14, {S_W}, 2
s_add_u32 s14, s14, {LDS_L}
v_add_u32 v13, s14, v13
ds_write_b32 v13, v56""")
        self.waitvm("wraw", "lgkmcnt(0)")
        a("s_barrier")
        a(f"""v_lshrrev_b32 v8, 5, v1           ; h
v_bfe_u32 v9, v1, 2, 2              ; r
v_lshl_add_u32 v9, v8, 3, v9        ; 8h + r
v_mul_u32_u24 v9, 960, v9
v_bfe_u32 v10, v1, 4, 1
v_and_b32 v11, 3, v1
v_lshl_add_u32 v10, v10, 2, v11     ; c'
v_and_b32 v11, 1, v10
v_lshl_add_u32 v9, v11, 3, v9
s_mul_i32 s14, {S_W}, 80
v_add_u32 v9, s14, v9
v_lshrrev_b32 v10, 1, v10           ; i""")
        for t in range(4):
            a(f"""v_add_u32 v11, {4*t}, v10
v_min_u32 v11, 14, v11              ; L
v_mul_u32_u24 v56, 52, v11
v_lshrrev_b32 v56, 8, v56           ; 0 K, 1 V, 2 Q
v_mul_u32_u24 v57, 5, v56
v_sub_u32 v11, v11, v57
v_add_u32 v56, 1, v56
v_cmp_eq_u32 vcc, 3, v56
v_mul_u32_u24 v56, 320, v56
v_lshl_add_u32 v11, v11, 4, v56
v_subrev_u32 v56, 960, v11
v_cndmask_b32 v11, v11, v56, vcc
v_add_u32 v11, v9, v11
ds_read_b64_tr_b16 v[{64+4*t}:{65+4*t}], v11
ds_read_b64_tr_b16 v[{66+4*t}:{67+4*t}], v11 offset:{4*960}""")
        l = self.lab("m0")
        a(f"""s_cmp_lg_u32 {S_W}, 0
s_cbranch_scc1 {l}
s_cmp_ge_u32 s2, 240
s_cbranch_scc1 {l}
v_lshlrev_b32 v13, 2, v1
v_add_u32 v15, {LDS_M}, v13
ds_read_b32 v48, v15
ds_read_b32 v49, v15 offset:256
ds_read_b32 v50, v15 offset:512
ds_read_b32 v51, v15 offset:768
s_mul_i32 s14, s12, 3840*4
s_lshl_b32 s15, s13, 8
s_add_u32 s14, s14, s15
s_add_u32 s14, s14, {WS_MODP:#x}
s_waitcnt lgkmcnt(0)
v_add_f32 v48, v48, v49
v_add_f32 v50, v50, v51
v_add_f32 v48, v48, v50
buffer_store_dword v48, v13, {WS}, s14 offen sc1
{l}:""")
        a(f"""v_lshlrev_b32 v13, 4, v2
v_add_u32 v13, {LDS_L}, v13
ds_read_b128 v[48:51], v13
ds_read_b128 v[52:55], v13 offset:128
s_waitcnt lgkmcnt(0)
v_add_f32 v48, v48, v49
v_add_f32 v50, v50, v51
v_add_f32 v52, v52, v53
v_add_f32 v54, v54, v55
v_add_f32 v48, v48, v50
v_add_f32 v52, v52, v54
v_mul_f32 v48, {f2h(1/640)}, v48
v_mul_f32 v52, {f2h(1/640)}, v52
v_fma_f32 v52, -v48, v48, v52
v_max_f32 v52, 0, v52
v_add_f32 v52, {f2h(1e-5)}, v52
v_rsq_f32 v52, v52
s_nop 0
v_mul_f32 v48, v48, v52
v_sub_f32 v48, 0, v48""")
        for r in range(36, 48):
            a(f"""v_lshlrev_b32 v13, 16, v{r}
v_and_b32 v15, 0xffff0000, v{r}
v_fma_f32 v13, v13, v52, v48
v_fma_f32 v15, v15, v52, v48
v_cvt_pk_f16_f32 v{r}, v13, v15""")
        self.vm(f"""s_mul_i32 s15, {S_W}, 20
v_add_u32 v13, s15, v3
v_lshrrev_b32 v15, 1, v13
v_lshlrev_b32 v15, 10, v15
v_and_b32 v13, 1, v13
v_lshl_add_u32 v15, v13, 9, v15
s_and_b32 s14, s2, 3
s_lshl_b32 s14, s14, 3
v_add_u32 v13, s14, v2
v_lshl_add_u32 v15, v13, 4, v15
v_add_u32 v13, 8192, v15
v_cmp_gt_u32 vcc, 4, v3
v_mov_b32 v7, {OOB:#x}
s_lshr_b32 s14, s2, 2
s_mul_i32 s14, s14, 40960
v_cndmask_b32 v13, v7, v13, vcc
s_add_u32 s14, s14, {WS_NF:#x}
buffer_store_dwordx4 v[36:39], v15, {WS}, s14 offen sc1
s_add_u32 s15, s14, 4096
buffer_store_dwordx4 v[40:43], v15, {WS}, s15 offen sc1
buffer_store_dwordx4 v[44:47], v13, {WS}, s14 offen sc1""", "nst")
        self.vm(f"""s_mul_i32 s14, s70, 3840
s_lshl_b32 s15, s71, 2
s_add_u32 s15, s15, {S_W}
s_mul_i32 s15, s15, 153600
s_add_u32 s14, s14, s15
s_add_u32 s14, s14, {WS_WQP:#x}
s_cmp_ge_u32 s2, 96
s_cselect_b32 s14, s14, {OOB:#x}
v_lshlrev_b32 v8, 4, v1
v_and_b32 v9, 31, v1
v_lshrrev_b32 v10, 5, v1
v_mul_u32_u24 v10, 24, v10
v_add_u32 v10, v10, v9
v_lshlrev_b32 v10, 4, v10
v_add_u32 v10, 3072, v10
v_mov_b32 v11, {OOB:#x}
v_cmp_gt_u32 vcc, 24, v9
s_waitcnt lgkmcnt(0)
v_cndmask_b32 v10, v11, v10, vcc
buffer_store_dwordx4 v[64:67], v8, {WS}, s14 offen sc1
buffer_store_dwordx4 v[68:71], v8, {WS}, s14 offen offset:1024 sc1
buffer_store_dwordx4 v[72:75], v8, {WS}, s14 offen offset:2048 sc1
buffer_store_dwordx4 v[76:79], v10, {WS}, s14 offen sc1""", "nst")
        self.stamp("p0_stored", fine=True)
        self.waitvm("nst")
        l = self.lab("ep"); l2 = self.lab("epd")
        a(f"""s_cmp_lg_u32 {S_W}, 0
s_cbranch_scc1 {l2}
s_mov_b32 s64, 0
{l}:
v_readfirstlane_b32 {S_EP}, v250
s_cmp_lg_u32 {S_EP}, 0
s_cbranch_scc1 {l2}
s_add_u32 s64, s64, 1
s_cmp_gt_u32 s64, {self.timeout}
s_cbranch_scc1 {l2}
buffer_load_dword v250, v251, {DBG}, 0 offen sc1
s_waitcnt vmcnt(0)
s_branch {l}
{l2}:
s_barrier""")
        self.flag_store(0, "s2")
        self.stamp("p0_flag", fine=True)
        for j in range(5):
            a(f"""v_add_u32 v12, {64*j}, v1
v_mul_u32_u24 v13, 6554, v12
v_lshrrev_b32 v13, 16, v13
v_mul_u32_u24 v14, 10, v13
v_sub_u32 v14, v12, v14
v_mul_u32_u24 v13, 1280, v13
v_lshl_add_u32 v{240+j}, v14, 4, v13""")
        for jj in range(3):
            a(f"""v_add_u32 v12, {64*jj}, v1
v_mul_u32_u24 v13, 5462, v12
v_lshrrev_b32 v13, 16, v13
v_mul_u32_u24 v14, 12, v13
v_sub_u32 v14, v12, v14
v_mul_u32_u24 v13, 3072, v13
v_lshl_add_u32 v{245+jj}, v14, 4, v13""")
        self.pack_params()
        self.pack_dma()

    def phase_qkv(self):
        a = self.a
        LDS_GS = 153600
        a("""; ---- phase 1: QKV ----
v_lshlrev_b32 v8, 7, v1
v_add_u32 v9, 64*128, v8
v_add_u32 v10, 128*128, v8
v_add_u32 v11, 192*128, v8""")
        a(f"""v_lshlrev_b32 v2, 4, v1
v_lshrrev_b32 v12, 5, v1           ; h
v_lshlrev_b32 v3, 5, v12
v_add_u32 v3, {LDS_GS}, v3          ; g/s base
v_add_u32 v4, {16*3840}, v2
v_add_u32 v5, {32*3840}, v2
v_and_b32 v13, 31, v1
v_min_u32 v13, 23, v13
v_mul_u32_u24 v12, 24, v12
v_add_u32 v12, v12, v13
v_lshlrev_b32 v12, 4, v12
v_add_u32 v6, 3072, v12
v_add_u32 v7, {16*3840}, v6
v_add_u32 v15, {32*3840}, v6
v_lshrrev_b32 v12, 2, v0
v_lshlrev_b32 v12, 7, v12
v_bfe_u32 v13, v0, 1, 1
v_lshl_add_u32 v12, v13, 6, v12
v_and_b32 v13, 1, v0
v_lshl_add_u32 v12, v13, 4, v12
v_add_u32 v14, {LDS_GS}, v12
v_lshlrev_b32 v12, 4, v0
v_mov_b32 v13, {OOB:#x}
v_cmp_gt_u32 vcc, 160, v0
s_nop 1
v_cndmask_b32 v52, v13, v12, vcc
s_lshl_b32 s12, {S_T}, 2
s_add_u32 s12, s12, {S_W}
s_mul_i32 s12, s12, 40960
s_add_u32 s12, s12, {WS_NF:#x}
s_mul_i32 s76, {S_P}, 153600
s_add_u32 s76, s76, {WS_WQP:#x}
s_lshl_b32 s77, {S_W}, 10
s_add_u32 s76, s76, s77
s_cmp_eq_u32 {S_W}, 3
s_cselect_b32 s78, 0, 12288
v_lshrrev_b32 v12, 2, v0
v_lshlrev_b32 v12, 6, v12
v_bfe_u32 v13, v0, 1, 1
v_lshl_add_u32 v12, v13, 5, v12
v_and_b32 v13, 1, v0
v_lshl_add_u32 v12, v13, 4, v12
v_add_u32 v14, {LDS_GS}, v12""")
        self.poll(["v8", "v9", "v10", "v11"], drain="praw")
        self.stamp("qkv_poll")
        def wdma(g, jj):
            if jj < 3:
                pc = 15*g + 4*jj
                return f"s_add_u32 m0, s77, {pc*1024}\ns_add_u32 s79, s76, {pc*1024}\nbuffer_load_dwordx4 v2, {WS}, s79 offen sc1 lds"
            return (f"s_add_u32 s79, s78, {15*g*1024}\ns_add_u32 m0, s77, s79\ns_add_u32 s79, s76, s79\n"
                    f"buffer_load_dwordx4 v2, {WS}, s79 offen sc1 lds")
        wq = [(g, jj) for g in range(10) for jj in range(4)]
        NB = 64
        PF = 8
        def nload(s):
            pre = "s_add_u32 s12, s12, 4096\n" if (s % 4 == 0 and s > 0) else ""
            return pre + f"buffer_load_dwordx4 v[{NB+4*s}:{NB+4*s+3}], v2, {WS}, s12 offen offset:{(s%4)*1024} sc1"
        for kq in range(4):
            self.vm(f"s_mov_b32 s14, {WS_MODP + kq*15360}\nbuffer_load_dwordx4 v[{16+4*kq}:{19+4*kq}], v52, {WS}, s14 offen sc1\n"
                    f"buffer_load_dwordx4 v[{32+4*kq}:{35+4*kq}], v52, {WS}, s14 offen offset:2560 sc1", "gs")
        wi = 0
        for _ in range(4):
            self.vm(wdma(*wq[wi]), f"wg{wq[wi][0]}"); wi += 1
        self.vm(nload(0), "n0"); self.vm(nload(1), "n1")
        for _ in range(4):
            self.vm(wdma(*wq[wi]), f"wg{wq[wi][0]}"); wi += 1
        for s in range(2, PF):
            self.vm(nload(s), f"n{s}")
        for _ in range(4*self.o.get("wpre", 2)):
            self.vm(wdma(*wq[wi]), f"wg{wq[wi][0]}"); wi += 1
        self.pack_store()
        self.waitvm("gs")
        for e in range(4):
            a(f"""v_add_f32 v{16+e}, v{16+e}, v{20+e}
v_add_f32 v{24+e}, v{24+e}, v{28+e}
v_add_f32 v{32+e}, v{32+e}, v{36+e}
v_add_f32 v{40+e}, v{40+e}, v{44+e}
v_add_f32 v{16+e}, v{16+e}, v{24+e}
v_add_f32 v{32+e}, v{32+e}, v{40+e}""")
        a("""v_cvt_pk_bf16_f32 v20, v16, v17
v_cvt_pk_bf16_f32 v21, v18, v19
v_cvt_pk_bf16_f32 v22, v32, v33
v_cvt_pk_bf16_f32 v23, v34, v35
v_lshlrev_b32 v16, 16, v20
v_and_b32 v17, 0xffff0000, v20
v_lshlrev_b32 v18, 16, v21
v_and_b32 v19, 0xffff0000, v21
v_lshlrev_b32 v32, 16, v22
v_and_b32 v33, 0xffff0000, v22
v_lshlrev_b32 v34, 16, v23
v_and_b32 v35, 0xffff0000, v23
v_add_f32 v32, 1.0, v32
v_add_f32 v33, 1.0, v33
v_add_f32 v34, 1.0, v34
v_add_f32 v35, 1.0, v35
v_cvt_pk_bf16_f32 v22, v32, v33
v_cvt_pk_bf16_f32 v23, v34, v35
v_lshlrev_b32 v32, 16, v22
v_and_b32 v33, 0xffff0000, v22
v_lshlrev_b32 v34, 16, v23
v_and_b32 v35, 0xffff0000, v23
v_cvt_pk_f16_f32 v36, v32, v16
v_cvt_pk_f16_f32 v37, v33, v17
v_cvt_pk_f16_f32 v38, v34, v18
v_cvt_pk_f16_f32 v39, v35, v19
v_cmp_gt_u32 vcc, 160, v0
s_and_saveexec_b64 s[66:67], vcc
ds_write_b128 v14, v[36:39]
s_mov_b64 exec, s[66:67]""")
        self.waitvm("wg0", "lgkmcnt(0)")
        a("s_barrier")
        self.stamp("qkv_gs")
        AB = 64
        GSB = 16
        def aread(s):
            st = AB + 16*(s % 3)
            rng = s // 16
            b0 = ("v2", "v4", "v5")[rng]; b3 = ("v6", "v7", "v15")[rng]
            o = (s % 16)*3840
            return [f"ds_read_b128 a[{st+4*t}:{st+4*t+3}], {b0} offset:{o + 1024*t}" for t in range(3)] + \
                   [f"ds_read_b128 a[{st+12}:{st+15}], {b3} offset:{o}"]
        def gsread(s):
            st = GSB + 8*(s % 2)
            return [f"ds_read_b128 v[{st+4*j}:{st+4*j+3}], v3 offset:{s*64+16*j}" for j in range(2)]
        def modulate(s):
            st = GSB + 8*(s % 2)
            out = []
            for d in range(4):
                r = NB + 4*s + d
                t0, t1 = 48 + 2*(d % 2), 49 + 2*(d % 2)
                out.append(f"v_fma_mix_f32 v{t0}, v{r}, v{st+2*d}, v{st+2*d} op_sel:[0,0,1] op_sel_hi:[1,1,1]")
                out.append(f"v_fma_mix_f32 v{t1}, v{r}, v{st+2*d+1}, v{st+2*d+1} op_sel:[1,0,1] op_sel_hi:[1,1,1]")
                out.append(f"v_cvt_pk_bf16_f32 v{r}, v{t0}, v{t1}")
            return out
        for x in gsread(0) + gsread(1) + aread(0): a(x)
        self.waitvm("n0", "lgkmcnt(6)")
        for x in modulate(0): a(x)
        for x in aread(1): a(x)
        nxt_n = PF
        touches = []
        for s in range(40):
            if s in (1, 10, 20, 30): self.stamp(f"qkv_s{s}", fine=True)
            if (s + 2) % 4 == 0 and s + 2 < 40:
                self.waitvm(f"wg{(s+2)//4}")
                a("s_barrier")
                if (s+2)//4 == 2 + self.o.get("wpre", 2):
                    self.flag_store(5, "s2")
            ex = "lgkmcnt(4)" if s + 1 < 40 else "lgkmcnt(0)"
            if s + 1 < 40: self.waitvm(f"n{s+1}", ex)
            else: a(f"s_waitcnt {ex}")
            lds = gsread(s+2) + aread(s+2) if s + 2 < 40 else []
            va = modulate(s+1) if s + 1 < 40 else []
            st = AB + 16*(s % 3)
            li = vi = 0
            for t in range(4):
                c = f"a[{16*t}:{16*t+15}]" if s else "0"
                a(f"v_mfma_f32_32x32x16_bf16 a[{16*t}:{16*t+15}], a[{st+4*t}:{st+4*t+3}], v[{NB+4*s}:{NB+4*s+3}], {c}")
                for _ in range(2):
                    if li < len(lds): a(lds[li]); li += 1
                for _ in range(3):
                    if vi < len(va): a(va[vi]); vi += 1
                if t == 0 and wi < 40:
                    self.vm(wdma(*wq[wi]), f"wg{wq[wi][0]}"); wi += 1
                if t == 2:
                    if nxt_n < 40:
                        self.vm(nload(nxt_n), f"n{nxt_n}"); nxt_n += 1
                    elif touches:
                        self.vm(touches.pop(0), "touch")
        self.stamp("qkv_main")
        self.f5_load()
        def quad_pack(src, dst, scale=None):
            for e in range(4):
                a(f"v_accvgpr_read_b32 v{48+e}, a{src+e}")
            if scale:
                for e in range(4):
                    a(f"v_mul_f32 v{48+e}, {scale}, v{48+e}")
            a(f"v_cvt_pk_bf16_f32 v{dst}, v48, v49\nv_cvt_pk_bf16_f32 v{dst+1}, v50, v51")
        quad_pack(0, 16); quad_pack(4, 18); quad_pack(12, 20); quad_pack(16, 22); quad_pack(8, 24)
        self.vm(f"""s_lshl_b32 s12, {S_T}, 2
s_add_u32 s12, s12, {S_W}
s_lshl_b32 s13, {S_P}, 6
s_add_u32 s12, s12, s13
s_mul_i32 s13, s12, 2560
s_add_u32 s13, s13, {WS_KF:#x}
v_lshlrev_b32 v9, 3, v1
buffer_store_dwordx4 v[16:19], v2, {WS}, s13 offen sc1
buffer_store_dwordx4 v[20:23], v2, {WS}, s13 offen offset:1024 sc1
buffer_store_dwordx2 v[24:25], v9, {WS}, s13 offen offset:2048 sc1""", "kvst")
        quad_pack(20, 28); quad_pack(24, 30); quad_pack(28, 32); quad_pack(32, 36); quad_pack(36, 38)
        self.vm(f"""v_bfe_u32 v10, v1, 2, 3          ; a
v_and_b32 v11, 3, v1               ; r
v_lshrrev_b32 v12, 5, v1           ; hh
v_lshlrev_b32 v13, 7, v10
v_lshl_add_u32 v13, v12, 6, v13
v_lshl_add_u32 v13, v11, 4, v13
v_lshrrev_b32 v14, 1, v10
v_lshlrev_b32 v14, 8, v14          ; (a>>1)*256
v_and_b32 v10, 1, v10
v_xor_b32 v10, 1, v10
v_lshl_add_u32 v14, v10, 7, v14
v_lshl_add_u32 v14, v12, 5, v14
v_lshl_add_u32 v14, v11, 3, v14
s_mul_i32 s13, s12, 3072
s_add_u32 s13, s13, {WS_VF:#x}
buffer_store_dwordx4 v[28:31], v13, {WS}, s13 offen sc1
buffer_store_dwordx4 v[36:39], v13, {WS}, s13 offen offset:1024 sc1
buffer_store_dwordx2 v[32:33], v14, {WS}, s13 offen offset:2048 sc1""", "kvst")
        QS = f2h(20**-0.5 * 1.4426950408889634)
        quad_pack(40, 224, QS); quad_pack(44, 226, QS); quad_pack(48, 228, QS); quad_pack(52, 232, QS); quad_pack(56, 234, QS)
        self.stamp("qkv_epi", fine=True)
        self.waitvm("kvst")
        self.f5_check()
        a("s_barrier")
        a(f"s_lshl_b32 s12, {S_P}, 4\ns_add_u32 s12, s12, {S_T}")
        self.flag_store(1, "s12")

    def pack_params(self):
        a = self.a
        lw2 = self.lab("pt2"); lwo = self.lab("pto"); le = self.lab("pte")
        a(f"""s_cmp_ge_u32 s2, 128
s_cbranch_scc1 {lw2}
s_and_b32 s83, s2, 15
s_lshr_b32 s84, s2, 4
s_mul_i32 s80, s84, {80*3072}
s_mul_i32 s83, s83, 192
s_add_u32 s80, s80, s83
s_movk_i32 s81, 3072
s_movk_i32 s82, 80
s_mov_b32 s84, s{P_W1}
s_mov_b32 s85, s{P_W1+1}
s_mov_b32 s86, {640*3072}
s_branch {le}
{lw2}:
s_cmp_ge_u32 s2, 224
s_cbranch_scc1 {lwo}
s_sub_u32 s83, s2, 128
s_lshr_b32 s84, s83, 3
s_and_b32 s83, s83, 7
s_mul_i32 s80, s84, {128*1280}
s_mul_i32 s83, s83, 160
s_add_u32 s80, s80, s83
s_movk_i32 s81, 1280
s_movk_i32 s82, 128
s_mov_b32 s84, s{P_W2}
s_mov_b32 s85, s{P_W2+1}
s_mov_b32 s86, {1536*1280}
s_branch {le}
{lwo}:
s_sub_u32 s83, s2, 224
s_lshr_b32 s84, s83, 3
s_and_b32 s83, s83, 7
s_mul_i32 s80, s84, {160*1280}
s_mul_i32 s83, s83, 160
s_add_u32 s80, s80, s83
s_movk_i32 s81, 1280
s_movk_i32 s82, 160
s_mov_b32 s84, s{P_WO}
s_mov_b32 s85, s{P_WO+1}
s_mov_b32 s86, {640*1280}
{le}:
s_mov_b32 s87, 0x00020000""")

    def pack_dma(self):
        a = self.a
        lw2 = self.lab("pd2"); lwo = self.lab("pdo"); le = self.lab("pde")
        a(f"s_cmp_ge_u32 s2, 128\ns_cbranch_scc1 {lw2}")
        for grp in (None, 4):
            if grp is None:
                a(f"s_mul_i32 s14, {S_W}, {16*3072}\ns_add_u32 s14, s14, s80\ns_mul_i32 s15, {S_W}, 3072")
            else:
                a(f"s_add_u32 s14, s80, {4*16*3072}\ns_movk_i32 s15, {4*3072}")
            for jj in range(3):
                a(f"s_add_u32 m0, s15, {PK + jj*1024}\ns_nop 0\nbuffer_load_dwordx4 v{245+jj}, s[84:87], s14 offen lds")
        a(f"s_branch {le}\n{lw2}:\ns_mul_i32 s14, {S_W}, {32*1280}\ns_add_u32 s14, s14, s80\ns_mul_i32 s15, {S_W}, 5120")
        for j in range(5):
            a(f"s_add_u32 m0, s15, {PK + j*1024}\ns_nop 0\nbuffer_load_dwordx4 v{240+j}, s[84:87], s14 offen lds")
        a(f"s_cmp_ge_u32 s2, 224\ns_cbranch_scc0 {le}\ns_add_u32 s14, s80, {4*32*1280}\ns_movk_i32 s15, {4*5120}")
        for j in range(5):
            a(f"s_add_u32 m0, s15, {PK + j*1024}\ns_nop 0\nbuffer_load_dwordx4 v{240+j}, s[84:87], s14 offen lds")
        a(f"{le}:")
        self.q += ["praw"]*5

    def pack_store(self):
        a = self.a
        lw2 = self.lab("ps2"); lwo = self.lab("pso"); le = self.lab("pse")
        a(f"""s_cmp_ge_u32 s2, 128
s_cbranch_scc1 {lw2}
s_min_u32 s14, {S_W}, 2
v_lshrrev_b32 v124, 5, v1            ; h
v_bfe_u32 v125, v1, 2, 2             ; r
v_bfe_u32 v126, v1, 4, 1
v_and_b32 v127, 3, v1
v_lshl_add_u32 v126, v126, 2, v127    ; c'
v_lshlrev_b32 v126, 3, v126
s_lshl_b32 s15, s14, 6
s_add_u32 s15, s15, {PK}
v_add_u32 v126, s15, v126
v_lshl_add_u32 v127, v124, 2, v125
v_mul_u32_u24 v127, 192, v127
v_add_u32 v128, v127, v126
v_lshl_add_u32 v127, v124, 3, v125
v_mul_u32_u24 v127, 192, v127
v_add_u32 v129, v127, v126""")
        for i in range(5):
            for rd in range(2):
                if i < 4:
                    a(f"ds_read_b64_tr_b16 v[{96+4*i+2*rd}:{97+4*i+2*rd}], v128 offset:{(32*(i >> 1) + 8*(i & 1) + 16*rd)*192}")
                else:
                    a(f"ds_read_b64_tr_b16 v[{96+4*i+2*rd}:{97+4*i+2*rd}], v129 offset:{(64 + 4*rd)*192}")
        a(f"""s_and_b32 s15, s2, 15
s_mul_i32 s15, s15, 122880
s_lshr_b32 s64, s2, 4
s_mul_i32 s64, s64, {5*3072}
s_add_u32 s15, s15, s64
s_lshl_b32 s14, s14, 10
s_add_u32 s15, s15, s14
s_add_u32 s15, s15, {WS_W1P:#x}
s_waitcnt lgkmcnt(0)""")
        for i in range(5):
            a(f"buffer_store_dwordx4 v[{96+4*i}:{99+4*i}], v2, {WS}, s15 offen sc1")
            if i < 4: a("s_add_u32 s15, s15, 3072")
        a(f"""s_branch {le}
{lw2}:
v_lshrrev_b32 v124, 4, v1            ; q
v_bfe_u32 v125, v1, 2, 2             ; r
v_and_b32 v126, 3, v1
v_lshlrev_b32 v126, 3, v126          ; c*8
v_add_u32 v126, {PK}, v126
v_and_b32 v127, 1, v124
s_cmp_ge_u32 s2, 224
s_cbranch_scc1 {lwo}
v_lshrrev_b32 v128, 1, v124
v_lshlrev_b32 v128, 4, v128
v_lshl_add_u32 v128, v127, 2, v128
v_add_u32 v128, v128, v125
v_mul_u32_u24 v128, 160, v128
v_add_u32 v128, v128, v126
s_mul_i32 s14, {S_W}, 5120
v_add_u32 v128, s14, v128""")
        for j in range(5):
            for rd in range(2):
                a(f"ds_read_b64_tr_b16 v[{96+4*j+2*rd}:{97+4*j+2*rd}], v128 offset:{rd*1280 + j*32}")
        a(f"""s_sub_u32 s15, s2, 128
s_and_b32 s14, s15, 7
s_mul_i32 s14, s14, 245760
s_lshr_b32 s15, s15, 3
s_lshl_b32 s15, s15, 2
s_add_u32 s15, s15, {S_W}
s_mul_i32 s15, s15, 5120
s_add_u32 s15, s15, s14
s_add_u32 s15, s15, {WS_W2P:#x}
s_add_u32 s14, s15, 4096
s_waitcnt lgkmcnt(0)""")
        for j in range(4):
            a(f"buffer_store_dwordx4 v[{96+4*j}:{99+4*j}], v2, {WS}, s15 offen offset:{1024*j} sc1")
        a(f"buffer_store_dwordx4 v[112:115], v2, {WS}, s14 offen sc1")
        a(f"""s_branch {le}
{lwo}:
v_lshrrev_b32 v128, 1, v124
v_mul_u32_u24 v128, 24, v128
v_lshl_add_u32 v128, v127, 2, v128
v_add_u32 v128, v128, v125
v_mul_u32_u24 v128, 160, v128
v_add_u32 v128, v128, v126
s_mul_i32 s14, {S_W}, 6400
v_add_u32 v128, s14, v128            ; F0 base
v_mul_u32_u24 v129, 40, v124
v_add_u32 v129, v129, v125
v_add_u32 v129, 16, v129
v_lshl_add_u32 v130, v127, 2, v129
v_mul_u32_u24 v130, 160, v130
v_add_u32 v130, v130, v126
v_xor_b32 v127, 1, v127
v_lshl_add_u32 v131, v127, 2, v129
v_mul_u32_u24 v131, 160, v131
v_add_u32 v131, v131, v126
s_lshl_b32 s14, {S_W}, 5
v_add_u32 v124, s14, v130
v_add_u32 v125, s14, v131""")
        for j in range(5):
            for rd in range(2):
                a(f"ds_read_b64_tr_b16 v[{96+4*j+2*rd}:{97+4*j+2*rd}], v128 offset:{rd*1280 + j*32}")
        a("""ds_read_b64_tr_b16 v[116:117], v124
ds_read_b64_tr_b16 v[118:119], v125
ds_read_b64_tr_b16 v[120:121], v130 offset:128
ds_read_b64_tr_b16 v[122:123], v131 offset:128""")
        a(f"""s_sub_u32 s15, s2, 224
s_and_b32 s14, s15, 7
s_mul_i32 s14, s14, 102400
s_lshr_b32 s15, s15, 3             ; P4
s_lshr_b32 s64, s15, 1
s_mul_i32 s64, s64, 51200
s_add_u32 s14, s14, s64
s_add_u32 s14, s14, {WS_WOP:#x}
s_and_b32 s15, s15, 1
s_lshl_b32 s64, s15, 2
s_add_u32 s64, s64, {S_W}
s_mul_i32 s64, s64, 5120
s_add_u32 s64, s64, s14            ; F0 slab
s_add_u32 s15, s15, 8
s_mul_i32 s15, s15, 5120
s_add_u32 s15, s15, s14
s_add_u32 s65, s64, 4096
s_waitcnt lgkmcnt(0)""")
        for j in range(4):
            a(f"buffer_store_dwordx4 v[{96+4*j}:{99+4*j}], v2, {WS}, s64 offen offset:{1024*j} sc1")
        a(f"""buffer_store_dwordx4 v[112:115], v2, {WS}, s65 offen sc1
s_add_u32 s14, s15, 4096
buffer_store_dwordx4 v[120:123], v2, {WS}, s14 offen sc1
s_lshl_b32 s14, {S_W}, 10
s_add_u32 s15, s15, s14
buffer_store_dwordx4 v[116:119], v2, {WS}, s15 offen sc1
{le}:""")
        self.q += ["pk"]*5

    def f5_load(self):
        a = self.a
        l5 = self.lab("f5")
        a(f"""v_lshlrev_b32 v56, 7, v1
v_add_u32 v56, {WS_FLAGS + 5*0x8000:#x}, v56
v_add_u32 v57, 64*128, v56
v_add_u32 v58, 128*128, v56
v_add_u32 v59, 192*128, v56
s_cmp_lg_u32 {S_W}, 0
s_cbranch_scc1 {l5}
buffer_load_dword v60, v56, {WS}, 0 offen sc1
buffer_load_dword v61, v57, {WS}, 0 offen sc1
buffer_load_dword v62, v58, {WS}, 0 offen sc1
buffer_load_dword v63, v59, {WS}, 0 offen sc1
{l5}:""")
    def f5_check(self):
        a = self.a
        l5 = self.lab("c5"); l5l = self.lab("c5l")
        a(f"""s_cmp_lg_u32 {S_W}, 0
s_cbranch_scc1 {l5}
s_mov_b32 s64, 0
{l5l}:
v_xor_b32 v60, {S_EP}, v60
v_xor_b32 v61, {S_EP}, v61
v_xor_b32 v62, {S_EP}, v62
v_xor_b32 v63, {S_EP}, v63
v_or3_b32 v60, v60, v61, v62
v_or_b32 v60, v60, v63
v_cmp_ne_u32 vcc, 0, v60
s_nop 3
s_cmp_eq_u64 vcc, 0
s_cbranch_scc1 {l5}
s_add_u32 s64, s64, 1
s_cmp_gt_u32 s64, {self.timeout}
s_cbranch_scc1 {l5}
buffer_load_dword v60, v56, {WS}, 0 offen sc1
buffer_load_dword v61, v57, {WS}, 0 offen sc1
buffer_load_dword v62, v58, {WS}, 0 offen sc1
buffer_load_dword v63, v59, {WS}, 0 offen sc1
s_waitcnt vmcnt(0)
s_branch {l5l}
{l5}:""")

    def lin_dma(self, src_sgpr, lds0, pieces):
        return [f"s_mov_b32 m0, {lds0 + l}\ns_add_u32 s79, {src_sgpr}, {o}\nbuffer_load_dwordx4 v2, {WS}, s79 offen sc1 lds" for o, l in pieces]
    def wave_dma(self, src_sgpr, ldsw_sgpr, lds0, n, stride, first=0):
        return [f"s_add_u32 m0, {ldsw_sgpr}, {lds0 + (first + 4*i)*1024}\ns_add_u32 s79, {src_sgpr}, {(first + 4*i)*1024}\n"
                f"buffer_load_dwordx4 v2, {WS}, s79 offen sc1 lds" for i in range(n)]

    def tables_issue(self):
        a = self.a
        self.srd(SA, P_B2, 1280)
        self.srd(SC, P_B1, 3072)
        a(f"""v_lshlrev_b32 v8, 4, v0
v_mov_b32 v9, {OOB:#x}
v_cmp_gt_u32 vcc, 160, v0
s_nop 1
v_cndmask_b32 v8, v9, v8, vcc""")
        for vec in range(4):
            for kq in range(4):
                r = 16 + 16*vec + 4*kq
                self.vm(f"s_mov_b32 s14, {WS_MODP + kq*15360 + (1280 + 640*vec)*4}\nbuffer_load_dwordx4 v[{r}:{r+3}], v8, {WS}, s14 offen sc1", "tab")
        self.vm(f"""v_lshlrev_b32 v8, 3, v0
v_cmp_gt_u32 vcc, 20, v0
s_mul_i32 s14, {S_V}, 160
v_cndmask_b32 v10, v9, v8, vcc
buffer_load_dwordx2 v[80:81], v10, {SA}, s14 offen
v_cmp_gt_u32 vcc, 24, v0
s_mul_i32 s14, {S_J}, 192
v_cndmask_b32 v10, v9, v8, vcc
buffer_load_dwordx2 v[82:83], v10, {SC}, s14 offen""", "tab")

    def tables_finish(self):
        a = self.a
        self.waitvm("tab")
        for vec in range(4):
            b = 16 + 16*vec
            for e in range(4):
                a(f"""v_add_f32 v{b+e}, v{b+e}, v{b+4+e}
v_add_f32 v{b+8+e}, v{b+8+e}, v{b+12+e}
v_add_f32 v{b+e}, v{b+e}, v{b+8+e}""")
            a(f"v_cvt_pk_bf16_f32 v{b+4}, v{b}, v{b+1}\nv_cvt_pk_bf16_f32 v{b+5}, v{b+2}, v{b+3}")
            if vec != 1:
                a(f"""v_lshlrev_b32 v{b}, 16, v{b+4}
v_and_b32 v{b+1}, 0xffff0000, v{b+4}
v_lshlrev_b32 v{b+2}, 16, v{b+5}
v_and_b32 v{b+3}, 0xffff0000, v{b+5}""")
        a("""v_add_f32 v48, 1.0, v48
v_add_f32 v49, 1.0, v49
v_add_f32 v50, 1.0, v50
v_add_f32 v51, 1.0, v51
v_cvt_pk_bf16_f32 v52, v48, v49
v_cvt_pk_bf16_f32 v53, v50, v51
v_lshlrev_b32 v48, 16, v52
v_and_b32 v49, 0xffff0000, v52
v_lshlrev_b32 v50, 16, v53
v_and_b32 v51, 0xffff0000, v53""")
        a(f"""v_cmp_gt_u32 vcc, 160, v0
s_and_saveexec_b64 s[66:67], vcc
v_lshlrev_b32 v8, 3, v0
v_add_u32 v9, {PT_G2B}, v8
ds_write_b64 v9, v[52:53]
ds_write_b64 v9, v[36:37] offset:{PT_S2B - PT_G2B}
s_mul_i32 s14, {S_V}, 20
v_subrev_u32 v10, s14, v0
v_cmp_gt_u32 vcc, 20, v10
s_and_b64 exec, exec, vcc
v_lshlrev_b32 v10, 4, v10
v_add_u32 v10, {PT_GA}, v10
ds_write_b128 v10, v[16:19]
ds_write_b128 v10, v[48:51] offset:{PT_G2 - PT_GA}
ds_write_b128 v10, v[64:67] offset:{PT_GB - PT_GA}
s_mov_b64 exec, s[66:67]
v_lshlrev_b32 v84, 16, v80
v_and_b32 v85, 0xffff0000, v80
v_lshlrev_b32 v86, 16, v81
v_and_b32 v87, 0xffff0000, v81
v_lshlrev_b32 v88, 16, v82
v_and_b32 v89, 0xffff0000, v82
v_lshlrev_b32 v90, 16, v83
v_and_b32 v91, 0xffff0000, v83
v_lshlrev_b32 v8, 4, v0
v_cmp_gt_u32 vcc, 20, v0
s_and_saveexec_b64 s[66:67], vcc
v_add_u32 v9, {PT_B2}, v8
ds_write_b128 v9, v[84:87]
s_mov_b64 exec, s[66:67]
v_cmp_gt_u32 vcc, 24, v0
s_and_saveexec_b64 s[66:67], vcc
v_add_u32 v9, {PT_B1}, v8
ds_write_b128 v9, v[88:91]
s_mov_b64 exec, s[66:67]""")

    def phase_att(self):
        a = self.a
        a(f"""; ---- phase 2: attention ----
v_and_b32 v8, 1, v1
v_add_u32 v8, 1, v8
v_sub_u32 v8, {S_T}, v8
v_max_i32 v8, 0, v8
s_lshl_b32 s12, {S_P}, 4
v_add_u32 v8, s12, v8
v_lshlrev_b32 v8, 7, v8
v_add_u32 v14, {WS_FLAGS + 0x8000:#x}, v8""")
        a(f"""v_lshlrev_b32 v2, 4, v1
s_lshl_b32 s15, {S_W}, 10
s_mul_i32 s13, {S_V}, 102400
s_add_u32 s13, s13, {WS_WOP:#x}
s_add_u32 s13, s13, s15""")
        for i in range(20):
            self.vm(f"s_add_u32 m0, s15, {4*i*1024}\ns_add_u32 s12, s13, {4*i*1024}\nbuffer_load_dwordx4 v2, {WS}, s12 offen sc1 lds", "wo1")
        self.stamp("att_wodma", fine=True)
        a("""v_and_b32 v8, 31, v1
v_lshrrev_b32 v9, 5, v1
v_lshlrev_b32 v10, 2, v9
v_sub_u32 v8, v8, v10""")
        for i in range(16):
            kap = 8*(i >> 2) + (i & 3)
            a(f"v_cmp_le_i32 s[{68+2*i}:{69+2*i}], {kap}, v8")
        a("v_mov_b32 v10, 0xffff\nv_mov_b32 v11, 0xffff0000")
        for j in range(8):
            a(f"""v_cndmask_b32 v12, 0, v10, s[{68+4*j}:{69+4*j}]
v_cndmask_b32 v13, 0, v11, s[{70+4*j}:{71+4*j}]
v_or_b32 v{112+j}, v12, v13""")
        a("""v_cmp_eq_u32 vcc, 0, v9
v_mov_b32 v12, 0
s_nop 0
v_cndmask_b32 v236, v12, v228, vcc
v_cndmask_b32 v237, v12, v229, vcc
v_cndmask_b32 v238, v228, v12, vcc
v_cndmask_b32 v239, v229, v12, vcc""")
        a(f"""v_lshrrev_b32 v8, 5, v1            ; hw
v_bfe_u32 v9, v1, 2, 2             ; r
v_bfe_u32 v10, v1, 4, 1
v_and_b32 v11, 3, v1
v_lshl_add_u32 v10, v10, 2, v11    ; cc
v_lshlrev_b32 v12, 7, v8           ; hw*128
v_lshl_add_u32 v12, v9, 4, v12     ; + r*16
v_xor_b32 v13, 1, v8
v_lshlrev_b32 v13, 7, v13
v_lshl_add_u32 v13, v9, 3, v13
v_add_u32 v13, 2048, v13
v_xor_b32 v15, 1, v8
v_lshlrev_b32 v15, 7, v15
v_add_u32 v15, {2048+64}, v15
v_and_b32 v16, 1, v10
v_lshl_add_u32 v6, v16, 6, v12
v_lshrrev_b32 v16, 1, v10
v_lshl_add_u32 v6, v16, 3, v6
v_cmp_eq_u32 vcc, 4, v10
s_nop 1
v_cndmask_b32 v6, v6, v13, vcc
v_cmp_lt_u32 vcc, 4, v10
s_nop 1
v_cndmask_b32 v6, v6, v15, vcc
v_subrev_u32 v16, 2, v10
v_and_b32 v7, 1, v16
v_lshl_add_u32 v7, v7, 6, v12
v_lshrrev_b32 v16, 1, v16
v_and_b32 v16, 1, v16
v_lshl_add_u32 v7, v16, 3, v7
v_add_u32 v7, 1024, v7
v_add_u32 v13, 32, v13
v_cmp_eq_u32 vcc, 1, v10
s_nop 1
v_cndmask_b32 v7, v7, v13, vcc
v_cmp_eq_u32 vcc, 0, v10
s_nop 1
v_cndmask_b32 v7, v7, v15, vcc
v_cmp_lt_u32 vcc, 5, v10
s_nop 1
v_cndmask_b32 v7, v7, v15, vcc
s_mul_i32 s15, {S_W}, 3072
s_add_u32 s15, s15, {VB_}
v_add_u32 v4, s15, v6
v_add_u32 v5, s15, v7
s_mul_i32 s15, {S_W}, 2560
s_add_u32 s15, s15, {KB_}
v_lshl_add_u32 v6, v1, 4, s15
s_add_u32 s15, s15, 2048
v_lshl_add_u32 v7, v1, 3, s15
v_lshrrev_b32 v8, 3, v1
s_mul_i32 s15, {S_W}, 3
v_add_u32 v8, s15, v8
v_mul_u32_u24 v8, 3072, v8
v_bfe_u32 v9, v1, 1, 2
v_lshl_add_u32 v8, v9, 8, v8
v_and_b32 v9, 1, v1
v_lshl_add_u32 v8, v9, 7, v8
v_add_u32 v8, {VB_ + 2048 + 64}, v8
v_mov_b32 v10, 0x3f80
v_mov_b32 v11, 0
v_cmp_gt_u32 vcc, 24, v1
s_and_saveexec_b64 s[66:67], vcc
ds_write_b64 v8, v[10:11]
s_mov_b64 exec, s[66:67]
v_lshlrev_b32 v2, 4, v1""")
        self.stamp("att_setup", fine=True)
        self.poll("v14")
        self.stamp("att_poll")
        a(f"""s_lshl_b32 s12, {S_T}, 2
s_add_u32 s12, s12, {S_W}
s_sub_i32 s13, 8, s12
s_max_i32 s13, s13, 0""")
        for kind in ("k", "v"):
            for i in range(3):
                sz, base, lds = (2560, WS_KF, KB_) if kind == "k" else (3072, WS_VF, VB_)
                m_lo, m_hi = (0xffffffff, 0) if kind == "k" else (0x0f0f0f0f, 0x0f0f0f0f)
                self.vm(f"""s_mul_i32 s14, {S_W}, 3
s_add_u32 s14, s14, {i}
s_lshl_b32 s15, {S_T}, 2
s_add_u32 s15, s15, s14
s_sub_i32 s15, s15, 8
s_max_i32 s15, s15, 0
s_lshl_b32 s64, {S_P}, 6
s_add_u32 s15, s15, s64
s_mul_i32 s15, s15, {sz}
s_add_u32 s15, s15, {base:#x}
s_mul_i32 s14, s14, {sz}
s_add_u32 m0, s14, {lds}
s_nop 0
buffer_load_dwordx4 v2, {WS}, s15 offen sc1 lds
s_add_u32 m0, s14, {lds + 1024}
s_add_u32 s15, s15, 1024
buffer_load_dwordx4 v2, {WS}, s15 offen sc1 lds
s_add_u32 m0, s14, {lds + 2048}
s_add_u32 s15, s15, 1024
s_mov_b32 exec_lo, {m_lo:#x}
s_mov_b32 exec_hi, {m_hi:#x}
buffer_load_dwordx4 v2, {WS}, s15 offen sc1 lds
s_mov_b64 exec, -1""", kind + "dma")
        self.tables_issue()
        self.tables_finish()
        self.waitvm("kdma", "lgkmcnt(0)")
        a("s_barrier")
        self.stamp("att_kdma")
        NEG = "0xff800000"
        KR = [0, 8, 16]
        a(f"v_mov_b32 v8, 0\nv_mov_b32 v9, {NEG}")
        for i in range(16):
            a(f"v_cndmask_b32 v{132+i}, v9, v8, s[{68+2*i}:{69+2*i}]\nv_cndmask_b32 v{148+i}, v8, v9, s[{68+2*i}:{69+2*i}]")
        for hd in range(2):
            Qx = "v[224:227]" if hd == 0 else "v[232:235]"
            Q5 = "v[236:237]" if hd == 0 else "v[238:239]"
            VA = "v4" if hd == 0 else "v5"
            def kread(b, st):
                return [f"ds_read_b128 a[{st}:{st+3}], v6 offset:{b*2560 + 1024*hd}", f"ds_read_b64 a[{st+4}:{st+5}], v7 offset:{b*2560}"]
            def qk(st, dst, c="0"):
                return [f"v_mfma_f32_32x32x16_bf16 v[{dst}:{dst+15}], a[{st}:{st+3}], {Qx}, {c}",
                        f"v_mfma_f32_32x32x8bf16_1k v[{dst}:{dst+15}], a[{st+4}:{st+5}], {Q5}, v[{dst}:{dst+15}]"]
            def vread(b, st):
                return [f"ds_read_b64_tr_b16 a[{st+4*mm+2*rd}:{st+4*mm+2*rd+1}], {VA} offset:{b*3072 + mm*512 + rd*256}" for mm in range(2) for rd in range(2)]
            ks = lambda b: KR[b % 3]
            lslow = self.lab("slow"); lnorm = self.lab("norm")
            cfor = lambda b: "v[132:147]" if b == 8 else ("v[148:163]" if b == 0 else "0")
            for x in kread(8, ks(8)) + kread(7, ks(7)): a(x)
            a("s_waitcnt lgkmcnt(2)")
            for x in qk(ks(8), 16, cfor(8)): a(x)
            if hd == 0 and not self.o.get("no_w1touch"):
                self.touch_setup(13, 60)
                for i in range(2):
                    self.touch_base("s15", 120, i, 60)
                    self.vm(f"s_add_u32 s15, s15, {WS_W1P:#x}\nbuffer_load_dword v248, v13, {WS}, s15 offen sc1", "touch")
            lend = self.lab("fe"); lfl = [self.lab("ff0"), self.lab("ff1")]
            def pv(b, first=False):
                c0 = "0" if first else "v[96:111]"
                return [f"v_mfma_f32_32x32x16_bf16 v[96:111], a[{96+8*(b%2)}:{99+8*(b%2)}], v[{80+8*(b%2)}:{83+8*(b%2)}], {c0}",
                        f"v_mfma_f32_32x32x16_bf16 v[96:111], a[{100+8*(b%2)}:{103+8*(b%2)}], v[{84+8*(b%2)}:{87+8*(b%2)}], v[96:111]"]
            for b in range(8, -1, -1):
                cur = 16 if (8 - b) % 2 == 0 else 32
                nxt = 48 - cur
                pst = 80 + 8*(b % 2)
                vst = 96 + 8*(b % 2)
                if b < 8:
                    tgt = self.lab("ffirst") if b == 7 else lfl[(b+1) % 2]
                    if b == 7: lfirst = tgt
                    a(f"s_cmp_gt_u32 s13, {b}\ns_cbranch_scc1 {tgt}")
                p_ = pv(b+1, first=(b == 7)) if b < 8 else []
                q_ = qk(ks(b-1), nxt, cfor(b-1)) if b > 0 else []
                mf = []
                for k in range(2):
                    if k < len(p_): mf.append(p_[k])
                    if k < len(q_): mf.append(q_[k])
                a("s_waitcnt lgkmcnt(0)")
                lds = vread(b, vst) + (kread(b-2, ks(b-2)) if b - 2 >= 0 else [])
                va = []
                for i in range(16):
                    va.append(f"v_exp_f32 v{cur+i}, v{cur+i}")
                    if i % 2 == 1 and i >= 3:
                        j = (i - 3)//2
                        va.append(f"v_cvt_pk_bf16_f32 v{pst+j}, v{cur+2*j}, v{cur+2*j+1}")
                va.append(f"v_cvt_pk_bf16_f32 v{pst+7}, v{cur+14}, v{cur+15}")
                vi = li = 0
                for k, mm in enumerate(mf):
                    a(mm)
                    for _ in range(3):
                        if vi < len(va): a(va[vi]); vi += 1
                    if k >= 1:
                        for _ in range(2):
                            if li < len(lds): a(lds[li]); li += 1
                while li < len(lds): a(lds[li]); li += 1
                while vi < len(va): a(va[vi]); vi += 1
            a(f"{lfl[0]}:\ns_waitcnt lgkmcnt(0)")
            for x in pv(0): a(x)
            a(f"s_branch {lend}\n{lfl[1]}:\ns_waitcnt lgkmcnt(0)")
            for x in pv(1): a(x)
            a(f"s_branch {lend}\n{lfirst}:\ns_waitcnt lgkmcnt(0)")
            for x in pv(0, first=True): a(x)
            a(f"{lend}:\ns_nop 7\ns_nop 7")
            lreg = 104 if hd == 0 else 96
            a(f"""v_mov_b32 v8, v{lreg}
v_mov_b32 v9, v{lreg}
s_nop 1
v_permlane32_swap_b32 v8, v9
v_mov_b32 v10, {f2h(2.0**-40)}
v_mov_b32 v11, {f2h(2.0**40)}
v_cmp_nle_f32 vcc, v10, v{9 if hd == 0 else 8}
v_cmp_nle_f32 s[66:67], v{9 if hd == 0 else 8}, v11
s_nop 3
s_or_b64 vcc, vcc, s[66:67]
s_cmp_eq_u64 vcc, 0
s_cbranch_scc0 {lslow}
{lnorm}:""")
            a(f"v_rcp_f32 v8, v{9 if hd == 0 else 8}\ns_nop 0")
            for i in range(12):
                a(f"v_mul_f32 v{96+i}, v8, v{96+i}")
            d0 = 120 if hd == 0 else 126
            for j in range(6):
                a(f"v_cvt_pk_bf16_f32 v{d0+j}, v{96+2*j}, v{97+2*j}")
            self.stamp(f"att_h{hd}", fine=True)
            self.att_slow.append((hd, lslow, lnorm))
        self.vm(f"""v_lshrrev_b32 v9, 5, v1
v_cmp_eq_u32 vcc, 1, v9
v_and_b32 v10, 15, v1
v_bfe_u32 v11, v1, 4, 1
v_cndmask_b32 v124, v124, v126, vcc
v_cndmask_b32 v125, v125, v127, vcc
s_lshl_b32 s14, s12, 1
v_add_u32 v11, s14, v11
v_mul_u32_u24 v11, 20480, v11
v_lshl_add_u32 v11, v10, 4, v11
v_lshl_add_u32 v12, v9, 8, v11
s_lshl_b32 s14, {S_P}, 10
s_add_u32 s14, s14, {WS_OF:#x}
buffer_store_dwordx4 v[120:123], v12, {WS}, s14 offen sc1
buffer_store_dwordx4 v[128:131], v12, {WS}, s14 offen offset:512 sc1
s_and_b32 s15, {S_P}, 1
v_xor_b32 v9, s15, v9
v_lshl_add_u32 v11, v9, 3, v11
s_lshr_b32 s14, {S_P}, 2
s_add_u32 s14, s14, 16
s_lshl_b32 s14, s14, 10
s_and_b32 s15, {S_P}, 3
s_lshl_b32 s15, s15, 8
s_add_u32 s14, s14, s15
s_add_u32 s14, s14, {WS_OF:#x}
buffer_store_dwordx2 v[124:125], v11, {WS}, s14 offen sc1""", "ost")
        self.stamp("att_done", fine=True)
        self.waitvm("ost")
        a(f"""s_barrier
s_lshl_b32 s12, {S_P}, 4
s_add_u32 s12, s12, {S_T}""")
        self.flag_store(2, "s12")

    def att_slow_paths(self):
        a = self.a
        NEG = "0xff800000"
        KR = [0, 8, 16]
        for (hd, lslow, lnorm) in self.att_slow:
            Qx = "v[224:227]" if hd == 0 else "v[232:235]"
            Q5 = "v[236:237]" if hd == 0 else "v[238:239]"
            VA = "v4" if hd == 0 else "v5"
            def kread(b, st):
                return [f"ds_read_b128 a[{st}:{st+3}], v6 offset:{b*2560 + 1024*hd}", f"ds_read_b64 a[{st+4}:{st+5}], v7 offset:{b*2560}"]
            def qk(st, dst, c="0"):
                return [f"v_mfma_f32_32x32x16_bf16 v[{dst}:{dst+15}], a[{st}:{st+3}], {Qx}, {c}",
                        f"v_mfma_f32_32x32x8bf16_1k v[{dst}:{dst+15}], a[{st+4}:{st+5}], {Q5}, v[{dst}:{dst+15}]"]
            def vread(b, st):
                return [f"ds_read_b64_tr_b16 a[{st+4*mm+2*rd}:{st+4*mm+2*rd+1}], {VA} offset:{b*3072 + mm*512 + rd*256}" for mm in range(2) for rd in range(2)]
            ks = lambda b: KR[b % 3]
            a(f"{lslow}:\ns_waitcnt lgkmcnt(0)\ns_nop 7\ns_nop 7")
            if self.o.get("cnt_slow"):
                a(f"v_mov_b32 v10, {4 + 4*hd}\nv_mov_b32 v11, 1\ns_mov_b64 exec, 1\nbuffer_atomic_add v11, v10, {DBG}, 0 offen\ns_mov_b64 exec, -1")
            for x in kread(8, ks(8)) + kread(0, ks(0)) + kread(7, ks(7)): a(x)
            a("s_waitcnt lgkmcnt(4)")
            for x in qk(ks(8), 32): a(x)
            a("s_waitcnt lgkmcnt(2)")
            for x in qk(ks(0), 16): a(x)
            for x in kread(6, ks(6)): a(x)
            l1 = self.lab("s1")
            a(f"s_nop 7\ns_nop 4\ns_cmp_eq_u32 s13, 0\ns_cbranch_scc1 {l1}")
            for i in range(16): a(f"v_mov_b32 v{16+i}, {NEG}")
            a(f"{l1}:")
            for i in range(16):
                a(f"v_cndmask_b32 v{48+i}, v{16+i}, v{32+i}, s[{68+2*i}:{69+2*i}]")
            a("s_waitcnt lgkmcnt(2)")
            for x in qk(ks(7), 16): a(x)
            a("v_max3_f32 v8, v48, v49, v50")
            for i in range(3, 15, 2):
                a(f"v_max3_f32 v8, v8, v{48+i}, v{49+i}")
            a("v_max_f32 v8, v8, v63")
            ld = self.lab("p1d")
            for b in range(7, 0, -1):
                cur = 16 if (7 - b) % 2 == 0 else 32
                nxt = 48 - cur
                a(f"s_cmp_gt_u32 s13, {b}\ns_cbranch_scc1 {ld}")
                if b - 2 >= 1:
                    for x in kread(b-2, ks(b-2)): a(x)
                if b > 1:
                    a(f"s_waitcnt lgkmcnt({2 if b-2 >= 1 else 0})")
                    m = qk(ks(b-1), nxt)
                    a(m[0])
                    for i in range(0, 8, 2): a(f"v_max3_f32 v8, v8, v{cur+i}, v{cur+i+1}")
                    a(m[1])
                    for i in range(8, 16, 2): a(f"v_max3_f32 v8, v8, v{cur+i}, v{cur+i+1}")
                else:
                    a("s_nop 7\ns_nop 3")
                    for i in range(0, 16, 2): a(f"v_max3_f32 v8, v8, v{cur+i}, v{cur+i+1}")
            a(f"{ld}:")
            a("s_waitcnt lgkmcnt(0)")
            for x in kread(7, ks(7)) + vread(8, 96) + vread(0, 104) + kread(6, ks(6)): a(x)
            a(f"""v_mov_b32 v9, v8
s_nop 1
v_permlane32_swap_b32 v8, v9
v_max_f32 v8, v8, v9
v_sub_f32 v9, 0, v8""")
            for i in range(16): a(f"v_mov_b32 v{64+i}, v9")
            a("s_waitcnt lgkmcnt(10)")
            m = qk(ks(7), 16, "v[64:79]")
            a(m[0])
            for i in range(16):
                a(f"v_add_f32 v{48+i}, v{48+i}, v9")
                if i == 7: a(m[1])
            for i in range(16):
                a(f"v_exp_f32 v{48+i}, v{48+i}")
            for j in range(8):
                a(f"v_cvt_pk_bf16_f32 v{80+j}, v{48+2*j}, v{49+2*j}")
            for j in range(8):
                a(f"v_and_b32 v{88+j}, v{112+j}, v{80+j}")
            a("s_waitcnt lgkmcnt(2)")
            a(f"v_mfma_f32_32x32x16_bf16 v[96:111], a[96:99], v[88:91], 0")
            for j in range(4):
                a(f"v_xor_b32 v{80+j}, v{80+j}, v{88+j}")
            a(f"v_mfma_f32_32x32x16_bf16 v[96:111], a[100:103], v[92:95], v[96:111]")
            for j in range(4, 8):
                a(f"v_xor_b32 v{80+j}, v{80+j}, v{88+j}")
            l2 = self.lab("v0")
            a(f"s_cmp_eq_u32 s13, 0\ns_cbranch_scc0 {l2}")
            a(f"v_mfma_f32_32x32x16_bf16 v[96:111], a[104:107], v[80:83], v[96:111]")
            a(f"v_mfma_f32_32x32x16_bf16 v[96:111], a[108:111], v[84:87], v[96:111]")
            a(f"{l2}:")
            lend = self.lab("p2e"); lfl = [self.lab("fl0"), self.lab("fl1")]
            pv = lambda b: [f"v_mfma_f32_32x32x16_bf16 v[96:111], a[{96+8*(b%2)}:{99+8*(b%2)}], v[{80+8*(b%2)}:{83+8*(b%2)}], v[96:111]",
                            f"v_mfma_f32_32x32x16_bf16 v[96:111], a[{100+8*(b%2)}:{103+8*(b%2)}], v[{84+8*(b%2)}:{87+8*(b%2)}], v[96:111]"]
            for b in range(7, 0, -1):
                cur = 16 if (7 - b) % 2 == 0 else 32
                nxt = 48 - cur
                pst = 80 + 8*(b % 2)
                vst = 96 + 8*(b % 2)
                tgt = lend if b == 7 else lfl[(b+1) % 2]
                a(f"s_cmp_gt_u32 s13, {b}\ns_cbranch_scc1 {tgt}")
                mf = (pv(b+1) if b < 7 else []) + (qk(ks(b-1), nxt, "v[64:79]") if b > 1 else [])
                a("s_waitcnt lgkmcnt(0)")
                lds = vread(b, vst) + (kread(b-2, ks(b-2)) if b - 2 >= 1 else [])
                va = []
                for i in range(16):
                    va.append(f"v_exp_f32 v{cur+i}, v{cur+i}")
                    if i % 2 == 1 and i >= 3:
                        j = (i - 3)//2
                        va.append(f"v_cvt_pk_bf16_f32 v{pst+j}, v{cur+2*j}, v{cur+2*j+1}")
                va.append(f"v_cvt_pk_bf16_f32 v{pst+7}, v{cur+14}, v{cur+15}")
                vi = li = 0
                for k, mm in enumerate(mf):
                    a(mm)
                    for _ in range(3):
                        if vi < len(va): a(va[vi]); vi += 1
                    if k >= len(mf) - 2 or len(mf) <= 2:
                        for _ in range(3):
                            if li < len(lds): a(lds[li]); li += 1
                while li < len(lds): a(lds[li]); li += 1
                while vi < len(va): a(va[vi]); vi += 1
            a(f"{lfl[1]}:\ns_waitcnt lgkmcnt(0)")
            for x in pv(1): a(x)
            a(f"s_branch {lend}\n{lfl[0]}:\ns_waitcnt lgkmcnt(0)")
            for x in pv(0): a(x)
            a(f"{lend}:\ns_nop 7\ns_nop 7")
            lreg = 104 if hd == 0 else 96
            a(f"""v_mov_b32 v8, v{lreg}
v_mov_b32 v9, v{lreg}
s_nop 1
v_permlane32_swap_b32 v8, v9
s_nop 1
s_branch {lnorm}""")

    def phase_wo(self):
        a = self.a
        SCR = 0
        a("; ---- phase 3: W_o ----")
        a(f"""v_lshlrev_b32 v2, 4, v1
s_lshl_b32 s77, {S_W}, 10
s_mul_i32 s76, {S_V}, 102400
s_add_u32 s76, s76, {WS_WOP:#x}
s_add_u32 s76, s76, s77
s_mul_i32 s78, {S_J}, 122880
s_add_u32 s78, s78, {WS_W1P:#x}
s_add_u32 s78, s78, s77""")
        for x in self.wave_dma("s76", "s77", 0, 5, 1024, first=80): self.vm(x, "wo")
        a(f"""v_and_b32 v8, 15, v1
v_lshlrev_b32 v8, 4, v8
s_lshr_b32 s12, {S_U}, 1
v_add_u32 v8, s12, v8
v_lshlrev_b32 v8, 7, v8
v_add_u32 v14, {WS_FLAGS + 2*0x8000:#x}, v8
s_and_b32 s12, {S_W}, 1
s_lshl_b32 s12, s12, 1
s_lshl_b32 s13, {S_U}, 2
s_add_u32 s12, s12, s13
s_lshr_b32 s13, {S_W}, 1
s_add_u32 {S_TGF}, s12, s13
s_xor_b32 s13, s13, 1
s_add_u32 {S_TG1}, s12, s13""")
        self.srd(SA, P_X, 2048*1280)
        a(f"""v_and_b32 v8, 15, v1
s_lshl_b32 s12, {S_TGF}, 4
v_add_u32 v8, s12, v8
v_mul_u32_u24 v8, 1280, v8
v_lshrrev_b32 v9, 4, v1
v_lshl_add_u32 v15, v9, 3, v8     ; row*1280 + q*8
s_mul_i32 s12, {S_V}, 160""")
        for j in range(5):
            self.vm(f"buffer_load_dwordx2 v[{104+2*j}:{105+2*j}], v15, {SA}, s12 offen offset:{32*j}", "xt")
        w1a = self.wave_dma("s78", "s77", W1B, 12, 1024, first=72)
        for x in w1a: self.vm(x, "w1a")
        a(f"""s_lshr_b32 s13, {S_W}, 1
s_mul_i32 s13, s13, 51200
v_add_u32 v4, s13, v2""")
        self.stamp("wo_pre", fine=True)
        self.poll("v14", drain="wo", extra="lgkmcnt(0)")
        self.stamp("wo_poll")
        a(f"""s_lshr_b32 s13, {S_W}, 1
s_mul_i32 s12, {S_TGF}, 20480
s_add_u32 s12, s12, {WS_OF:#x}
s_mul_i32 s14, {S_TG1}, 20480
s_add_u32 s14, s14, {WS_OF:#x}
s_lshl_b32 s15, s13, 13
s_add_u32 s64, s12, s15
s_add_u32 s65, s14, s15
s_lshl_b32 s15, s13, 11
s_add_u32 s15, s15, 16384
s_add_u32 s12, s12, s15
s_add_u32 s14, s14, s15""")
        def oload(sl):
            out = ""
            for u in range(2):
                st = (u*10 + sl)*4
                if sl < 8:
                    so = "s64" if u == 0 else "s65"
                    if sl == 4: out += f"s_add_u32 {so}, {so}, 4096\n"
                    out += f"buffer_load_dwordx4 a[{st}:{st+3}], v2, {WS}, {so} offen offset:{(sl%4)*1024} sc1\n"
                else:
                    so = "s12" if u == 0 else "s14"
                    out += f"buffer_load_dwordx4 a[{st}:{st+3}], v2, {WS}, {so} offen offset:{(sl-8)*1024} sc1\n"
            return out
        for sl in range(10): self.vm(oload(sl), f"o{sl}")
        def aread(sl):
            st = 16 + 20*(sl % 2)
            return [f"ds_read_b128 v[{st+4*j}:{st+4*j+3}], v4 offset:{sl*5120 + j*1024}" for j in range(5)]
        for x in aread(0): a(x)
        for sl in range(10):
            nxt = aread(sl+1) if sl < 9 else []
            self.waitvm(f"o{sl}", "lgkmcnt(0)")
            st = 16 + 20*(sl % 2)
            ni = 0
            for j in range(5):
                for u in range(2):
                    acc = 64 + (u*5 + j)*4
                    b = (u*10 + sl)*4
                    c = f"v[{acc}:{acc+3}]" if sl else "0"
                    a(f"v_mfma_f32_16x16x32_bf16 v[{acc}:{acc+3}], v[{st+4*j}:{st+4*j+3}], a[{b}:{b+3}], {c}")
                    if ni < len(nxt): a(nxt[ni]); ni += 1
        self.stamp("wo_main")
        a(f"""s_mul_i32 s12, {S_W}, 5120
s_add_u32 s12, s12, {SCR}
v_add_u32 v8, s12, v2
s_xor_b32 s12, {S_W}, 2
s_mul_i32 s12, s12, 5120
s_add_u32 s12, s12, {SCR}
v_add_u32 v9, s12, v2
v_lshrrev_b32 v10, 4, v1
v_lshlrev_b32 v11, 4, v10
v_add_u32 v11, {PT_GA}, v11
v_lshlrev_b32 v12, 3, v10
s_mul_i32 s12, {S_V}, 160
s_add_u32 s12, s12, {PT_G2B}
v_add_u32 v12, s12, v12
s_barrier""")
        for j in range(5):
            a(f"ds_write_b128 v8, v[{84+4*j}:{87+4*j}] offset:{1024*j}")
        for j in range(5):
            a(f"ds_read_b128 v[{36+4*j}:{39+4*j}], v11 offset:{64*j}")
        for j in range(5):
            a(f"ds_read_b128 v[{132+4*j}:{135+4*j}], v11 offset:{PT_G2 - PT_GA + 64*j}")
        a("s_waitcnt lgkmcnt(10)\ns_barrier")
        for j in range(5):
            a(f"ds_read_b128 v[{16+4*j}:{19+4*j}], v9 offset:{1024*j}")
        for j in range(5):
            a(f"ds_read_b64 v[{152+2*j}:{153+2*j}], v12 offset:{32*j}")
            a(f"ds_read_b64 v[{162+2*j}:{163+2*j}], v12 offset:{PT_S2B - PT_G2B + 32*j}")
        self.waitvm("xt", "lgkmcnt(15)")
        for j in range(5):
            for d in range(2):
                x = 104 + 2*j + d
                a(f"""v_lshlrev_b32 v{172+4*j+2*d}, 16, v{x}
v_and_b32 v{172+4*j+2*d+1}, 0xffff0000, v{x}
v_fmac_f32 v{172+4*j+2*d}, v{36+4*j+2*d}, v{64+4*j+2*d}
v_fmac_f32 v{172+4*j+2*d+1}, v{36+4*j+2*d+1}, v{64+4*j+2*d+1}""")
        a("s_waitcnt lgkmcnt(10)")
        for j in range(5):
            for d in range(2):
                u0, u1 = 172+4*j+2*d, 172+4*j+2*d+1
                a(f"""v_fmac_f32 v{u0}, v{36+4*j+2*d}, v{16+4*j+2*d}
v_fmac_f32 v{u1}, v{36+4*j+2*d+1}, v{16+4*j+2*d+1}
v_cvt_pk_bf16_f32 v{214+2*j+d}, v{u0}, v{u1}
v_mul_f32 v{u0}, v{u0}, v{132+4*j+2*d}
v_mul_f32 v{u1}, v{u1}, v{132+4*j+2*d+1}
v_cvt_pk_bf16_f32 v{84+2*j+d}, v{u0}, v{u1}""")
        self.vm(f"""s_lshr_b32 s12, {S_TGF}, 1            ; tb
s_and_b32 s13, {S_TGF}, 1
s_lshl_b32 s13, s13, 4
v_and_b32 v8, 15, v1
v_add_u32 v8, s13, v8              ; tok32
v_lshrrev_b32 v13, 1, v10
v_and_b32 v14, 1, v10
v_lshlrev_b32 v15, 4, v8
v_lshl_add_u32 v56, v13, 10, v15
v_lshl_add_u32 v56, v14, 9, v56
v_lshl_add_u32 v57, v13, 9, v15
v_lshl_add_u32 v57, v14, 3, v57
s_mul_i32 s13, s12, 40
s_mul_i32 s14, {S_V}, 5
s_add_u32 s13, s13, s14
s_lshl_b32 s13, s13, 10
s_add_u32 s13, s13, {WS_UF:#x}
buffer_store_dwordx4 v[84:87], v56, {WS}, s13 offen sc1
buffer_store_dwordx4 v[88:91], v56, {WS}, s13 offen offset:2048 sc1
s_add_u32 s13, s13, 4096
buffer_store_dwordx2 v[92:93], v57, {WS}, s13 offen sc1""", "ust")
        a("""s_waitcnt lgkmcnt(0)
v_mov_b32 v58, 0x3f803f80""")
        for k in range(6): a(f"v_mov_b32 v{96+k}, 0")
        for jd in range(10):
            up, tp = 214 + jd, 84 + jd
            a(f"""v_dot2_f32_bf16 v96, v{up}, v58, v96
v_dot2_f32_bf16 v97, v{up}, v{up}, v97
v_dot2_f32_bf16 v98, v{tp}, v58, v98
v_dot2_f32_bf16 v99, v{tp}, v{tp}, v99
v_dot2_f32_bf16 v100, v{tp}, v{152+jd}, v100
v_dot2_f32_bf16 v101, v{tp}, v{162+jd}, v101""")
        self.vm(f"""v_mov_b32 v102, 0
s_nop 2
v_permlane32_swap_b32 v96, v97
v_permlane32_swap_b32 v98, v99
v_permlane32_swap_b32 v100, v101
v_add_f32 v96, v96, v97
v_add_f32 v98, v98, v99
v_add_f32 v100, v100, v101
v_lshlrev_b32 v15, 5, v8
v_lshl_add_u32 v15, v10, 2, v15
v_permlane16_swap_b32 v96, v98
v_permlane16_swap_b32 v100, v102
s_lshl_b32 s13, s12, 3
s_add_u32 s13, s13, {S_V}
s_lshl_b32 s13, s13, 10
s_add_u32 s13, s13, {WS_ST:#x}
v_add_f32 v96, v96, v98
v_add_f32 v100, v100, v102
buffer_store_dword v96, v15, {WS}, s13 offen sc1
buffer_store_dword v100, v15, {WS}, s13 offen offset:16 sc1""", "ust")
        dma = self.wave_dma("s78", "s77", W1B, 18, 1024, first=0)
        self.stamp("wo_epi", fine=True)
        self.waitvm("ust")
        a(f"""s_barrier
s_lshl_b32 s12, {S_U}, 3
s_add_u32 s12, s12, {S_V}""")
        self.flag_store(3, "s12")
        self.stamp("wo_flag", fine=True)
        for x in dma: self.vm(x, "w1b")

    def phase_w1(self):
        a = self.a
        a("; ---- phase 4: W1 ----")
        a(f"""v_lshlrev_b32 v2, 4, v1
v_add_u32 v4, {W1B}, v2
v_add_u32 v5, {W1B + 20*3072}, v2""")
        def aoff(s, t):
            return ("v4", s*3072 + t*1024) if s < 20 else ("v5", (s-20)*3072 + t*1024)
        a(f"""v_mul_u32_u24 v8, 20, v1
v_add_u32 v8, {PT_G2B}, v8""")
        for d in range(5):
            a(f"ds_read_b32 v{16+d}, v8 offset:{4*d}\nds_read_b32 v{24+d}, v8 offset:{PT_S2B - PT_G2B + 4*d}")
        a("v_mov_b32 v58, 0x3f803f80")
        for k in range(5): a(f"v_mov_b32 v{148+k}, 0")
        a("s_waitcnt lgkmcnt(0)")
        for d in range(5):
            a(f"""v_dot2_f32_bf16 v148, v{16+d}, v58, v148
v_dot2_f32_bf16 v149, v{16+d}, v{16+d}, v149
v_dot2_f32_bf16 v150, v{16+d}, v{24+d}, v150
v_dot2_f32_bf16 v151, v{24+d}, v58, v151
v_dot2_f32_bf16 v152, v{24+d}, v{24+d}, v152""")
        for ror in (1, 2, 4, 8):
            for k in range(5):
                a(f"v_add_f32_dpp v{148+k}, v{148+k}, v{148+k} row_ror:{ror} row_mask:0xf bank_mask:0xf")
        for k in range(5): a(f"v_mov_b32 v{16+k}, v{148+k}")
        for k in range(5): a(f"v_permlane16_swap_b32 v{148+k}, v{16+k}")
        for k in range(5): a(f"v_add_f32 v{148+k}, v{148+k}, v{16+k}")
        for k in range(5): a(f"v_mov_b32 v{16+k}, v{148+k}")
        for k in range(5): a(f"v_permlane32_swap_b32 v{148+k}, v{16+k}")
        for k in range(5): a(f"v_add_f32 v{148+k}, v{148+k}, v{16+k}")
        a(f"""v_and_b32 v8, 15, v1               ; col
v_lshrrev_b32 v9, 4, v1            ; G
v_xor_b32 v10, v8, v9
v_and_b32 v10, 1, v10
v_lshrrev_b32 v11, 1, v8           ; vec
v_cmp_eq_u32 vcc, 0, v10
v_cmp_gt_u32 s[66:67], 2, v11
s_nop 1
s_and_b64 s[66:67], s[66:67], vcc
v_mov_b32 v12, 0
v_mov_b32 v13, -1
v_cndmask_b32 v104, v12, v13, s[66:67]     ; and-mask
v_cmp_eq_u32 s[66:67], 2, v11
s_nop 1
s_and_b64 s[66:67], s[66:67], vcc
v_mov_b32 v13, 0x3f803f80
v_cndmask_b32 v105, v12, v13, s[66:67]     ; or-constant
v_and_b32 v11, 1, v11
v_mul_u32_u24 v11, {PT_S2B - PT_G2B}, v11
v_lshrrev_b32 v9, 1, v9            ; h
v_lshl_add_u32 v106, v9, 3, v11
v_add_u32 v106, {PT_G2B}, v106
v_lshl_add_u32 v107, v9, 4, v11
v_add_u32 v107, {PT_G2B}, v107""")
        self.waitvm("w1b")
        a("s_barrier")
        self.stamp("w1_wland")
        labs = [self.lab(f"gsc{w}") for w in range(4)]
        lend = self.lab("gsce")
        for w in range(1, 4):
            a(f"s_cmp_eq_u32 {S_W}, {w}\ns_cbranch_scc1 {labs[w]}")
        for w in range(4):
            a(f"{labs[w]}:")
            def rd_(si):
                s = 10*w + si
                st = 16 + 16*(si % 2)
                Vp, i = divmod(s, 5)
                out = []
                if i < 4:
                    k0 = 80*Vp + 32*(i >> 1) + 8*(i & 1)
                    out += [f"ds_read_b64 v[{st+12}:{st+13}], v106 offset:{2*k0}", f"ds_read_b64 v[{st+14}:{st+15}], v106 offset:{2*(k0+16)}"]
                else:
                    k0 = 80*Vp + 64
                    out += [f"ds_read_b64 v[{st+12}:{st+13}], v107 offset:{2*k0}", f"ds_read_b64 v[{st+14}:{st+15}], v107 offset:{2*(k0+4)}"]
                for t in range(3):
                    b, off = aoff(s, t)
                    out.append(f"ds_read_b128 v[{st+4*t}:{st+4*t+3}], {b} offset:{off}")
                return out
            for x in rd_(0): a(x)
            for si in range(10):
                st = 16 + 16*(si % 2)
                if si < 9:
                    for x in rd_(si+1): a(x)
                    a("s_waitcnt lgkmcnt(5)")
                else:
                    a("s_waitcnt lgkmcnt(0)")
                for d in range(4):
                    a(f"v_and_or_b32 v{st+12+d}, v{st+12+d}, v104, v105")
                for t in range(3):
                    c = f"v[{48+4*t}:{51+4*t}]" if si else "0"
                    a(f"v_mfma_f32_16x16x32_bf16 v[{48+4*t}:{51+4*t}], v[{st+4*t}:{st+4*t+3}], v[{st+12}:{st+15}], {c}")
            if w < 3: a(f"s_branch {lend}")
        a(f"""{lend}:
v_and_b32 v8, 15, v1
v_lshrrev_b32 v9, 4, v1
v_lshrrev_b32 v10, 1, v8
v_mul_u32_u24 v10, 384, v10
v_and_b32 v11, 1, v8
v_lshl_add_u32 v10, v11, 6, v10
v_lshl_add_u32 v10, v9, 4, v10
s_mul_i32 s12, {S_W}, 1152
s_add_u32 s12, s12, {PT_PART}
v_add_u32 v10, s12, v10
v_cmp_gt_u32 vcc, 6, v8
s_and_saveexec_b64 s[66:67], vcc
s_nop 4""")
        for t in range(3):
            a(f"ds_write_b128 v10, v[{48+4*t}:{51+4*t}] offset:{128*t}")
        a(f"""s_mov_b64 exec, s[66:67]
s_waitcnt lgkmcnt(0)
s_barrier
v_lshlrev_b32 v8, 4, v0
v_cmp_gt_u32 vcc, 72, v0
s_and_saveexec_b64 s[66:67], vcc
v_add_u32 v9, {PT_PART}, v8
ds_read_b128 v[16:19], v9
ds_read_b128 v[20:23], v9 offset:1152
ds_read_b128 v[24:27], v9 offset:2304
ds_read_b128 v[28:31], v9 offset:3456
s_waitcnt lgkmcnt(0)""")
        for e in range(4):
            a(f"v_add_f32 v{16+e}, v{16+e}, v{20+e}\nv_add_f32 v{24+e}, v{24+e}, v{28+e}\nv_add_f32 v{16+e}, v{16+e}, v{24+e}")
        a(f"""v_add_u32 v9, {PT_VEC}, v8
ds_write_b128 v9, v[16:19]
s_mov_b64 exec, s[66:67]""")
        a(f"""v_and_b32 v8, 15, v1
s_lshl_b32 s12, {S_T1}, 4
v_add_u32 v8, s12, v8
v_lshlrev_b32 v8, 7, v8
v_add_u32 v14, {WS_FLAGS + 3*0x8000:#x}, v8
v_lshlrev_b32 v2, 4, v1""")
        self.stamp("w1_gsc", fine=True)
        self.poll("v14", extra="lgkmcnt(0)")
        self.stamp("w1_poll")
        a(f"""s_lshl_b32 s12, {S_T1}, 2
s_add_u32 s12, s12, {S_W}          ; tb
s_mul_i32 s13, s12, 40960
s_add_u32 s13, s13, {WS_UF:#x}""")
        PF = self.o.get("w1_pf", 16)
        def uload(s):
            pre = "s_add_u32 s13, s13, 4096\n" if (s % 4 == 0 and s > 0) else ""
            return pre + f"buffer_load_dwordx4 a[{4*s}:{4*s+3}], v2, {WS}, s13 offen offset:{(s%4)*1024} sc1"
        for s in range(PF): self.vm(uload(s), f"u{s}")
        a(f"""s_lshl_b32 s14, s12, 13
s_add_u32 s14, s14, {WS_ST:#x}
v_and_b32 v8, 31, v1
v_lshlrev_b32 v8, 5, v8
v_lshrrev_b32 v9, 5, v1
v_lshl_add_u32 v8, v9, 4, v8""")
        for Vp in range(8):
            pre = "s_add_u32 s14, s14, 4096\n" if Vp == 4 else ""
            self.vm(pre + f"buffer_load_dwordx4 v[{116+4*Vp}:{119+4*Vp}], v8, {WS}, s14 offen offset:{(Vp%4)*1024} sc1", "st")
        def aread(s):
            st = 16 + 12*(s % 3)
            out = []
            for t in range(3):
                b, off = aoff(s, t)
                out.append(f"ds_read_b128 v[{st+4*t}:{st+4*t+3}], {b} offset:{off}")
            return out
        for x in aread(0) + aread(1): a(x)
        touches = []
        nxt_u = PF
        for s in range(40):
            self.waitvm(f"u{s}", f"lgkmcnt({3 if s < 39 else 0})")
            nxt = aread(s+2) if s + 2 < 40 else []
            st = 16 + 12*(s % 3)
            for t in range(3):
                c = f"v[{64+16*t}:{79+16*t}]" if s else "0"
                a(f"v_mfma_f32_32x32x16_bf16 v[{64+16*t}:{79+16*t}], v[{st+4*t}:{st+4*t+3}], a[{4*s}:{4*s+3}], {c}")
                for x in nxt[t:t+1]: a(x)
                if t == 0 and nxt_u < 40:
                    self.vm(uload(nxt_u), f"u{nxt_u}"); nxt_u += 1
                elif t == 0 and touches:
                    self.vm(touches.pop(0), "touch")
        self.stamp("w1_main")
        self.waitvm("st")
        for e in range(4):
            a(f"""v_add_f32 v{116+e}, v{116+e}, v{120+e}
v_add_f32 v{124+e}, v{124+e}, v{128+e}
v_add_f32 v{132+e}, v{132+e}, v{136+e}
v_add_f32 v{140+e}, v{140+e}, v{144+e}
v_add_f32 v{116+e}, v{116+e}, v{124+e}
v_add_f32 v{132+e}, v{132+e}, v{140+e}
v_add_f32 v{116+e}, v{116+e}, v{132+e}""")
        for e in range(4): a(f"v_mov_b32 v{120+e}, v{116+e}")
        for e in range(4): a(f"v_permlane32_swap_b32 v{116+e}, v{120+e}")
        inv = f2h(1/640); eps = f2h(1e-5)
        a(f"""v_mul_f32 v124, {inv}, v116                 ; m1
v_mul_f32 v125, {inv}, v118
v_fma_f32 v125, -v124, v124, v125
v_max_f32 v125, 0, v125
v_add_f32 v125, {eps}, v125
v_rsq_f32 v125, v125                        ; r1
v_fma_f32 v126, -v124, v148, v117           ; P3 - m1*Sg
v_fma_f32 v126, v126, v125, v151            ; sum h2
v_mul_f32 v126, {inv}, v126                 ; m2
v_mul_f32 v127, v124, v149                  ; m1*Sg2
v_fma_f32 v127, -2.0, v120, v127            ; m1*Sg2 - 2*P5
v_fma_f32 v127, v124, v127, v119            ; P4 - 2 m1 P5 + m1^2 Sg2
v_mul_f32 v127, v127, v125
v_fma_f32 v128, -v124, v150, v122           ; P6 - m1*Sgs
v_fma_f32 v127, 2.0, v128, v127
v_fma_f32 v127, v127, v125, v152            ; sum h2^2
v_mul_f32 v127, {inv}, v127
v_fma_f32 v127, -v126, v126, v127
v_max_f32 v127, 0, v127
v_add_f32 v127, {eps}, v127
v_rsq_f32 v127, v127                        ; r2
s_nop 0
v_mul_f32 v116, v125, v127                  ; A
v_mul_f32 v117, v116, v124
v_sub_f32 v117, 0, v117                     ; B
v_mov_b32 v118, v127                        ; C
v_mul_f32 v119, v127, v126
v_sub_f32 v119, 0, v119                     ; D""")
        kk = 2*0.7978845608028654*1.4426950408889634
        a(f"""v_lshrrev_b32 v8, 5, v1
v_lshlrev_b32 v9, 4, v8
v_add_u32 v9, {PT_B1}, v9          ; + h*16
v_and_b32 v10, 15, v1
v_bfe_u32 v11, v1, 4, 1
s_lshl_b32 s13, s12, 1
v_add_u32 v11, s13, v11             ; tg16
v_mul_u32_u24 v11, 49152, v11
v_lshl_add_u32 v11, v10, 4, v11
v_lshl_add_u32 v11, v8, 8, v11
s_mul_i32 s13, {S_J}, 3072
s_add_u32 s13, s13, {WS_HF:#x}
s_mov_b32 s14, {f2h(-kk*0.044715)}
v_mov_b32 v60, {f2h(-kk)}""")
        def vreads(qi):
            t, i = divmod(qi, 4)
            o = 128*t + 32*i
            b = 16 + 16*(qi % 2)
            return [f"ds_read_b128 v[{b}:{b+3}], v9 offset:{PT_VEC - PT_B1 + o}", f"ds_read_b128 v[{b+4}:{b+7}], v9 offset:{PT_VEC - PT_B1 + 384 + o}",
                    f"ds_read_b128 v[{b+8}:{b+11}], v9 offset:{PT_VEC - PT_B1 + 768 + o}", f"ds_read_b128 v[{b+12}:{b+15}], v9 offset:{o}"]
        for x in vreads(0): a(x)
        for qi in range(12):
            t, i = divmod(qi, 4)
            b = 16 + 16*(qi % 2)
            if qi < 11:
                for x in vreads(qi+1): a(x)
                a("s_waitcnt lgkmcnt(4)")
            else:
                a("s_waitcnt lgkmcnt(0)")
            Z = [64 + 16*t + 4*i + e for e in range(4)]
            for e in range(4): a(f"v_fma_f32 v{Z[e]}, v116, v{Z[e]}, v{b+12+e}")
            for e in range(4): a(f"v_fmac_f32 v{Z[e]}, v117, v{b+e}")
            for e in range(4): a(f"v_fmac_f32 v{Z[e]}, v118, v{b+4+e}")
            for e in range(4): a(f"v_fmac_f32 v{Z[e]}, v119, v{b+8+e}")
            for e in range(4): a(f"v_mul_f32 v{48+e}, v{Z[e]}, v{Z[e]}")
            for e in range(4): a(f"v_fma_f32 v{48+e}, v{48+e}, s14, v60")
            for e in range(4): a(f"v_mul_f32 v{48+e}, v{Z[e]}, v{48+e}")
            for e in range(4): a(f"v_exp_f32 v{48+e}, v{48+e}")
            for e in range(4): a(f"v_add_f32 v{48+e}, 1.0, v{48+e}")
            for e in range(4): a(f"v_rcp_f32 v{48+e}, v{48+e}")
            for e in range(4): a(f"v_mul_f32 v{Z[e]}, v{Z[e]}, v{48+e}")
            d = 52 + 2*i
            a(f"v_cvt_pk_bf16_f32 v{d}, v{Z[0]}, v{Z[1]}\nv_cvt_pk_bf16_f32 v{d+1}, v{Z[2]}, v{Z[3]}")
            if i % 2 == 1:
                self.vm(f"buffer_store_dwordx4 v[{52+4*(i>>1)}:{55+4*(i>>1)}], v11, {WS}, s13 offen offset:{1024*t + 512*(i>>1)} sc1", "hst")
        self.stamp("w1_epi", fine=True)
        self.waitvm("hst")
        a(f"""s_barrier
s_lshl_b32 s12, {S_T1}, 4
s_add_u32 s12, s12, {S_J}""")
        self.flag_store(4, "s12")

    def w2_dma(self, groups):
        pcs = [((kh*24 + ph)*5120 + j*1024, kh*76800 + slot*5120 + j*1024) for (kh, ph, slot) in groups for j in range(5)]
        while len(pcs) % 4: pcs.append(pcs[len(pcs) % 4])
        a = self.a
        n = len(pcs)//4
        labs = [self.lab(f"w2d{w}") for w in range(4)]
        lend = self.lab("w2de")
        for w in range(1, 4):
            a(f"s_cmp_eq_u32 {S_W}, {w}\ns_cbranch_scc1 {labs[w]}")
        a("s_nop 0")
        for w in range(4):
            a(f"{labs[w]}:")
            for x in self.lin_dma("s76", 0, pcs[w::4]): a(x)
            if w < 3: a(f"s_branch {lend}")
        a(f"{lend}:")
        self.q += ["w2"]*n

    def phase_w2(self):
        a = self.a
        SCR = 0
        a("; ---- phase 5: W2 ----")
        a(f"""v_lshlrev_b32 v2, 4, v1
s_mul_i32 s76, {S_V}, 245760
s_add_u32 s76, s76, {WS_W2P:#x}""")
        self.w2_dma([(kh, ph, ph) for ph in range(15) for kh in range(2)])
        a(f"""v_and_b32 v8, 15, v1
s_lshr_b32 s12, {S_U}, 1
s_lshl_b32 s12, s12, 4
v_add_u32 v8, s12, v8
v_lshlrev_b32 v8, 7, v8
v_add_u32 v14, {WS_FLAGS + 4*0x8000:#x}, v8
s_lshr_b32 s13, {S_W}, 1
s_mul_i32 s13, s13, 76800
v_add_u32 v4, s13, v2
v_add_u32 v5, {8*5120}, v4""")
        self.stamp("w2_dmaiss", fine=True)
        self.poll("v14", drain="w2")
        self.stamp("w2_poll")
        a(f"""s_lshr_b32 s13, {S_W}, 1
s_mul_i32 s13, s13, 24576
s_add_u32 s13, s13, {WS_HF:#x}
s_mul_i32 s12, {S_TGF}, 49152
s_add_u32 s12, s12, s13
s_mul_i32 s14, {S_TG1}, 49152
s_add_u32 s14, s14, s13""")
        PF = self.o.get("w2_pf", 8)
        def hload(ph):
            out = "s_add_u32 s12, s12, 4096\ns_add_u32 s14, s14, 4096\n" if (ph % 4 == 0 and ph > 0) else ""
            for u, so in ((0, "s12"), (1, "s14")):
                st = (u*24 + ph)*4
                out += f"buffer_load_dwordx4 a[{st}:{st+3}], v2, {WS}, {so} offen offset:{(ph%4)*1024} sc1\n"
            return out
        for ph in range(PF): self.vm(hload(ph), f"h{ph}")
        slot = lambda ph: ph if ph < 15 else ph - 15
        def aread(ph):
            st = 16 + 20*(ph % 2)
            sl = slot(ph)
            b, o = ("v4", sl*5120) if sl < 8 else ("v5", (sl-8)*5120)
            return [f"ds_read_b128 v[{st+4*j}:{st+4*j+3}], {b} offset:{o + j*1024}" for j in range(5)]
        for x in aread(0): a(x)
        nxt_h = PF
        for ph in range(24):
            if ph == 15:
                self.waitvm("w2", "lgkmcnt(0)")
                a("s_barrier")
                for x in aread(15): a(x)
            if ph in (1, 9, 15): self.stamp(f"w2_ph{ph}", fine=True)
            self.waitvm(f"h{ph}", "lgkmcnt(0)")
            nxt = aread(ph+1) if (ph < 23 and ph != 14) else []
            st = 16 + 20*(ph % 2)
            ni = 0
            for j in range(5):
                for u in range(2):
                    acc = 64 + (u*5 + j)*4
                    b = (u*24 + ph)*4
                    c = f"v[{acc}:{acc+3}]" if ph else "0"
                    a(f"v_mfma_f32_16x16x32_bf16 v[{acc}:{acc+3}], v[{st+4*j}:{st+4*j+3}], a[{b}:{b+3}], {c}")
                    if ni < len(nxt): a(nxt[ni]); ni += 1
                    if j == 3 and u == 1 and nxt_h < 24:
                        self.vm(hload(nxt_h), f"h{nxt_h}"); nxt_h += 1
            if ph == 8:
                a("s_waitcnt lgkmcnt(0)\ns_barrier")
                self.w2_dma([(kh, p2, p2 - 15) for p2 in range(15, 24) for kh in range(2)])
        self.stamp("w2_main")
        a(f"""s_mul_i32 s12, {S_W}, 5120
s_add_u32 s12, s12, {SCR}
v_add_u32 v8, s12, v2
s_xor_b32 s12, {S_W}, 2
s_mul_i32 s12, s12, 5120
s_add_u32 s12, s12, {SCR}
v_add_u32 v9, s12, v2
v_lshrrev_b32 v10, 4, v1
v_lshlrev_b32 v11, 4, v10
v_add_u32 v11, {PT_GA}, v11
s_barrier""")
        for j in range(5):
            a(f"ds_write_b128 v8, v[{84+4*j}:{87+4*j}] offset:{1024*j}")
        for j in range(5):
            a(f"ds_read_b128 v[{36+4*j}:{39+4*j}], v11 offset:{PT_B2 - PT_GA + 64*j}")
        for j in range(5):
            a(f"ds_read_b128 v[{132+4*j}:{135+4*j}], v11 offset:{PT_GB - PT_GA + 64*j}")
        self.srd(SC, P_OUT, 2048*1280)
        a(f"""v_and_b32 v8, 15, v1
s_lshl_b32 s12, {S_TGF}, 4
v_add_u32 v8, s12, v8
v_mul_u32_u24 v8, 1280, v8
v_lshl_add_u32 v15, v10, 3, v8
s_mul_i32 s12, {S_V}, 160
s_waitcnt lgkmcnt(10)
s_barrier""")
        for j in range(5):
            a(f"ds_read_b128 v[{16+4*j}:{19+4*j}], v9 offset:{1024*j}")
        a("s_waitcnt lgkmcnt(5)")
        for j in range(5):
            for e in range(4):
                a(f"v_add_f32 v{64+4*j+e}, v{64+4*j+e}, v{36+4*j+e}")
        a("s_waitcnt lgkmcnt(0)")
        for j in range(5):
            for e in range(4):
                a(f"v_add_f32 v{64+4*j+e}, v{64+4*j+e}, v{16+4*j+e}")
            for d in range(2):
                x = 214 + 2*j + d
                a(f"""v_lshlrev_b32 v56, 16, v{x}
v_and_b32 v57, 0xffff0000, v{x}
v_fmac_f32 v56, v{132+4*j+2*d}, v{64+4*j+2*d}
v_fmac_f32 v57, v{132+4*j+2*d+1}, v{64+4*j+2*d+1}
v_cvt_pk_bf16_f32 v{104+2*j+d}, v56, v57""")
            self.vm(f"buffer_store_dwordx2 v[{104+2*j}:{105+2*j}], v15, {SC}, s12 offen offset:{32*j}", "out")

    def build(self):
        a = self.a
        a.label("L_code_begin")
        self.prologue()
        self.stamp("start", real=True)
        self.stamp("t0")
        self.srd("s[72:75]", P_WQKV, 640*3840)
        self.phase0()
        self.stamp("p0_done")
        if self.stop_after >= 1:
            self.phase_qkv()
            self.stamp("qkv_pub")
        if self.stop_after >= 2:
            self.phase_att()
            self.stamp("att_pub")
        if self.stop_after >= 3:
            self.phase_wo()
            self.stamp("wo_pub")
        if self.stop_after >= 4:
            self.phase_w1()
            self.stamp("w1_pub")
        if self.stop_after >= 5:
            self.phase_w2()
            self.stamp("end")
        if self.prof:
            a("s_waitcnt vmcnt(0) lgkmcnt(0)")
            self.stamp("end", real=True)
            self.stamp_flush()
        a.label("L_end")
        a("s_endpgm")
        self.att_slow_paths()
        a.label("L_code_end")
        body = a.finish()
        hdr = open(os.path.join(os.path.dirname(os.path.abspath(__file__)), "header.txt")).read()
        return f"""{hdr}; @launch grid=(256,1,1) block=(256,1,1) lds=163840
.amdgcn_target "amdgcn-amd-amdhsa--gfx950"
.text
.globl {NAME}_kernel
.p2align 8
.type {NAME}_kernel,@function
{NAME}_kernel:
{body}
.section .rodata,"a"
.p2align 6
.amdhsa_kernel {NAME}_kernel
  .amdhsa_next_free_vgpr 512
  .amdhsa_next_free_sgpr 102
  .amdhsa_accum_offset 256
  .amdhsa_group_segment_fixed_size 0
  .amdhsa_kernarg_size 104
  .amdhsa_user_sgpr_count 2
  .amdhsa_user_sgpr_kernarg_segment_ptr 1
  .amdhsa_system_sgpr_workgroup_id_x 1
  .amdhsa_float_denorm_mode_32 3
.end_amdhsa_kernel
"""

if __name__ == "__main__":
    import argparse, json
    ap = argparse.ArgumentParser()
    ap.add_argument("-o", default=f"cdna_kernels/{NAME}.s")
    ap.add_argument("--stop", type=int, default=99)
    ap.add_argument("--prof", action="store_true")
    ap.add_argument("--opts", default="{}")
    args = ap.parse_args()
    g = G(stop_after=args.stop, prof=args.prof, opts=json.loads(args.opts))
    s = g.build()
    open(args.o, "w").write(s)
    json.dump(g.stamps, open(args.o + ".stamps.json", "w"))
    print("wrote", args.o, len(s), "bytes; nops inserted:", g.a.inserted)
```

```python
import sys, os, struct, re
sys.path.insert(0, os.path.dirname(os.path.abspath(__file__)))
from asm import Asm

NAME = "adaLN_cond__sliding_block__mixer_channel_mlp__prompt"

WS_FLAGS = 0x0
WS_MODP = 0x40000
WS_ST = 0x50000
WS_NF = 0x100000
WS_KF = 0x400000
WS_VF = 0x700000
WS_OF = 0xA00000
WS_UF = 0xD00000
WS_HF = 0x1000000
WS_TS = 0x1800000
WS_WQP = 0x2000000
WS_WOP = 0x2400000
WS_W1P = 0x2600000
WS_W2P = 0x2A00000
WS_SIZE = 0x10000000
OOB = 0x7F000000
PT = 153600
PT_GA, PT_G2, PT_GB, PT_B2, PT_B1 = PT, PT + 320, PT + 640, PT + 960, PT + 1280
PT_G2B, PT_S2B, PT_VEC, PT_PART = PT + 1664, PT + 2944, PT + 4224, PT + 5376
KB_ = 81920
VB_ = KB_ + 12*2560
PK = 128000
W1B = 30720

S_W, S_EP, S_P, S_T, S_U, S_V, S_T1, S_J = "s4", "s5", "s6", "s7", "s8", "s9", "s10", "s11"
S_TGF, S_TG1, S_R = "s42", "s43", "s3"
P_X, P_WQKV, P_WO, P_W1, P_B1, P_W2, P_B2, P_C, P_WMOD, P_OUT, P_DBG, P_WS = 16, 18, 20, 24, 26, 28, 30, 32, 34, 36, 38, 40
WS = "s[44:47]"; SA = "s[48:51]"; SB = "s[52:55]"; SC = "s[56:59]"; DBG = "s[60:63]"

def f2h(x):
    return hex(struct.unpack("<I", struct.pack("<f", x))[0])

class G:
    def __init__(self, stop_after=99, prof=False, timeout=1 << 20, opts=None):
        self.a = Asm()
        self.stop_after = stop_after
        self.prof = prof
        self.timeout = timeout
        self.nlab = 0
        self.q = []
        self.o = opts or {}
        self.stamps = []
        self.att_slow = []
    def lab(self, s):
        self.nlab += 1
        return f"L_{s}_{self.nlab}"
    def srd(self, q, ptr, size):
        b = int(q[2:q.index(":")])
        self.a(f"""s_mov_b32 s{b}, s{ptr}
s_mov_b32 s{b+1}, s{ptr+1}
s_mov_b32 s{b+2}, {size:#x}
s_mov_b32 s{b+3}, 0x00020000""")
    def vm(self, text, tag="x"):
        self.a(text)
        for l in text.split("\n"):
            if l.strip().startswith(("buffer_", "global_")):
                self.q.append(tag)
    def vmn(self, tag):
        idx = [i for i, t in enumerate(self.q) if t == tag]
        if not idx:
            return None
        return len(self.q) - 1 - idx[-1]
    def waitvm(self, tag, extra=""):
        n = self.vmn(tag)
        if n is None:
            if extra: self.a(f"s_waitcnt {extra}")
            return
        last = len(self.q) - 1 - n
        self.q = self.q[last+1:]
        if n > 63:
            n = 63
        self.a(f"s_waitcnt vmcnt({n}) {extra}".strip())
    def waitall(self, extra=""):
        self.q = []
        self.a(f"s_waitcnt vmcnt(0) {extra}".strip())
    def stamp(self, name, real=False, fine=False):
        if not self.prof or (fine and not self.o.get("fine")):
            return
        if real:
            idx = {"start": 62, "end": 63}[name]
        else:
            idx = len(self.stamps); self.stamps.append(name)
            assert idx < 61
        self.a(f"""{'s_memrealtime' if (real or self.o.get('rt')) else 's_memtime'} s[100:101]
s_waitcnt lgkmcnt(0)
v_writelane_b32 v255, s100, {idx}""")
    def stamp_flush(self):
        if not self.prof:
            return
        self.a(f"""s_lshl_b32 s12, s2, 2
s_add_u32 s12, s12, {S_W}
s_lshl_b32 s12, s12, 8
s_add_u32 s12, s12, {WS_TS:#x}
v_lshlrev_b32 v254, 2, v1
buffer_store_dword v255, v254, {WS}, s12 offen""")

    def code_touch(self):
        if self.o.get("no_ct"): return
        l = self.lab("ct")
        self.a(f"""s_cmp_lg_u32 {S_W}, 3
s_cbranch_scc1 {l}
s_lshl_b32 s64, {S_R}, 4
v_and_b32 v249, 15, v1
v_add_u32 v249, s64, v249
v_lshlrev_b32 v249, 7, v249
v_min_u32 v249, L_code_end-L_code_begin-4, v249
global_load_dword v249, v249, s[22:23]
{l}:""")

    def flag_store(self, phase, idx_sgpr):
        a = self.a
        l = self.lab("fs")
        sh = 2 if (phase == 0 and self.o.get("dense0", 0)) else 7
        a(f"""s_cmp_lg_u32 {S_W}, 0
s_cbranch_scc1 {l}
s_lshl_b32 s64, {idx_sgpr}, {sh}
s_add_u32 s64, s64, {WS_FLAGS + phase*0x8000:#x}
v_mov_b32 v252, {S_EP}
v_mov_b32 v253, 0
s_mov_b64 exec, 1
buffer_store_dword v252, v253, {WS}, s64 offen sc1
s_mov_b64 exec, -1
{l}:""")
        if phase != 5: self.code_touch()

    def poll(self, vaddrs, drain=None, extra="", wide=False):
        if not self.o.get("ppoll") and not wide:
            return self.poll_old(vaddrs, drain, extra)
        a = self.a
        v = vaddrs if isinstance(vaddrs, str) else vaddrs[0]
        l = self.lab("pl"); l2 = self.lab("pd")
        n = 4 if wide else 1
        R = [(232 + 4*i if False else 0) for i in range(4)]
        regs = [16 + 4*i for i in range(4)] if wide else [250, 251, 252, 253]
        ld = lambda r: (f"buffer_load_dwordx4 v[{r}:{r+3}], {v}, {WS}, 0 offen sc1" if wide else f"buffer_load_dword v{r}, {v}, {WS}, 0 offen sc1")
        def chk(r):
            if wide:
                return (f"v_xor_b32 v{r}, {S_EP}, v{r}\nv_xor_b32 v{r+1}, {S_EP}, v{r+1}\nv_xor_b32 v{r+2}, {S_EP}, v{r+2}\nv_xor_b32 v{r+3}, {S_EP}, v{r+3}\n"
                        f"v_or3_b32 v{r}, v{r}, v{r+1}, v{r+2}\nv_or_b32 v{r}, v{r}, v{r+3}\nv_cmp_ne_u32 vcc, 0, v{r}")
            return f"v_cmp_ne_u32 vcc, {S_EP}, v{r}"
        a(f"""s_cmp_lg_u32 {S_W}, 0
s_cbranch_scc1 {l2}
s_mov_b32 s64, 0""")
        for r in regs[:3]: a(ld(r))
        a(f"{l}:")
        for i in range(4):
            a(ld(regs[(i+3) % 4]))
            a("s_waitcnt vmcnt(3)")
            a(chk(regs[i]))
            a(f"s_nop 3\ns_cmp_eq_u64 vcc, 0\ns_cbranch_scc1 {l2}")
        a(f"""s_add_u32 s64, s64, 1
s_cmp_gt_u32 s64, {self.timeout}
s_cbranch_scc0 {l}
{l2}:""")
        if drain:
            self.waitvm(drain, extra)
        elif extra:
            a(f"s_waitcnt {extra}")
        a("s_barrier")

    def poll_old(self, vaddrs, drain=None, extra=""):
        a = self.a
        if isinstance(vaddrs, str): vaddrs = [vaddrs]
        l = self.lab("pl"); l2 = self.lab("pd")
        a(f"""s_cmp_lg_u32 {S_W}, 0
s_cbranch_scc1 {l2}
s_mov_b32 s64, 0
{l}:""")
        for i, v in enumerate(vaddrs):
            a(f"buffer_load_dword v{250+i}, {v}, {WS}, 0 offen sc1")
        a(f"""s_add_u32 s64, s64, 1
s_cmp_gt_u32 s64, {self.timeout}
s_cbranch_scc1 {l2}
s_waitcnt vmcnt(0)
v_cmp_ne_u32 vcc, {S_EP}, v250""")
        for i in range(1, len(vaddrs)):
            a(f"""v_cmp_ne_u32 s[66:67], {S_EP}, v{250+i}
s_nop 3
s_or_b64 vcc, vcc, s[66:67]""")
        a(f"""s_nop 3
s_cmp_eq_u64 vcc, 0
s_cbranch_scc1 {l2}""")
        if self.o.get("psleep"): a(f"s_sleep {self.o['psleep']}")
        a(f"""s_branch {l}
{l2}:""")
        if drain:
            self.waitvm(drain, extra)
        elif extra:
            a(f"s_waitcnt {extra}")
        a("s_barrier")

    def touch(self, srd_q, per_wave, i, cnt, dst):
        self.vm(f"""s_mul_i32 s12, {S_R}, {4*per_wave}
s_mul_i32 s13, {S_W}, {per_wave}
s_add_u32 s12, s12, s13
s_add_u32 s12, s12, {i*cnt}
s_lshl_b32 s12, s12, 7
v_lshlrev_b32 v8, 7, v1
v_mov_b32 v9, {OOB:#x}
v_cmp_gt_u32 vcc, {cnt}, v1
s_nop 1
v_cndmask_b32 v8, v9, v8, vcc
buffer_load_dword v{dst}, v8, {srd_q}, s12 offen""", "touch")
    def touch_setup(self, reg, cnt):
        self.a(f"""v_lshlrev_b32 v{reg}, 7, v1
v_mov_b32 v9, {OOB:#x}
v_cmp_gt_u32 vcc, {cnt}, v1
s_nop 1
v_cndmask_b32 v{reg}, v9, v{reg}, vcc""")
    def touch_base(self, sreg, per_wave, i, cnt):
        self.a(f"""s_mul_i32 {sreg}, {S_R}, {4*per_wave*128}
s_mul_i32 s65, {S_W}, {per_wave*128}
s_add_u32 {sreg}, {sreg}, s65
s_add_u32 {sreg}, {sreg}, {i*cnt*128}""")

    def prologue(self):
        a = self.a
        if self.prof: a("s_memrealtime s[98:99]")
        a(f"""s_cmp_ge_u32 s2, 256
s_cbranch_scc1 L_end
s_load_dwordx16 s[16:31], s[0:1], 0
s_load_dwordx8 s[32:39], s[0:1], 64
s_load_dwordx2 s[40:41], s[0:1], 96
s_getpc_b64 s[64:65]
L_pc:
s_add_u32 s64, s64, L_code_begin-L_pc
s_addc_u32 s65, s65, -1
v_and_b32 v1, 63, v0
v_lshrrev_b32 v2, 6, v0
s_lshr_b32 {S_R}, s2, 3
v_readfirstlane_b32 {S_W}, v2
s_and_b32 s13, s2, 7
s_cmp_lg_u32 {S_W}, 3
s_cbranch_scc1 L_nopf
s_lshl_b32 s14, {S_R}, 6
v_add_u32 v3, s14, v1
v_lshlrev_b32 v3, 6, v3
v_min_u32 v3, L_code_end-L_code_begin-4, v3
global_load_dword v248, v3, s[64:65]
L_nopf:
s_lshr_b32 s14, s13, 2
s_lshl_b32 s14, s14, 3
s_and_b32 s15, {S_R}, 7
s_add_u32 {S_T}, s14, s15
s_and_b32 s14, s13, 3
s_lshl_b32 s14, s14, 2
s_lshr_b32 s15, {S_R}, 3
s_add_u32 {S_P}, s14, s15
; wo / w2: U = 8*(x>>1) + (r&7), V = 4*(x&1) + (r>>3)
s_lshr_b32 s14, s13, 1
s_lshl_b32 s14, s14, 3
s_and_b32 s15, {S_R}, 7
s_add_u32 {S_U}, s14, s15
s_and_b32 s14, s13, 1
s_lshl_b32 s14, s14, 2
s_lshr_b32 s15, {S_R}, 3
s_add_u32 {S_V}, s14, s15
; w1: T1 = 4*(x>>1) + (r&3), j = 8*(x&1) + (r>>2)
s_lshr_b32 s14, s13, 1
s_lshl_b32 s14, s14, 2
s_and_b32 s15, {S_R}, 3
s_add_u32 {S_T1}, s14, s15
s_and_b32 s14, s13, 1
s_lshl_b32 s14, s14, 3
s_lshr_b32 s15, {S_R}, 2
s_add_u32 {S_J}, s14, s15""")
        if self.prof:
            a("v_mov_b32 v255, 0")
        a("s_waitcnt lgkmcnt(0)\ns_mov_b32 s22, s64\ns_mov_b32 s23, s65")
        if self.prof:
            a("v_writelane_b32 v255, s98, 61")
        self.srd(WS, P_WS, WS_SIZE)
        self.srd(DBG, P_DBG, 256)
        a(f"""s_cmp_lg_u32 s2, 0
s_cbranch_scc1 L_noep
s_cmp_lg_u32 {S_W}, 0
s_cbranch_scc1 L_noep
s_memrealtime s[66:67]
s_waitcnt lgkmcnt(0)
s_or_b32 s66, s66, 1
v_mov_b32 v3, s66
v_mov_b32 v4, 0
s_mov_b64 exec, 1
buffer_store_dword v3, v4, {DBG}, 0 offen sc1
s_mov_b64 exec, -1
L_noep:""")

    def phase0(self):
        a = self.a
        self.srd(SA, P_C, 1280)
        self.srd(SB, P_WMOD, 640*7680)
        self.srd(SC, P_X, 2048*1280)
        LDS_M = 158720
        LDS_L = 159744
        a(f"""; ---- phase 0 ----
v_and_b32 v2, 7, v1
v_lshrrev_b32 v3, 3, v1
s_mul_hi_u32 s12, s2, {(2**32 + 59)//60}
s_mul_i32 s13, s12, 60
s_sub_u32 s13, s2, s13
s_mul_i32 s14, s12, 160
s_mul_i32 s15, {S_W}, 40
s_add_u32 s14, s14, s15
v_add_u32 v4, s14, v3
v_lshlrev_b32 v5, 1, v4
s_movk_i32 s15, 7680
v_mul_lo_u32 v6, v4, s15
s_lshl_b32 s15, s13, 7
v_lshl_add_u32 v7, v2, 4, s15
v_add_u32 v6, v6, v7""")
        for j in range(5):
            self.vm(f"buffer_load_ushort v{8+j}, v5, {SA}, 0 offen offset:{16*j}", "c")
        for j in range(5):
            self.vm(f"s_mov_b32 s15, {j*8*7680}\nbuffer_load_dwordx4 v[{16+4*j}:{19+4*j}], v6, {SB}, s15 offen", f"w{j}")
        self.vm(f"""s_lshl_b32 s14, s2, 3
v_add_u32 v7, s14, v2
s_movk_i32 s15, 1280
v_mul_lo_u32 v7, v7, s15
s_mul_i32 s15, {S_W}, 20
v_add_u32 v13, s15, v3
v_lshl_add_u32 v7, v13, 4, v7
v_add_u32 v14, 256, v7
v_cmp_gt_u32 vcc, 4, v3
v_mov_b32 v15, {OOB:#x}
s_nop 0
v_cndmask_b32 v14, v15, v14, vcc
buffer_load_dwordx4 v[36:39], v7, {SC}, 0 offen
buffer_load_dwordx4 v[40:43], v7, {SC}, 0 offen offset:128
buffer_load_dwordx4 v[44:47], v14, {SC}, 0 offen""", "xrow")
        a(f"""s_sub_u32 s70, s2, 96
s_and_b32 s71, s70, 3               ; pg
s_lshr_b32 s70, s70, 2              ; sigma
s_mul_i32 s14, s71, 320
s_mul_i32 s15, s70, {16*3840}
s_add_u32 s14, s14, s15
s_cmp_ge_u32 s2, 96
s_cselect_b32 s14, s14, {OOB:#x}
s_lshl_b32 s15, {S_W}, 10""")
        for jj in range(4):
            a(f"""v_add_u32 v56, {256*jj}, v0
v_mul_u32_u24 v57, 1093, v56
v_lshrrev_b32 v57, 16, v57          ; row = c/60
v_mul_u32_u24 v58, 60, v57
v_sub_u32 v58, v56, v58             ; pos
v_mul_u32_u24 v59, 3277, v58
v_lshrrev_b32 v59, 16, v59
v_mul_u32_u24 v13, 20, v59
v_sub_u32 v58, v58, v13
v_mul_u32_u24 v57, 3840, v57
v_mul_u32_u24 v59, 1280, v59
v_lshl_add_u32 v57, v58, 4, v57
v_add_u32 v{60+jj}, v57, v59""")
        a(f"""v_mov_b32 v13, {OOB:#x}
v_cmp_gt_u32 vcc, 192, v0
s_nop 1
v_cndmask_b32 v63, v13, v63, vcc""")
        for jj in range(4):
            self.vm(f"s_add_u32 m0, s15, {4*jj*1024}\ns_nop 0\nbuffer_load_dwordx4 v{60+jj}, s[72:75], s14 offen lds", "wraw")
        self.stamp("p0_setup", fine=True)
        self.waitvm("c")
        self.stamp("p0_c", fine=True)
        for j in range(5):
            a(f"""v_lshlrev_b32 v{8+j}, 16, v{8+j}
v_mul_f32 v13, 0xbfb8aa3b, v{8+j}
v_exp_f32 v13, v13
v_add_f32 v13, 1.0, v13
v_rcp_f32 v13, v13
v_mul_f32 v13, v{8+j}, v13
v_cvt_pk_bf16_f32 v13, v13, v13
v_lshlrev_b32 v{8+j}, 16, v13""")
        for e in range(8):
            a(f"v_mov_b32 v{48+e}, 0")
        for j in range(5):
            self.waitvm(f"w{j}")
            for d in range(4):
                r = 16 + 4*j + d
                a(f"""v_lshlrev_b32 v13, 16, v{r}
v_and_b32 v15, 0xffff0000, v{r}
v_fmac_f32 v{48+2*d}, v{8+j}, v13
v_fmac_f32 v{49+2*d}, v{8+j}, v15""")
        for d in range(4):
            a(f"v_permlane32_swap_b32 v{48+2*d}, v{49+2*d}")
        for d in range(4):
            a(f"v_add_f32 v{48+2*d}, v{48+2*d}, v{49+2*d}")
        a("""v_permlane16_swap_b32 v48, v50
v_permlane16_swap_b32 v52, v54
v_add_f32 v48, v48, v50
v_add_f32 v52, v52, v54
v_add_f32_dpp v48, v48, v48 row_ror:8 row_mask:0xf bank_mask:0xf
v_add_f32_dpp v52, v52, v52 row_ror:8 row_mask:0xf bank_mask:0xf""")
        a(f"""v_lshrrev_b32 v13, 4, v1
v_and_b32 v15, 1, v13
v_lshlrev_b32 v15, 1, v15
v_lshrrev_b32 v13, 1, v13
v_add_u32 v13, v13, v15
v_bfe_u32 v15, v1, 3, 1
v_lshl_add_u32 v13, v15, 2, v13
v_lshl_add_u32 v13, v2, 3, v13
v_cmp_eq_u32 vcc, 1, v15
s_lshl_b32 s14, {S_W}, 8
s_add_u32 s14, s14, {LDS_M}
v_lshl_add_u32 v13, v13, 2, s14
v_cndmask_b32 v48, v48, v52, vcc
ds_write_b32 v13, v48""")
        self.stamp("p0_mod", fine=True)
        l = self.lab("ep0")
        a(f"""v_mov_b32 v251, 0
s_cmp_lg_u32 {S_W}, 0
s_cbranch_scc1 {l}
buffer_load_dword v250, v251, {DBG}, 0 offen sc1
{l}:""")
        self.waitvm("xrow")
        self.stamp("p0_x", fine=True)
        a("v_mov_b32 v56, 0\nv_mov_b32 v57, 0\nv_mov_b32 v58, 0x3f803f80")
        for r in range(36, 48):
            a(f"v_dot2_f32_bf16 v56, v{r}, v58, v56\nv_dot2_f32_bf16 v57, v{r}, v{r}, v57")
        a(f"""v_permlane32_swap_b32 v56, v57
v_add_f32 v56, v56, v57
v_mov_b32 v57, v56
v_permlane16_swap_b32 v56, v57
v_add_f32 v56, v56, v57
v_add_f32_dpp v56, v56, v56 row_ror:8 row_mask:0xf bank_mask:0xf
v_lshrrev_b32 v13, 5, v1
v_lshl_add_u32 v13, v13, 3, v2
v_lshlrev_b32 v13, 4, v13
s_lshl_b32 s14, {S_W}, 2
s_add_u32 s14, s14, {LDS_L}
v_add_u32 v13, s14, v13
ds_write_b32 v13, v56""")
        self.stamp("p0_lnsum", fine=True)
        self.waitvm("wraw", "lgkmcnt(0)")
        self.stamp("p0_wraw", fine=True)
        a("s_barrier")
        self.stamp("p0_bar", fine=True)
        a(f"""v_lshrrev_b32 v8, 5, v1           ; h
v_bfe_u32 v9, v1, 2, 2              ; r
v_lshl_add_u32 v9, v8, 3, v9        ; 8h + r
v_mul_u32_u24 v9, 960, v9
v_bfe_u32 v10, v1, 4, 1
v_and_b32 v11, 3, v1
v_lshl_add_u32 v10, v10, 2, v11     ; c'
v_and_b32 v11, 1, v10
v_lshl_add_u32 v9, v11, 3, v9
s_mul_i32 s14, {S_W}, 80
v_add_u32 v9, s14, v9
v_lshrrev_b32 v10, 1, v10           ; i""")
        for t in range(4):
            a(f"""v_add_u32 v11, {4*t}, v10
v_min_u32 v11, 14, v11              ; L
v_mul_u32_u24 v56, 52, v11
v_lshrrev_b32 v56, 8, v56           ; 0 K, 1 V, 2 Q
v_mul_u32_u24 v57, 5, v56
v_sub_u32 v11, v11, v57
v_add_u32 v56, 1, v56
v_cmp_eq_u32 vcc, 3, v56
v_mul_u32_u24 v56, 320, v56
v_lshl_add_u32 v11, v11, 4, v56
v_subrev_u32 v56, 960, v11
v_cndmask_b32 v11, v11, v56, vcc
v_add_u32 v11, v9, v11
ds_read_b64_tr_b16 v[{64+4*t}:{65+4*t}], v11
ds_read_b64_tr_b16 v[{66+4*t}:{67+4*t}], v11 offset:{4*960}""")
        l = self.lab("m0")
        a(f"""s_cmp_lg_u32 {S_W}, 0
s_cbranch_scc1 {l}
s_cmp_ge_u32 s2, 240
s_cbranch_scc1 {l}
v_lshlrev_b32 v13, 2, v1
v_add_u32 v15, {LDS_M}, v13
ds_read_b32 v48, v15
ds_read_b32 v49, v15 offset:256
ds_read_b32 v50, v15 offset:512
ds_read_b32 v51, v15 offset:768
s_mul_i32 s14, s12, 3840*4
s_lshl_b32 s15, s13, 8
s_add_u32 s14, s14, s15
s_add_u32 s14, s14, {WS_MODP:#x}
s_waitcnt lgkmcnt(0)
v_add_f32 v48, v48, v49
v_add_f32 v50, v50, v51
v_add_f32 v48, v48, v50
buffer_store_dword v48, v13, {WS}, s14 offen sc1
{l}:""")
        a(f"""v_lshlrev_b32 v13, 4, v2
v_add_u32 v13, {LDS_L}, v13
ds_read_b128 v[48:51], v13
ds_read_b128 v[52:55], v13 offset:128
s_waitcnt lgkmcnt(0)
v_add_f32 v48, v48, v49
v_add_f32 v50, v50, v51
v_add_f32 v52, v52, v53
v_add_f32 v54, v54, v55
v_add_f32 v48, v48, v50
v_add_f32 v52, v52, v54
v_mul_f32 v48, {f2h(1/640)}, v48
v_mul_f32 v52, {f2h(1/640)}, v52
v_fma_f32 v52, -v48, v48, v52
v_max_f32 v52, 0, v52
v_add_f32 v52, {f2h(1e-5)}, v52
v_rsq_f32 v52, v52
s_nop 0
v_mul_f32 v48, v48, v52
v_sub_f32 v48, 0, v48""")
        for r in range(36, 48):
            a(f"""v_lshlrev_b32 v13, 16, v{r}
v_and_b32 v15, 0xffff0000, v{r}
v_fma_f32 v13, v13, v52, v48
v_fma_f32 v15, v15, v52, v48
v_cvt_pk_f16_f32 v{r}, v13, v15""")
        self.vm(f"""s_mul_i32 s15, {S_W}, 20
v_add_u32 v13, s15, v3
v_lshrrev_b32 v15, 1, v13
v_lshlrev_b32 v15, 10, v15
v_and_b32 v13, 1, v13
v_lshl_add_u32 v15, v13, 9, v15
s_and_b32 s14, s2, 3
s_lshl_b32 s14, s14, 3
v_add_u32 v13, s14, v2
v_lshl_add_u32 v15, v13, 4, v15
v_add_u32 v13, 8192, v15
v_cmp_gt_u32 vcc, 4, v3
v_mov_b32 v7, {OOB:#x}
s_lshr_b32 s14, s2, 2
s_mul_i32 s14, s14, 40960
v_cndmask_b32 v13, v7, v13, vcc
s_add_u32 s14, s14, {WS_NF:#x}
buffer_store_dwordx4 v[36:39], v15, {WS}, s14 offen sc1
s_add_u32 s15, s14, 4096
buffer_store_dwordx4 v[40:43], v15, {WS}, s15 offen sc1
buffer_store_dwordx4 v[44:47], v13, {WS}, s14 offen sc1""", "nst")
        self.vm(f"""s_mul_i32 s14, s70, 3840
s_lshl_b32 s15, s71, 2
s_add_u32 s15, s15, {S_W}
s_mul_i32 s15, s15, 153600
s_add_u32 s14, s14, s15
s_add_u32 s14, s14, {WS_WQP:#x}
s_cmp_ge_u32 s2, 96
s_cselect_b32 s14, s14, {OOB:#x}
v_lshlrev_b32 v8, 4, v1
v_and_b32 v9, 31, v1
v_lshrrev_b32 v10, 5, v1
v_mul_u32_u24 v10, 24, v10
v_add_u32 v10, v10, v9
v_lshlrev_b32 v10, 4, v10
v_add_u32 v10, 3072, v10
v_mov_b32 v11, {OOB:#x}
v_cmp_gt_u32 vcc, 24, v9
s_waitcnt lgkmcnt(0)
v_cndmask_b32 v10, v11, v10, vcc
buffer_store_dwordx4 v[64:67], v8, {WS}, s14 offen sc1
buffer_store_dwordx4 v[68:71], v8, {WS}, s14 offen offset:1024 sc1
buffer_store_dwordx4 v[72:75], v8, {WS}, s14 offen offset:2048 sc1
buffer_store_dwordx4 v[76:79], v10, {WS}, s14 offen sc1""", "nst")
        self.stamp("p0_stored", fine=True)
        self.waitvm("nst")
        l = self.lab("ep"); l2 = self.lab("epd")
        a(f"""s_cmp_lg_u32 {S_W}, 0
s_cbranch_scc1 {l2}
s_mov_b32 s64, 0
{l}:
v_readfirstlane_b32 {S_EP}, v250
s_cmp_lg_u32 {S_EP}, 0
s_cbranch_scc1 {l2}
s_add_u32 s64, s64, 1
s_cmp_gt_u32 s64, {self.timeout}
s_cbranch_scc1 {l2}
buffer_load_dword v250, v251, {DBG}, 0 offen sc1
s_waitcnt vmcnt(0)
s_branch {l}
{l2}:
s_barrier""")
        self.flag_store(0, "s2")
        self.stamp("p0_flag", fine=True)
        for j in range(5):
            a(f"""v_add_u32 v12, {64*j}, v1
v_mul_u32_u24 v13, 6554, v12
v_lshrrev_b32 v13, 16, v13
v_mul_u32_u24 v14, 10, v13
v_sub_u32 v14, v12, v14
v_mul_u32_u24 v13, 1280, v13
v_lshl_add_u32 v{240+j}, v14, 4, v13""")
        for jj in range(3):
            a(f"""v_add_u32 v12, {64*jj}, v1
v_mul_u32_u24 v13, 5462, v12
v_lshrrev_b32 v13, 16, v13
v_mul_u32_u24 v14, 12, v13
v_sub_u32 v14, v12, v14
v_mul_u32_u24 v13, 3072, v13
v_lshl_add_u32 v{245+jj}, v14, 4, v13""")
        self.pack_params()
        self.pack_dma()

    def phase_qkv(self):
        a = self.a
        LDS_GS = 153600
        a("""; ---- phase 1: QKV ----
v_lshlrev_b32 v8, 7, v1
v_add_u32 v9, 64*128, v8
v_add_u32 v10, 128*128, v8
v_add_u32 v11, 192*128, v8""")
        a(f"""v_lshlrev_b32 v2, 4, v1
v_lshrrev_b32 v12, 5, v1           ; h
v_lshlrev_b32 v3, 5, v12
v_add_u32 v3, {LDS_GS}, v3          ; g/s base
v_add_u32 v4, {16*3840}, v2
v_add_u32 v5, {32*3840}, v2
v_and_b32 v13, 31, v1
v_min_u32 v13, 23, v13
v_mul_u32_u24 v12, 24, v12
v_add_u32 v12, v12, v13
v_lshlrev_b32 v12, 4, v12
v_add_u32 v6, 3072, v12
v_add_u32 v7, {16*3840}, v6
v_add_u32 v15, {32*3840}, v6
v_lshrrev_b32 v12, 2, v0
v_lshlrev_b32 v12, 7, v12
v_bfe_u32 v13, v0, 1, 1
v_lshl_add_u32 v12, v13, 6, v12
v_and_b32 v13, 1, v0
v_lshl_add_u32 v12, v13, 4, v12
v_add_u32 v14, {LDS_GS}, v12
v_lshlrev_b32 v12, 4, v0
v_mov_b32 v13, {OOB:#x}
v_cmp_gt_u32 vcc, 160, v0
s_nop 1
v_cndmask_b32 v52, v13, v12, vcc
s_lshl_b32 s12, {S_T}, 2
s_add_u32 s12, s12, {S_W}
s_mul_i32 s12, s12, 40960
s_add_u32 s12, s12, {WS_NF:#x}
s_mul_i32 s76, {S_P}, 153600
s_add_u32 s76, s76, {WS_WQP:#x}
s_lshl_b32 s77, {S_W}, 10
s_add_u32 s76, s76, s77
s_cmp_eq_u32 {S_W}, 3
s_cselect_b32 s78, 0, 12288
v_lshrrev_b32 v12, 2, v0
v_lshlrev_b32 v12, 6, v12
v_bfe_u32 v13, v0, 1, 1
v_lshl_add_u32 v12, v13, 5, v12
v_and_b32 v13, 1, v0
v_lshl_add_u32 v12, v13, 4, v12
v_add_u32 v14, {LDS_GS}, v12""")
        if self.o.get("dense0", 0):
            a("v_lshlrev_b32 v8, 4, v1")
            self.poll("v8", drain="praw", wide=True)
        else:
            self.poll_old(["v8", "v9", "v10", "v11"], drain="praw")
        self.stamp("qkv_poll")
        def wdma(g, jj):
            if jj < 3:
                pc = 15*g + 4*jj
                return f"s_add_u32 m0, s77, {pc*1024}\ns_add_u32 s79, s76, {pc*1024}\nbuffer_load_dwordx4 v2, {WS}, s79 offen sc1 lds"
            return (f"s_add_u32 s79, s78, {15*g*1024}\ns_add_u32 m0, s77, s79\ns_add_u32 s79, s76, s79\n"
                    f"buffer_load_dwordx4 v2, {WS}, s79 offen sc1 lds")
        wq = [(g, jj) for g in range(10) for jj in range(4)]
        NB = 64
        PF = self.o.get("q_pf", 8)
        def nload(s):
            pre = "s_add_u32 s12, s12, 4096\n" if (s % 4 == 0 and s > 0) else ""
            return pre + f"buffer_load_dwordx4 v[{NB+4*s}:{NB+4*s+3}], v2, {WS}, s12 offen offset:{(s%4)*1024} sc1"
        for kq in range(4):
            self.vm(f"s_mov_b32 s14, {WS_MODP + kq*15360}\nbuffer_load_dwordx4 v[{16+4*kq}:{19+4*kq}], v52, {WS}, s14 offen sc1\n"
                    f"buffer_load_dwordx4 v[{32+4*kq}:{35+4*kq}], v52, {WS}, s14 offen offset:2560 sc1", "gs")
        wi = 0
        for _ in range(4):
            self.vm(wdma(*wq[wi]), f"wg{wq[wi][0]}"); wi += 1
        self.vm(nload(0), "n0"); self.vm(nload(1), "n1")
        for _ in range(4):
            self.vm(wdma(*wq[wi]), f"wg{wq[wi][0]}"); wi += 1
        for s in range(2, PF):
            self.vm(nload(s), f"n{s}")
        for _ in range(4*self.o.get("wpre", 2)):
            self.vm(wdma(*wq[wi]), f"wg{wq[wi][0]}"); wi += 1
        self.waitvm("gs")
        for e in range(4):
            a(f"""v_add_f32 v{16+e}, v{16+e}, v{20+e}
v_add_f32 v{24+e}, v{24+e}, v{28+e}
v_add_f32 v{32+e}, v{32+e}, v{36+e}
v_add_f32 v{40+e}, v{40+e}, v{44+e}
v_add_f32 v{16+e}, v{16+e}, v{24+e}
v_add_f32 v{32+e}, v{32+e}, v{40+e}""")
        a("""v_cvt_pk_bf16_f32 v20, v16, v17
v_cvt_pk_bf16_f32 v21, v18, v19
v_cvt_pk_bf16_f32 v22, v32, v33
v_cvt_pk_bf16_f32 v23, v34, v35
v_lshlrev_b32 v16, 16, v20
v_and_b32 v17, 0xffff0000, v20
v_lshlrev_b32 v18, 16, v21
v_and_b32 v19, 0xffff0000, v21
v_lshlrev_b32 v32, 16, v22
v_and_b32 v33, 0xffff0000, v22
v_lshlrev_b32 v34, 16, v23
v_and_b32 v35, 0xffff0000, v23
v_add_f32 v32, 1.0, v32
v_add_f32 v33, 1.0, v33
v_add_f32 v34, 1.0, v34
v_add_f32 v35, 1.0, v35
v_cvt_pk_bf16_f32 v22, v32, v33
v_cvt_pk_bf16_f32 v23, v34, v35
v_lshlrev_b32 v32, 16, v22
v_and_b32 v33, 0xffff0000, v22
v_lshlrev_b32 v34, 16, v23
v_and_b32 v35, 0xffff0000, v23
v_cvt_pk_f16_f32 v36, v32, v16
v_cvt_pk_f16_f32 v37, v33, v17
v_cvt_pk_f16_f32 v38, v34, v18
v_cvt_pk_f16_f32 v39, v35, v19
v_cmp_gt_u32 vcc, 160, v0
s_and_saveexec_b64 s[66:67], vcc
ds_write_b128 v14, v[36:39]
s_mov_b64 exec, s[66:67]""")
        self.waitvm("wg0", "lgkmcnt(0)")
        a("s_barrier")
        self.stamp("qkv_gs")
        AB = 64
        GSB = 16
        def aread(s):
            st = AB + 16*(s % 3)
            rng = s // 16
            b0 = ("v2", "v4", "v5")[rng]; b3 = ("v6", "v7", "v15")[rng]
            o = (s % 16)*3840
            return [f"ds_read_b128 a[{st+4*t}:{st+4*t+3}], {b0} offset:{o + 1024*t}" for t in range(3)] + \
                   [f"ds_read_b128 a[{st+12}:{st+15}], {b3} offset:{o}"]
        def gsread(s):
            st = GSB + 8*(s % 2)
            return [f"ds_read_b128 v[{st+4*j}:{st+4*j+3}], v3 offset:{s*64+16*j}" for j in range(2)]
        def modulate(s):
            st = GSB + 8*(s % 2)
            out = []
            for d in range(4):
                r = NB + 4*s + d
                t0, t1 = 48 + 2*(d % 2), 49 + 2*(d % 2)
                out.append(f"v_fma_mix_f32 v{t0}, v{r}, v{st+2*d}, v{st+2*d} op_sel:[0,0,1] op_sel_hi:[1,1,1]")
                out.append(f"v_fma_mix_f32 v{t1}, v{r}, v{st+2*d+1}, v{st+2*d+1} op_sel:[1,0,1] op_sel_hi:[1,1,1]")
                out.append(f"v_cvt_pk_bf16_f32 v{r}, v{t0}, v{t1}")
            return out
        for x in gsread(0) + gsread(1) + aread(0): a(x)
        self.waitvm("n0", "lgkmcnt(6)")
        for x in modulate(0): a(x)
        for x in aread(1): a(x)
        nxt_n = PF
        touches = []
        for s in range(40):
            if s in (1, 10, 20, 30): self.stamp(f"qkv_s{s}", fine=True)
            if s == self.o.get("pack_at", 3):
                a("s_waitcnt lgkmcnt(0)")
                self.pack_store()
            if (s + 2) % 4 == 0 and s + 2 < 40:
                self.waitvm(f"wg{(s+2)//4}")
                a("s_barrier")
                if (s+2)//4 == 6:
                    self.flag_store(5, "s2")
            ex = "lgkmcnt(4)" if s + 1 < 40 else "lgkmcnt(0)"
            if s + 1 < 40: self.waitvm(f"n{s+1}", ex)
            else: a(f"s_waitcnt {ex}")
            lds = gsread(s+2) + aread(s+2) if s + 2 < 40 else []
            va = modulate(s+1) if s + 1 < 40 else []
            st = AB + 16*(s % 3)
            li = vi = 0
            for t in range(4):
                c = f"a[{16*t}:{16*t+15}]" if s else "0"
                a(f"v_mfma_f32_32x32x16_bf16 a[{16*t}:{16*t+15}], a[{st+4*t}:{st+4*t+3}], v[{NB+4*s}:{NB+4*s+3}], {c}")
                for _ in range(2):
                    if li < len(lds): a(lds[li]); li += 1
                for _ in range(3):
                    if vi < len(va): a(va[vi]); vi += 1
                if t == 0 and wi < 40:
                    self.vm(wdma(*wq[wi]), f"wg{wq[wi][0]}"); wi += 1
                if t == 2:
                    if nxt_n < 40:
                        self.vm(nload(nxt_n), f"n{nxt_n}"); nxt_n += 1
                    elif touches:
                        self.vm(touches.pop(0), "touch")
        self.stamp("qkv_main")
        self.f5_load()
        def quad_pack(src, dst, scale=None):
            for e in range(4):
                a(f"v_accvgpr_read_b32 v{48+e}, a{src+e}")
            if scale:
                for e in range(4):
                    a(f"v_mul_f32 v{48+e}, {scale}, v{48+e}")
            a(f"v_cvt_pk_bf16_f32 v{dst}, v48, v49\nv_cvt_pk_bf16_f32 v{dst+1}, v50, v51")
        quad_pack(0, 16); quad_pack(4, 18); quad_pack(12, 20); quad_pack(16, 22); quad_pack(8, 24)
        self.vm(f"""s_lshl_b32 s12, {S_T}, 2
s_add_u32 s12, s12, {S_W}
s_lshl_b32 s13, {S_P}, 6
s_add_u32 s12, s12, s13
s_mul_i32 s13, s12, 2560
s_add_u32 s13, s13, {WS_KF:#x}
v_lshlrev_b32 v9, 3, v1
buffer_store_dwordx4 v[16:19], v2, {WS}, s13 offen sc1
buffer_store_dwordx4 v[20:23], v2, {WS}, s13 offen offset:1024 sc1
buffer_store_dwordx2 v[24:25], v9, {WS}, s13 offen offset:2048 sc1""", "kvst")
        quad_pack(20, 28); quad_pack(24, 30); quad_pack(28, 32); quad_pack(32, 36); quad_pack(36, 38)
        self.vm(f"""v_bfe_u32 v10, v1, 2, 3          ; a
v_and_b32 v11, 3, v1               ; r
v_lshrrev_b32 v12, 5, v1           ; hh
v_lshlrev_b32 v13, 7, v10
v_lshl_add_u32 v13, v12, 6, v13
v_lshl_add_u32 v13, v11, 4, v13
v_lshrrev_b32 v14, 1, v10
v_lshlrev_b32 v14, 8, v14          ; (a>>1)*256
v_and_b32 v10, 1, v10
v_xor_b32 v10, 1, v10
v_lshl_add_u32 v14, v10, 7, v14
v_lshl_add_u32 v14, v12, 5, v14
v_lshl_add_u32 v14, v11, 3, v14
s_mul_i32 s13, s12, 3072
s_add_u32 s13, s13, {WS_VF:#x}
buffer_store_dwordx4 v[28:31], v13, {WS}, s13 offen sc1
buffer_store_dwordx4 v[36:39], v13, {WS}, s13 offen offset:1024 sc1
buffer_store_dwordx2 v[32:33], v14, {WS}, s13 offen offset:2048 sc1""", "kvst")
        QS = f2h(20**-0.5 * 1.4426950408889634)
        quad_pack(40, 224, QS); quad_pack(44, 226, QS); quad_pack(48, 228, QS); quad_pack(52, 232, QS); quad_pack(56, 234, QS)
        self.stamp("qkv_epi", fine=True)
        self.waitvm("kvst")
        self.f5_check()
        a("s_barrier")
        a(f"s_lshl_b32 s12, {S_P}, 4\ns_add_u32 s12, s12, {S_T}")
        self.flag_store(1, "s12")

    def pack_params(self):
        a = self.a
        lw2 = self.lab("pt2"); lwo = self.lab("pto"); le = self.lab("pte")
        a(f"""s_cmp_ge_u32 s2, 128
s_cbranch_scc1 {lw2}
s_and_b32 s83, s2, 15
s_lshr_b32 s84, s2, 4
s_mul_i32 s80, s84, {80*3072}
s_mul_i32 s83, s83, 192
s_add_u32 s80, s80, s83
s_movk_i32 s81, 3072
s_movk_i32 s82, 80
s_mov_b32 s84, s{P_W1}
s_mov_b32 s85, s{P_W1+1}
s_mov_b32 s86, {640*3072}
s_branch {le}
{lw2}:
s_cmp_ge_u32 s2, 224
s_cbranch_scc1 {lwo}
s_sub_u32 s83, s2, 128
s_lshr_b32 s84, s83, 3
s_and_b32 s83, s83, 7
s_mul_i32 s80, s84, {128*1280}
s_mul_i32 s83, s83, 160
s_add_u32 s80, s80, s83
s_movk_i32 s81, 1280
s_movk_i32 s82, 128
s_mov_b32 s84, s{P_W2}
s_mov_b32 s85, s{P_W2+1}
s_mov_b32 s86, {1536*1280}
s_branch {le}
{lwo}:
s_sub_u32 s83, s2, 224
s_lshr_b32 s84, s83, 3
s_and_b32 s83, s83, 7
s_mul_i32 s80, s84, {160*1280}
s_mul_i32 s83, s83, 160
s_add_u32 s80, s80, s83
s_movk_i32 s81, 1280
s_movk_i32 s82, 160
s_mov_b32 s84, s{P_WO}
s_mov_b32 s85, s{P_WO+1}
s_mov_b32 s86, {640*1280}
{le}:
s_mov_b32 s87, 0x00020000""")

    def pack_dma(self):
        a = self.a
        lw2 = self.lab("pd2"); lwo = self.lab("pdo"); le = self.lab("pde")
        a(f"s_cmp_ge_u32 s2, 128\ns_cbranch_scc1 {lw2}")
        for grp in (None, 4):
            if grp is None:
                a(f"s_mul_i32 s14, {S_W}, {16*3072}\ns_add_u32 s14, s14, s80\ns_mul_i32 s15, {S_W}, 3072")
            else:
                a(f"s_add_u32 s14, s80, {4*16*3072}\ns_movk_i32 s15, {4*3072}")
            for jj in range(3):
                a(f"s_add_u32 m0, s15, {PK + jj*1024}\ns_nop 0\nbuffer_load_dwordx4 v{245+jj}, s[84:87], s14 offen lds")
        a(f"s_branch {le}\n{lw2}:\ns_mul_i32 s14, {S_W}, {32*1280}\ns_add_u32 s14, s14, s80\ns_mul_i32 s15, {S_W}, 5120")
        for j in range(5):
            a(f"s_add_u32 m0, s15, {PK + j*1024}\ns_nop 0\nbuffer_load_dwordx4 v{240+j}, s[84:87], s14 offen lds")
        a(f"s_cmp_ge_u32 s2, 224\ns_cbranch_scc0 {le}\ns_add_u32 s14, s80, {4*32*1280}\ns_movk_i32 s15, {4*5120}")
        for j in range(5):
            a(f"s_add_u32 m0, s15, {PK + j*1024}\ns_nop 0\nbuffer_load_dwordx4 v{240+j}, s[84:87], s14 offen lds")
        a(f"{le}:")
        self.q += ["praw"]*5

    def pack_store(self):
        a = self.a
        lw2 = self.lab("ps2"); lwo = self.lab("pso"); le = self.lab("pse")
        a(f"""s_cmp_ge_u32 s2, 128
s_cbranch_scc1 {lw2}
s_min_u32 s14, {S_W}, 2
v_lshrrev_b32 v188, 5, v1            ; h
v_bfe_u32 v189, v1, 2, 2             ; r
v_bfe_u32 v190, v1, 4, 1
v_and_b32 v191, 3, v1
v_lshl_add_u32 v190, v190, 2, v191    ; c'
v_lshlrev_b32 v190, 3, v190
s_lshl_b32 s15, s14, 6
s_add_u32 s15, s15, {PK}
v_add_u32 v190, s15, v190
v_lshl_add_u32 v191, v188, 2, v189
v_mul_u32_u24 v191, 192, v191
v_add_u32 v192, v191, v190
v_lshl_add_u32 v191, v188, 3, v189
v_mul_u32_u24 v191, 192, v191
v_add_u32 v193, v191, v190""")
        for i in range(5):
            for rd in range(2):
                if i < 4:
                    a(f"ds_read_b64_tr_b16 v[{196+4*i+2*rd}:{197+4*i+2*rd}], v192 offset:{(32*(i >> 1) + 8*(i & 1) + 16*rd)*192}")
                else:
                    a(f"ds_read_b64_tr_b16 v[{196+4*i+2*rd}:{197+4*i+2*rd}], v193 offset:{(64 + 4*rd)*192}")
        a(f"""s_and_b32 s15, s2, 15
s_mul_i32 s15, s15, 122880
s_lshr_b32 s64, s2, 4
s_mul_i32 s64, s64, {5*3072}
s_add_u32 s15, s15, s64
s_lshl_b32 s14, s14, 10
s_add_u32 s15, s15, s14
s_add_u32 s15, s15, {WS_W1P:#x}
s_waitcnt lgkmcnt(0)""")
        for i in range(5):
            a(f"buffer_store_dwordx4 v[{196+4*i}:{199+4*i}], v2, {WS}, s15 offen sc1")
            if i < 4: a("s_add_u32 s15, s15, 3072")
        a(f"""s_branch {le}
{lw2}:
v_lshrrev_b32 v188, 4, v1            ; q
v_bfe_u32 v189, v1, 2, 2             ; r
v_and_b32 v190, 3, v1
v_lshlrev_b32 v190, 3, v190          ; c*8
v_add_u32 v190, {PK}, v190
v_and_b32 v191, 1, v188
s_cmp_ge_u32 s2, 224
s_cbranch_scc1 {lwo}
v_lshrrev_b32 v192, 1, v188
v_lshlrev_b32 v192, 4, v192
v_lshl_add_u32 v192, v191, 2, v192
v_add_u32 v192, v192, v189
v_mul_u32_u24 v192, 160, v192
v_add_u32 v192, v192, v190
s_mul_i32 s14, {S_W}, 5120
v_add_u32 v192, s14, v192""")
        for j in range(5):
            for rd in range(2):
                a(f"ds_read_b64_tr_b16 v[{196+4*j+2*rd}:{197+4*j+2*rd}], v192 offset:{rd*1280 + j*32}")
        a(f"""s_sub_u32 s15, s2, 128
s_and_b32 s14, s15, 7
s_mul_i32 s14, s14, 245760
s_lshr_b32 s15, s15, 3
s_lshl_b32 s15, s15, 2
s_add_u32 s15, s15, {S_W}
s_mul_i32 s15, s15, 5120
s_add_u32 s15, s15, s14
s_add_u32 s15, s15, {WS_W2P:#x}
s_add_u32 s14, s15, 4096
s_waitcnt lgkmcnt(0)""")
        for j in range(4):
            a(f"buffer_store_dwordx4 v[{196+4*j}:{199+4*j}], v2, {WS}, s15 offen offset:{1024*j} sc1")
        a(f"buffer_store_dwordx4 v[212:215], v2, {WS}, s14 offen sc1")
        a(f"""s_branch {le}
{lwo}:
v_lshrrev_b32 v192, 1, v188
v_mul_u32_u24 v192, 24, v192
v_lshl_add_u32 v192, v191, 2, v192
v_add_u32 v192, v192, v189
v_mul_u32_u24 v192, 160, v192
v_add_u32 v192, v192, v190
s_mul_i32 s14, {S_W}, 6400
v_add_u32 v192, s14, v192            ; F0 base
v_mul_u32_u24 v193, 40, v188
v_add_u32 v193, v193, v189
v_add_u32 v193, 16, v193
v_lshl_add_u32 v194, v191, 2, v193
v_mul_u32_u24 v194, 160, v194
v_add_u32 v194, v194, v190
v_xor_b32 v191, 1, v191
v_lshl_add_u32 v195, v191, 2, v193
v_mul_u32_u24 v195, 160, v195
v_add_u32 v195, v195, v190
s_lshl_b32 s14, {S_W}, 5
v_add_u32 v188, s14, v194
v_add_u32 v189, s14, v195""")
        for j in range(5):
            for rd in range(2):
                a(f"ds_read_b64_tr_b16 v[{196+4*j+2*rd}:{197+4*j+2*rd}], v192 offset:{rd*1280 + j*32}")
        a("""ds_read_b64_tr_b16 v[216:217], v188
ds_read_b64_tr_b16 v[218:219], v189
ds_read_b64_tr_b16 v[220:221], v194 offset:128
ds_read_b64_tr_b16 v[222:223], v195 offset:128""")
        a(f"""s_sub_u32 s15, s2, 224
s_and_b32 s14, s15, 7
s_mul_i32 s14, s14, 102400
s_lshr_b32 s15, s15, 3             ; P4
s_lshr_b32 s64, s15, 1
s_mul_i32 s64, s64, 51200
s_add_u32 s14, s14, s64
s_add_u32 s14, s14, {WS_WOP:#x}
s_and_b32 s15, s15, 1
s_lshl_b32 s64, s15, 2
s_add_u32 s64, s64, {S_W}
s_mul_i32 s64, s64, 5120
s_add_u32 s64, s64, s14            ; F0 slab
s_add_u32 s15, s15, 8
s_mul_i32 s15, s15, 5120
s_add_u32 s15, s15, s14
s_add_u32 s65, s64, 4096
s_waitcnt lgkmcnt(0)""")
        for j in range(4):
            a(f"buffer_store_dwordx4 v[{196+4*j}:{199+4*j}], v2, {WS}, s64 offen offset:{1024*j} sc1")
        a(f"""buffer_store_dwordx4 v[212:215], v2, {WS}, s65 offen sc1
s_add_u32 s14, s15, 4096
buffer_store_dwordx4 v[220:223], v2, {WS}, s14 offen sc1
s_lshl_b32 s14, {S_W}, 10
s_add_u32 s15, s15, s14
buffer_store_dwordx4 v[216:219], v2, {WS}, s15 offen sc1
{le}:""")
        self.q += ["pk"]*5

    def f5_load(self):
        a = self.a
        l5 = self.lab("f5")
        a(f"""v_lshlrev_b32 v56, 7, v1
v_add_u32 v56, {WS_FLAGS + 5*0x8000:#x}, v56
v_add_u32 v57, 64*128, v56
v_add_u32 v58, 128*128, v56
v_add_u32 v59, 192*128, v56
s_cmp_lg_u32 {S_W}, 0
s_cbranch_scc1 {l5}
buffer_load_dword v60, v56, {WS}, 0 offen sc1
buffer_load_dword v61, v57, {WS}, 0 offen sc1
buffer_load_dword v62, v58, {WS}, 0 offen sc1
buffer_load_dword v63, v59, {WS}, 0 offen sc1
{l5}:""")
    def f5_check(self):
        a = self.a
        l5 = self.lab("c5"); l5l = self.lab("c5l")
        a(f"""s_cmp_lg_u32 {S_W}, 0
s_cbranch_scc1 {l5}
s_mov_b32 s64, 0
{l5l}:
v_xor_b32 v60, {S_EP}, v60
v_xor_b32 v61, {S_EP}, v61
v_xor_b32 v62, {S_EP}, v62
v_xor_b32 v63, {S_EP}, v63
v_or3_b32 v60, v60, v61, v62
v_or_b32 v60, v60, v63
v_cmp_ne_u32 vcc, 0, v60
s_nop 3
s_cmp_eq_u64 vcc, 0
s_cbranch_scc1 {l5}
s_add_u32 s64, s64, 1
s_cmp_gt_u32 s64, {self.timeout}
s_cbranch_scc1 {l5}
buffer_load_dword v60, v56, {WS}, 0 offen sc1
buffer_load_dword v61, v57, {WS}, 0 offen sc1
buffer_load_dword v62, v58, {WS}, 0 offen sc1
buffer_load_dword v63, v59, {WS}, 0 offen sc1
s_waitcnt vmcnt(0)
s_branch {l5l}
{l5}:""")

    def lin_dma(self, src_sgpr, lds0, pieces):
        return [f"s_mov_b32 m0, {lds0 + l}\ns_add_u32 s79, {src_sgpr}, {o}\nbuffer_load_dwordx4 v2, {WS}, s79 offen sc1 lds" for o, l in pieces]
    def wave_dma(self, src_sgpr, ldsw_sgpr, lds0, n, stride, first=0):
        return [f"s_add_u32 m0, {ldsw_sgpr}, {lds0 + (first + 4*i)*1024}\ns_add_u32 s79, {src_sgpr}, {(first + 4*i)*1024}\n"
                f"buffer_load_dwordx4 v2, {WS}, s79 offen sc1 lds" for i in range(n)]

    def tables_issue(self):
        a = self.a
        self.srd(SA, P_B2, 1280)
        self.srd(SC, P_B1, 3072)
        a(f"""v_lshlrev_b32 v8, 4, v0
v_mov_b32 v9, {OOB:#x}
v_cmp_gt_u32 vcc, 160, v0
s_nop 1
v_cndmask_b32 v8, v9, v8, vcc""")
        for vec in range(4):
            for kq in range(4):
                r = 16 + 16*vec + 4*kq
                self.vm(f"s_mov_b32 s14, {WS_MODP + kq*15360 + (1280 + 640*vec)*4}\nbuffer_load_dwordx4 v[{r}:{r+3}], v8, {WS}, s14 offen sc1", "tab")
        self.vm(f"""v_lshlrev_b32 v8, 3, v0
v_cmp_gt_u32 vcc, 20, v0
s_mul_i32 s14, {S_V}, 160
v_cndmask_b32 v10, v9, v8, vcc
buffer_load_dwordx2 v[80:81], v10, {SA}, s14 offen
v_cmp_gt_u32 vcc, 24, v0
s_mul_i32 s14, {S_J}, 192
v_cndmask_b32 v10, v9, v8, vcc
buffer_load_dwordx2 v[82:83], v10, {SC}, s14 offen""", "tab")

    def tables_finish(self):
        a = self.a
        self.waitvm("tab")
        for vec in range(4):
            b = 16 + 16*vec
            for e in range(4):
                a(f"""v_add_f32 v{b+e}, v{b+e}, v{b+4+e}
v_add_f32 v{b+8+e}, v{b+8+e}, v{b+12+e}
v_add_f32 v{b+e}, v{b+e}, v{b+8+e}""")
            a(f"v_cvt_pk_bf16_f32 v{b+4}, v{b}, v{b+1}\nv_cvt_pk_bf16_f32 v{b+5}, v{b+2}, v{b+3}")
            if vec != 1:
                a(f"""v_lshlrev_b32 v{b}, 16, v{b+4}
v_and_b32 v{b+1}, 0xffff0000, v{b+4}
v_lshlrev_b32 v{b+2}, 16, v{b+5}
v_and_b32 v{b+3}, 0xffff0000, v{b+5}""")
        a("""v_add_f32 v48, 1.0, v48
v_add_f32 v49, 1.0, v49
v_add_f32 v50, 1.0, v50
v_add_f32 v51, 1.0, v51
v_cvt_pk_bf16_f32 v52, v48, v49
v_cvt_pk_bf16_f32 v53, v50, v51
v_lshlrev_b32 v48, 16, v52
v_and_b32 v49, 0xffff0000, v52
v_lshlrev_b32 v50, 16, v53
v_and_b32 v51, 0xffff0000, v53""")
        a(f"""v_cmp_gt_u32 vcc, 160, v0
s_and_saveexec_b64 s[66:67], vcc
v_lshlrev_b32 v8, 3, v0
v_add_u32 v9, {PT_G2B}, v8
ds_write_b64 v9, v[52:53]
ds_write_b64 v9, v[36:37] offset:{PT_S2B - PT_G2B}
s_mul_i32 s14, {S_V}, 20
v_subrev_u32 v10, s14, v0
v_cmp_gt_u32 vcc, 20, v10
s_and_b64 exec, exec, vcc
v_lshlrev_b32 v10, 4, v10
v_add_u32 v10, {PT_GA}, v10
ds_write_b128 v10, v[16:19]
ds_write_b128 v10, v[48:51] offset:{PT_G2 - PT_GA}
ds_write_b128 v10, v[64:67] offset:{PT_GB - PT_GA}
s_mov_b64 exec, s[66:67]
v_lshlrev_b32 v84, 16, v80
v_and_b32 v85, 0xffff0000, v80
v_lshlrev_b32 v86, 16, v81
v_and_b32 v87, 0xffff0000, v81
v_lshlrev_b32 v88, 16, v82
v_and_b32 v89, 0xffff0000, v82
v_lshlrev_b32 v90, 16, v83
v_and_b32 v91, 0xffff0000, v83
v_lshlrev_b32 v8, 4, v0
v_cmp_gt_u32 vcc, 20, v0
s_and_saveexec_b64 s[66:67], vcc
v_add_u32 v9, {PT_B2}, v8
ds_write_b128 v9, v[84:87]
s_mov_b64 exec, s[66:67]
v_cmp_gt_u32 vcc, 24, v0
s_and_saveexec_b64 s[66:67], vcc
v_add_u32 v9, {PT_B1}, v8
ds_write_b128 v9, v[88:91]
s_mov_b64 exec, s[66:67]""")

    def phase_att(self):
        a = self.a
        a(f"""; ---- phase 2: attention ----
v_and_b32 v8, 1, v1
v_add_u32 v8, 1, v8
v_sub_u32 v8, {S_T}, v8
v_max_i32 v8, 0, v8
s_lshl_b32 s12, {S_P}, 4
v_add_u32 v8, s12, v8
v_lshlrev_b32 v8, 7, v8
v_add_u32 v14, {WS_FLAGS + 0x8000:#x}, v8""")
        a("v_lshlrev_b32 v2, 4, v1")
        self.tables_issue()
        self.stamp("att_wodma", fine=True)
        a("""v_and_b32 v8, 31, v1
v_lshrrev_b32 v9, 5, v1
v_lshlrev_b32 v10, 2, v9
v_sub_u32 v8, v8, v10""")
        for i in range(16):
            kap = 8*(i >> 2) + (i & 3)
            a(f"v_cmp_le_i32 s[{68+2*i}:{69+2*i}], {kap}, v8")
        a("v_mov_b32 v10, 0xffff\nv_mov_b32 v11, 0xffff0000")
        for j in range(8):
            a(f"""v_cndmask_b32 v12, 0, v10, s[{68+4*j}:{69+4*j}]
v_cndmask_b32 v13, 0, v11, s[{70+4*j}:{71+4*j}]
v_or_b32 v{112+j}, v12, v13""")
        a("""v_cmp_eq_u32 vcc, 0, v9
v_mov_b32 v12, 0
s_nop 0
v_cndmask_b32 v236, v12, v228, vcc
v_cndmask_b32 v237, v12, v229, vcc
v_cndmask_b32 v238, v228, v12, vcc
v_cndmask_b32 v239, v229, v12, vcc""")
        a(f"""v_lshrrev_b32 v8, 5, v1            ; hw
v_bfe_u32 v9, v1, 2, 2             ; r
v_bfe_u32 v10, v1, 4, 1
v_and_b32 v11, 3, v1
v_lshl_add_u32 v10, v10, 2, v11    ; cc
v_lshlrev_b32 v12, 7, v8           ; hw*128
v_lshl_add_u32 v12, v9, 4, v12     ; + r*16
v_xor_b32 v13, 1, v8
v_lshlrev_b32 v13, 7, v13
v_lshl_add_u32 v13, v9, 3, v13
v_add_u32 v13, 2048, v13
v_xor_b32 v15, 1, v8
v_lshlrev_b32 v15, 7, v15
v_add_u32 v15, {2048+64}, v15
v_and_b32 v95, 1, v10
v_lshl_add_u32 v6, v95, 6, v12
v_lshrrev_b32 v95, 1, v10
v_lshl_add_u32 v6, v95, 3, v6
v_cmp_eq_u32 vcc, 4, v10
s_nop 1
v_cndmask_b32 v6, v6, v13, vcc
v_cmp_lt_u32 vcc, 4, v10
s_nop 1
v_cndmask_b32 v6, v6, v15, vcc
v_subrev_u32 v95, 2, v10
v_and_b32 v7, 1, v95
v_lshl_add_u32 v7, v7, 6, v12
v_lshrrev_b32 v95, 1, v95
v_and_b32 v95, 1, v95
v_lshl_add_u32 v7, v95, 3, v7
v_add_u32 v7, 1024, v7
v_add_u32 v13, 32, v13
v_cmp_eq_u32 vcc, 1, v10
s_nop 1
v_cndmask_b32 v7, v7, v13, vcc
v_cmp_eq_u32 vcc, 0, v10
s_nop 1
v_cndmask_b32 v7, v7, v15, vcc
v_cmp_lt_u32 vcc, 5, v10
s_nop 1
v_cndmask_b32 v7, v7, v15, vcc
s_mul_i32 s15, {S_W}, 3072
s_add_u32 s15, s15, {VB_}
v_add_u32 v4, s15, v6
v_add_u32 v5, s15, v7
s_mul_i32 s15, {S_W}, 2560
s_add_u32 s15, s15, {KB_}
v_lshl_add_u32 v6, v1, 4, s15
s_add_u32 s15, s15, 2048
v_lshl_add_u32 v7, v1, 3, s15
v_lshrrev_b32 v8, 3, v1
s_mul_i32 s15, {S_W}, 3
v_add_u32 v8, s15, v8
v_mul_u32_u24 v8, 3072, v8
v_bfe_u32 v9, v1, 1, 2
v_lshl_add_u32 v8, v9, 8, v8
v_and_b32 v9, 1, v1
v_lshl_add_u32 v8, v9, 7, v8
v_add_u32 v8, {VB_ + 2048 + 64}, v8
v_mov_b32 v10, 0x3f80
v_mov_b32 v11, 0
v_cmp_gt_u32 vcc, 24, v1
s_and_saveexec_b64 s[66:67], vcc
ds_write_b64 v8, v[10:11]
s_mov_b64 exec, s[66:67]
v_lshlrev_b32 v2, 4, v1""")
        self.stamp("att_setup", fine=True)
        self.poll("v14")
        self.stamp("att_poll")
        a(f"""s_lshl_b32 s12, {S_T}, 2
s_add_u32 s12, s12, {S_W}
s_sub_i32 s13, 8, s12
s_max_i32 s13, s13, 0""")
        for kind in ("k", "v"):
            for i in range(3):
                sz, base, lds = (2560, WS_KF, KB_) if kind == "k" else (3072, WS_VF, VB_)
                m_lo, m_hi = (0xffffffff, 0) if kind == "k" else (0x0f0f0f0f, 0x0f0f0f0f)
                self.vm(f"""s_mul_i32 s14, {S_W}, 3
s_add_u32 s14, s14, {i}
s_lshl_b32 s15, {S_T}, 2
s_add_u32 s15, s15, s14
s_sub_i32 s15, s15, 8
s_max_i32 s15, s15, 0
s_lshl_b32 s64, {S_P}, 6
s_add_u32 s15, s15, s64
s_mul_i32 s15, s15, {sz}
s_add_u32 s15, s15, {base:#x}
s_mul_i32 s14, s14, {sz}
s_add_u32 m0, s14, {lds}
s_nop 0
buffer_load_dwordx4 v2, {WS}, s15 offen sc1 lds
s_add_u32 m0, s14, {lds + 1024}
s_add_u32 s15, s15, 1024
buffer_load_dwordx4 v2, {WS}, s15 offen sc1 lds
s_add_u32 m0, s14, {lds + 2048}
s_add_u32 s15, s15, 1024
s_mov_b32 exec_lo, {m_lo:#x}
s_mov_b32 exec_hi, {m_hi:#x}
buffer_load_dwordx4 v2, {WS}, s15 offen sc1 lds
s_mov_b64 exec, -1""", kind + "dma")
        a(f"""s_lshl_b32 s42, {S_W}, 10
s_mul_i32 s43, {S_V}, 102400
s_add_u32 s43, s43, {WS_WOP:#x}
s_add_u32 s43, s43, s42
s_add_u32 s65, s42, {20*4096}""")
        WO1 = f"s_mov_b32 m0, s42\ns_add_u32 s42, s42, 4096\nbuffer_load_dwordx4 v2, {WS}, s43 offen sc1 lds\ns_add_u32 s43, s43, 4096"
        self.wo1_piece = WO1
        self.tables_finish()
        self.waitvm("vdma", "lgkmcnt(0)")
        a("s_barrier")
        self.stamp("att_kdma")
        wo1 = []
        NEG = "0xff800000"
        KR = [0, 8, 16]
        a(f"v_mov_b32 v8, 0\nv_mov_b32 v9, {NEG}")
        for i in range(16):
            a(f"v_cndmask_b32 v{132+i}, v9, v8, s[{68+2*i}:{69+2*i}]\nv_cndmask_b32 v{148+i}, v8, v9, s[{68+2*i}:{69+2*i}]")
        for hd in range(2):
            Qx = "v[224:227]" if hd == 0 else "v[232:235]"
            Q5 = "v[236:237]" if hd == 0 else "v[238:239]"
            VA = "v4" if hd == 0 else "v5"
            def kread(b, st):
                return [f"ds_read_b128 a[{st}:{st+3}], v6 offset:{b*2560 + 1024*hd}", f"ds_read_b64 a[{st+4}:{st+5}], v7 offset:{b*2560}"]
            def qk(st, dst, c="0"):
                return [f"v_mfma_f32_32x32x16_bf16 v[{dst}:{dst+15}], a[{st}:{st+3}], {Qx}, {c}",
                        f"v_mfma_f32_32x32x8bf16_1k v[{dst}:{dst+15}], a[{st+4}:{st+5}], {Q5}, v[{dst}:{dst+15}]"]
            def vread(b, st):
                return [f"ds_read_b64_tr_b16 a[{st+4*mm+2*rd}:{st+4*mm+2*rd+1}], {VA} offset:{b*3072 + mm*512 + rd*256}" for mm in range(2) for rd in range(2)]
            ks = lambda b: KR[b % 3]
            lslow = self.lab("slow"); lnorm = self.lab("norm")
            cfor = lambda b: "v[132:147]" if b == 8 else ("v[148:163]" if b == 0 else "0")
            for x in kread(8, ks(8)) + kread(7, ks(7)): a(x)
            a("s_waitcnt lgkmcnt(2)")
            for x in qk(ks(8), 16, cfor(8)): a(x)
            if hd == 0 and self.o.get("w1touch"):
                self.touch_setup(13, 60)
                for i in range(2):
                    self.touch_base("s15", 120, i, 60)
                    self.vm(f"s_add_u32 s15, s15, {WS_W1P:#x}\nbuffer_load_dword v248, v13, {WS}, s15 offen sc1", "touch")
            lend = self.lab("fe"); lfl = [self.lab("ff0"), self.lab("ff1")]
            def pv(b, first=False):
                c0 = "0" if first else "v[96:111]"
                return [f"v_mfma_f32_32x32x16_bf16 v[96:111], a[{96+8*(b%2)}:{99+8*(b%2)}], v[{80+8*(b%2)}:{83+8*(b%2)}], {c0}",
                        f"v_mfma_f32_32x32x16_bf16 v[96:111], a[{100+8*(b%2)}:{103+8*(b%2)}], v[{84+8*(b%2)}:{87+8*(b%2)}], v[96:111]"]
            for b in range(8, -1, -1):
                cur = 16 if (8 - b) % 2 == 0 else 32
                nxt = 48 - cur
                pst = 80 + 8*(b % 2)
                vst = 96 + 8*(b % 2)
                if b < 8:
                    tgt = self.lab("ffirst") if b == 7 else lfl[(b+1) % 2]
                    if b == 7: lfirst = tgt
                    a(f"s_cmp_gt_u32 s13, {b}\ns_cbranch_scc1 {tgt}")
                p_ = pv(b+1, first=(b == 7)) if b < 8 else []
                q_ = qk(ks(b-1), nxt, cfor(b-1)) if b > 0 else []
                mf = []
                for k in range(2):
                    if k < len(p_): mf.append(p_[k])
                    if k < len(q_): mf.append(q_[k])
                a("s_waitcnt lgkmcnt(0)")
                lds = vread(b, vst) + (kread(b-2, ks(b-2)) if b - 2 >= 0 else [])
                va = []
                for i in range(16):
                    va.append(f"v_exp_f32 v{cur+i}, v{cur+i}")
                    if i % 2 == 1 and i >= 3:
                        j = (i - 3)//2
                        va.append(f"v_cvt_pk_bf16_f32 v{pst+j}, v{cur+2*j}, v{cur+2*j+1}")
                va.append(f"v_cvt_pk_bf16_f32 v{pst+7}, v{cur+14}, v{cur+15}")
                vi = li = 0
                for k, mm in enumerate(mf):
                    a(mm)
                    for _ in range(3):
                        if vi < len(va): a(va[vi]); vi += 1
                    if k >= 1:
                        for _ in range(2):
                            if li < len(lds): a(lds[li]); li += 1
                while li < len(lds): a(lds[li]); li += 1
                a(self.wo1_piece)
                while vi < len(va):
                    a(va[vi]); vi += 1
            a(f"{lfl[0]}:\ns_waitcnt lgkmcnt(0)")
            for x in pv(0): a(x)
            a(f"s_branch {lend}\n{lfl[1]}:\ns_waitcnt lgkmcnt(0)")
            for x in pv(1): a(x)
            a(f"s_branch {lend}\n{lfirst}:\ns_waitcnt lgkmcnt(0)")
            for x in pv(0, first=True): a(x)
            a(f"{lend}:\ns_nop 7\ns_nop 7")
            lreg = 104 if hd == 0 else 96
            a(f"""v_mov_b32 v8, v{lreg}
v_mov_b32 v9, v{lreg}
s_nop 1
v_permlane32_swap_b32 v8, v9
v_mov_b32 v10, {f2h(2.0**-40)}
v_mov_b32 v11, {f2h(2.0**40)}
v_cmp_nle_f32 vcc, v10, v{9 if hd == 0 else 8}
v_cmp_nle_f32 s[66:67], v{9 if hd == 0 else 8}, v11
s_nop 3
s_or_b64 vcc, vcc, s[66:67]
s_cmp_eq_u64 vcc, 0
s_cbranch_scc0 {lslow}
{lnorm}:""")
            a(f"v_rcp_f32 v8, v{9 if hd == 0 else 8}\ns_nop 0")
            for i in range(12):
                a(f"v_mul_f32 v{96+i}, v8, v{96+i}")
            d0 = 120 if hd == 0 else 126
            for j in range(6):
                a(f"v_cvt_pk_bf16_f32 v{d0+j}, v{96+2*j}, v{97+2*j}")
                if hd == 0 and j in (1, 4): a(self.wo1_piece)
            self.stamp(f"att_h{hd}", fine=True)
            self.att_slow.append((hd, lslow, lnorm))
        lc = self.lab("wo1c"); lcd = self.lab("wo1d")
        a(f"""{lc}:
s_cmp_ge_u32 s42, s65
s_cbranch_scc1 {lcd}
{self.wo1_piece}
s_branch {lc}
{lcd}:""")
        self.vm(f"""v_lshrrev_b32 v9, 5, v1
v_cmp_eq_u32 vcc, 1, v9
v_and_b32 v10, 15, v1
v_bfe_u32 v11, v1, 4, 1
v_cndmask_b32 v124, v124, v126, vcc
v_cndmask_b32 v125, v125, v127, vcc
s_lshl_b32 s14, s12, 1
v_add_u32 v11, s14, v11
v_mul_u32_u24 v11, 20480, v11
v_lshl_add_u32 v11, v10, 4, v11
v_lshl_add_u32 v12, v9, 8, v11
s_lshl_b32 s14, {S_P}, 10
s_add_u32 s14, s14, {WS_OF:#x}
buffer_store_dwordx4 v[120:123], v12, {WS}, s14 offen sc1
buffer_store_dwordx4 v[128:131], v12, {WS}, s14 offen offset:512 sc1
s_and_b32 s15, {S_P}, 1
v_xor_b32 v9, s15, v9
v_lshl_add_u32 v11, v9, 3, v11
s_lshr_b32 s14, {S_P}, 2
s_add_u32 s14, s14, 16
s_lshl_b32 s14, s14, 10
s_and_b32 s15, {S_P}, 3
s_lshl_b32 s15, s15, 8
s_add_u32 s14, s14, s15
s_add_u32 s14, s14, {WS_OF:#x}
buffer_store_dwordx2 v[124:125], v11, {WS}, s14 offen sc1""", "ost")
        self.stamp("att_done", fine=True)
        self.waitall()
        a(f"""s_barrier
s_lshl_b32 s12, {S_P}, 4
s_add_u32 s12, s12, {S_T}""")
        self.flag_store(2, "s12")

    def att_slow_paths(self):
        a = self.a
        NEG = "0xff800000"
        KR = [0, 8, 16]
        for (hd, lslow, lnorm) in self.att_slow:
            Qx = "v[224:227]" if hd == 0 else "v[232:235]"
            Q5 = "v[236:237]" if hd == 0 else "v[238:239]"
            VA = "v4" if hd == 0 else "v5"
            def kread(b, st):
                return [f"ds_read_b128 a[{st}:{st+3}], v6 offset:{b*2560 + 1024*hd}", f"ds_read_b64 a[{st+4}:{st+5}], v7 offset:{b*2560}"]
            def qk(st, dst, c="0"):
                return [f"v_mfma_f32_32x32x16_bf16 v[{dst}:{dst+15}], a[{st}:{st+3}], {Qx}, {c}",
                        f"v_mfma_f32_32x32x8bf16_1k v[{dst}:{dst+15}], a[{st+4}:{st+5}], {Q5}, v[{dst}:{dst+15}]"]
            def vread(b, st):
                return [f"ds_read_b64_tr_b16 a[{st+4*mm+2*rd}:{st+4*mm+2*rd+1}], {VA} offset:{b*3072 + mm*512 + rd*256}" for mm in range(2) for rd in range(2)]
            ks = lambda b: KR[b % 3]
            a(f"{lslow}:\ns_waitcnt lgkmcnt(0)\ns_nop 7\ns_nop 7")
            if self.o.get("cnt_slow"):
                a(f"v_mov_b32 v10, {4 + 4*hd}\nv_mov_b32 v11, 1\ns_mov_b64 exec, 1\nbuffer_atomic_add v11, v10, {DBG}, 0 offen\ns_mov_b64 exec, -1")
            for x in kread(8, ks(8)) + kread(0, ks(0)) + kread(7, ks(7)): a(x)
            a("s_waitcnt lgkmcnt(4)")
            for x in qk(ks(8), 32): a(x)
            a("s_waitcnt lgkmcnt(2)")
            for x in qk(ks(0), 16): a(x)
            for x in kread(6, ks(6)): a(x)
            l1 = self.lab("s1")
            a(f"s_nop 7\ns_nop 4\ns_cmp_eq_u32 s13, 0\ns_cbranch_scc1 {l1}")
            for i in range(16): a(f"v_mov_b32 v{16+i}, {NEG}")
            a(f"{l1}:")
            for i in range(16):
                a(f"v_cndmask_b32 v{48+i}, v{16+i}, v{32+i}, s[{68+2*i}:{69+2*i}]")
            a("s_waitcnt lgkmcnt(2)")
            for x in qk(ks(7), 16): a(x)
            a("v_max3_f32 v8, v48, v49, v50")
            for i in range(3, 15, 2):
                a(f"v_max3_f32 v8, v8, v{48+i}, v{49+i}")
            a("v_max_f32 v8, v8, v63")
            ld = self.lab("p1d")
            for b in range(7, 0, -1):
                cur = 16 if (7 - b) % 2 == 0 else 32
                nxt = 48 - cur
                a(f"s_cmp_gt_u32 s13, {b}\ns_cbranch_scc1 {ld}")
                if b - 2 >= 1:
                    for x in kread(b-2, ks(b-2)): a(x)
                if b > 1:
                    a(f"s_waitcnt lgkmcnt({2 if b-2 >= 1 else 0})")
                    m = qk(ks(b-1), nxt)
                    a(m[0])
                    for i in range(0, 8, 2): a(f"v_max3_f32 v8, v8, v{cur+i}, v{cur+i+1}")
                    a(m[1])
                    for i in range(8, 16, 2): a(f"v_max3_f32 v8, v8, v{cur+i}, v{cur+i+1}")
                else:
                    a("s_nop 7\ns_nop 3")
                    for i in range(0, 16, 2): a(f"v_max3_f32 v8, v8, v{cur+i}, v{cur+i+1}")
            a(f"{ld}:")
            a("s_waitcnt lgkmcnt(0)")
            for x in kread(7, ks(7)) + vread(8, 96) + vread(0, 104) + kread(6, ks(6)): a(x)
            a(f"""v_mov_b32 v9, v8
s_nop 1
v_permlane32_swap_b32 v8, v9
v_max_f32 v8, v8, v9
v_sub_f32 v9, 0, v8""")
            for i in range(16): a(f"v_mov_b32 v{64+i}, v9")
            a("s_waitcnt lgkmcnt(10)")
            m = qk(ks(7), 16, "v[64:79]")
            a(m[0])
            for i in range(16):
                a(f"v_add_f32 v{48+i}, v{48+i}, v9")
                if i == 7: a(m[1])
            for i in range(16):
                a(f"v_exp_f32 v{48+i}, v{48+i}")
            for j in range(8):
                a(f"v_cvt_pk_bf16_f32 v{80+j}, v{48+2*j}, v{49+2*j}")
            for j in range(8):
                a(f"v_and_b32 v{88+j}, v{112+j}, v{80+j}")
            a("s_waitcnt lgkmcnt(2)")
            a(f"v_mfma_f32_32x32x16_bf16 v[96:111], a[96:99], v[88:91], 0")
            for j in range(4):
                a(f"v_xor_b32 v{80+j}, v{80+j}, v{88+j}")
            a(f"v_mfma_f32_32x32x16_bf16 v[96:111], a[100:103], v[92:95], v[96:111]")
            for j in range(4, 8):
                a(f"v_xor_b32 v{80+j}, v{80+j}, v{88+j}")
            l2 = self.lab("v0")
            a(f"s_cmp_eq_u32 s13, 0\ns_cbranch_scc0 {l2}")
            a(f"v_mfma_f32_32x32x16_bf16 v[96:111], a[104:107], v[80:83], v[96:111]")
            a(f"v_mfma_f32_32x32x16_bf16 v[96:111], a[108:111], v[84:87], v[96:111]")
            a(f"{l2}:")
            lend = self.lab("p2e"); lfl = [self.lab("fl0"), self.lab("fl1")]
            pv = lambda b: [f"v_mfma_f32_32x32x16_bf16 v[96:111], a[{96+8*(b%2)}:{99+8*(b%2)}], v[{80+8*(b%2)}:{83+8*(b%2)}], v[96:111]",
                            f"v_mfma_f32_32x32x16_bf16 v[96:111], a[{100+8*(b%2)}:{103+8*(b%2)}], v[{84+8*(b%2)}:{87+8*(b%2)}], v[96:111]"]
            for b in range(7, 0, -1):
                cur = 16 if (7 - b) % 2 == 0 else 32
                nxt = 48 - cur
                pst = 80 + 8*(b % 2)
                vst = 96 + 8*(b % 2)
                tgt = lend if b == 7 else lfl[(b+1) % 2]
                a(f"s_cmp_gt_u32 s13, {b}\ns_cbranch_scc1 {tgt}")
                mf = (pv(b+1) if b < 7 else []) + (qk(ks(b-1), nxt, "v[64:79]") if b > 1 else [])
                a("s_waitcnt lgkmcnt(0)")
                lds = vread(b, vst) + (kread(b-2, ks(b-2)) if b - 2 >= 1 else [])
                va = []
                for i in range(16):
                    va.append(f"v_exp_f32 v{cur+i}, v{cur+i}")
                    if i % 2 == 1 and i >= 3:
                        j = (i - 3)//2
                        va.append(f"v_cvt_pk_bf16_f32 v{pst+j}, v{cur+2*j}, v{cur+2*j+1}")
                va.append(f"v_cvt_pk_bf16_f32 v{pst+7}, v{cur+14}, v{cur+15}")
                vi = li = 0
                for k, mm in enumerate(mf):
                    a(mm)
                    for _ in range(3):
                        if vi < len(va): a(va[vi]); vi += 1
                    if k >= len(mf) - 2 or len(mf) <= 2:
                        for _ in range(3):
                            if li < len(lds): a(lds[li]); li += 1
                while li < len(lds): a(lds[li]); li += 1
                while vi < len(va): a(va[vi]); vi += 1
            a(f"{lfl[1]}:\ns_waitcnt lgkmcnt(0)")
            for x in pv(1): a(x)
            a(f"s_branch {lend}\n{lfl[0]}:\ns_waitcnt lgkmcnt(0)")
            for x in pv(0): a(x)
            a(f"{lend}:\ns_nop 7\ns_nop 7")
            lreg = 104 if hd == 0 else 96
            a(f"""v_mov_b32 v8, v{lreg}
v_mov_b32 v9, v{lreg}
s_nop 1
v_permlane32_swap_b32 v8, v9
s_nop 1
s_branch {lnorm}""")

    def phase_wo(self):
        a = self.a
        SCR = 0
        a("; ---- phase 3: W_o ----")
        a(f"""v_lshlrev_b32 v2, 4, v1
s_lshl_b32 s77, {S_W}, 10
s_mul_i32 s76, {S_V}, 102400
s_add_u32 s76, s76, {WS_WOP:#x}
s_add_u32 s76, s76, s77
s_mul_i32 s78, {S_J}, 122880
s_add_u32 s78, s78, {WS_W1P:#x}
s_add_u32 s78, s78, s77""")
        for x in self.wave_dma("s76", "s77", 0, 5, 1024, first=80): self.vm(x, "wo")
        a(f"""v_and_b32 v8, 15, v1
v_lshlrev_b32 v8, 4, v8
s_lshr_b32 s12, {S_U}, 1
v_add_u32 v8, s12, v8
v_lshlrev_b32 v8, 7, v8
v_add_u32 v14, {WS_FLAGS + 2*0x8000:#x}, v8
s_and_b32 s12, {S_W}, 1
s_lshl_b32 s12, s12, 1
s_lshl_b32 s13, {S_U}, 2
s_add_u32 s12, s12, s13
s_lshr_b32 s13, {S_W}, 1
s_add_u32 {S_TGF}, s12, s13
s_xor_b32 s13, s13, 1
s_add_u32 {S_TG1}, s12, s13""")
        self.srd(SA, P_X, 2048*1280)
        a(f"""v_and_b32 v8, 15, v1
s_lshl_b32 s12, {S_TGF}, 4
v_add_u32 v8, s12, v8
v_mul_u32_u24 v8, 1280, v8
v_lshrrev_b32 v9, 4, v1
v_lshl_add_u32 v15, v9, 3, v8     ; row*1280 + q*8
s_mul_i32 s12, {S_V}, 160""")
        for j in range(5):
            self.vm(f"buffer_load_dwordx2 v[{104+2*j}:{105+2*j}], v15, {SA}, s12 offen offset:{32*j}", "xt")
        w1a = self.wave_dma("s78", "s77", W1B, 12, 1024, first=72)
        for x in w1a: self.vm(x, "w1a")
        a(f"""s_lshr_b32 s13, {S_W}, 1
s_mul_i32 s13, s13, 51200
v_add_u32 v4, s13, v2""")
        self.stamp("wo_pre", fine=True)
        self.poll("v14", drain="wo", extra="lgkmcnt(0)")
        self.stamp("wo_poll")
        a(f"""s_lshr_b32 s13, {S_W}, 1
s_mul_i32 s12, {S_TGF}, 20480
s_add_u32 s12, s12, {WS_OF:#x}
s_mul_i32 s14, {S_TG1}, 20480
s_add_u32 s14, s14, {WS_OF:#x}
s_lshl_b32 s15, s13, 13
s_add_u32 s64, s12, s15
s_add_u32 s65, s14, s15
s_lshl_b32 s15, s13, 11
s_add_u32 s15, s15, 16384
s_add_u32 s12, s12, s15
s_add_u32 s14, s14, s15""")
        def oload(sl):
            out = ""
            for u in range(2):
                st = (u*10 + sl)*4
                if sl < 8:
                    so = "s64" if u == 0 else "s65"
                    if sl == 4: out += f"s_add_u32 {so}, {so}, 4096\n"
                    out += f"buffer_load_dwordx4 a[{st}:{st+3}], v2, {WS}, {so} offen offset:{(sl%4)*1024} sc1\n"
                else:
                    so = "s12" if u == 0 else "s14"
                    out += f"buffer_load_dwordx4 a[{st}:{st+3}], v2, {WS}, {so} offen offset:{(sl-8)*1024} sc1\n"
            return out
        for sl in range(10): self.vm(oload(sl), f"o{sl}")
        def aread(sl):
            st = 16 + 20*(sl % 2)
            return [f"ds_read_b128 v[{st+4*j}:{st+4*j+3}], v4 offset:{sl*5120 + j*1024}" for j in range(5)]
        for x in aread(0): a(x)
        for sl in range(10):
            nxt = aread(sl+1) if sl < 9 else []
            self.waitvm(f"o{sl}", "lgkmcnt(0)")
            st = 16 + 20*(sl % 2)
            ni = 0
            for j in range(5):
                for u in range(2):
                    acc = 64 + (u*5 + j)*4
                    b = (u*10 + sl)*4
                    c = f"v[{acc}:{acc+3}]" if sl else "0"
                    a(f"v_mfma_f32_16x16x32_bf16 v[{acc}:{acc+3}], v[{st+4*j}:{st+4*j+3}], a[{b}:{b+3}], {c}")
                    if ni < len(nxt): a(nxt[ni]); ni += 1
        self.stamp("wo_main")
        a(f"""s_mul_i32 s12, {S_W}, 5120
s_add_u32 s12, s12, {SCR}
v_add_u32 v8, s12, v2
s_xor_b32 s12, {S_W}, 2
s_mul_i32 s12, s12, 5120
s_add_u32 s12, s12, {SCR}
v_add_u32 v9, s12, v2
v_lshrrev_b32 v10, 4, v1
v_lshlrev_b32 v11, 4, v10
v_add_u32 v11, {PT_GA}, v11
v_lshlrev_b32 v12, 3, v10
s_mul_i32 s12, {S_V}, 160
s_add_u32 s12, s12, {PT_G2B}
v_add_u32 v12, s12, v12
s_barrier""")
        for j in range(5):
            a(f"ds_write_b128 v8, v[{84+4*j}:{87+4*j}] offset:{1024*j}")
        for j in range(5):
            a(f"ds_read_b128 v[{36+4*j}:{39+4*j}], v11 offset:{64*j}")
        for j in range(5):
            a(f"ds_read_b128 v[{132+4*j}:{135+4*j}], v11 offset:{PT_G2 - PT_GA + 64*j}")
        a("s_waitcnt lgkmcnt(10)\ns_barrier")
        for j in range(5):
            a(f"ds_read_b128 v[{16+4*j}:{19+4*j}], v9 offset:{1024*j}")
        for j in range(5):
            a(f"ds_read_b64 v[{152+2*j}:{153+2*j}], v12 offset:{32*j}")
            a(f"ds_read_b64 v[{162+2*j}:{163+2*j}], v12 offset:{PT_S2B - PT_G2B + 32*j}")
        self.waitvm("xt", "lgkmcnt(15)")
        for j in range(5):
            for d in range(2):
                x = 104 + 2*j + d
                a(f"""v_lshlrev_b32 v{172+4*j+2*d}, 16, v{x}
v_and_b32 v{172+4*j+2*d+1}, 0xffff0000, v{x}
v_fmac_f32 v{172+4*j+2*d}, v{36+4*j+2*d}, v{64+4*j+2*d}
v_fmac_f32 v{172+4*j+2*d+1}, v{36+4*j+2*d+1}, v{64+4*j+2*d+1}""")
        a("s_waitcnt lgkmcnt(10)")
        for j in range(5):
            for d in range(2):
                u0, u1 = 172+4*j+2*d, 172+4*j+2*d+1
                a(f"""v_fmac_f32 v{u0}, v{36+4*j+2*d}, v{16+4*j+2*d}
v_fmac_f32 v{u1}, v{36+4*j+2*d+1}, v{16+4*j+2*d+1}
v_cvt_pk_bf16_f32 v{214+2*j+d}, v{u0}, v{u1}
v_mul_f32 v{u0}, v{u0}, v{132+4*j+2*d}
v_mul_f32 v{u1}, v{u1}, v{132+4*j+2*d+1}
v_cvt_pk_bf16_f32 v{84+2*j+d}, v{u0}, v{u1}""")
        self.vm(f"""s_lshr_b32 s12, {S_TGF}, 1            ; tb
s_and_b32 s13, {S_TGF}, 1
s_lshl_b32 s13, s13, 4
v_and_b32 v8, 15, v1
v_add_u32 v8, s13, v8              ; tok32
v_lshrrev_b32 v13, 1, v10
v_and_b32 v14, 1, v10
v_lshlrev_b32 v15, 4, v8
v_lshl_add_u32 v56, v13, 10, v15
v_lshl_add_u32 v56, v14, 9, v56
v_lshl_add_u32 v57, v13, 9, v15
v_lshl_add_u32 v57, v14, 3, v57
s_mul_i32 s13, s12, 40
s_mul_i32 s14, {S_V}, 5
s_add_u32 s13, s13, s14
s_lshl_b32 s13, s13, 10
s_add_u32 s13, s13, {WS_UF:#x}
buffer_store_dwordx4 v[84:87], v56, {WS}, s13 offen sc1
buffer_store_dwordx4 v[88:91], v56, {WS}, s13 offen offset:2048 sc1
s_add_u32 s13, s13, 4096
buffer_store_dwordx2 v[92:93], v57, {WS}, s13 offen sc1""", "ust")
        a("""s_waitcnt lgkmcnt(0)
v_mov_b32 v58, 0x3f803f80""")
        for k in range(6): a(f"v_mov_b32 v{96+k}, 0")
        for jd in range(10):
            up, tp = 214 + jd, 84 + jd
            a(f"""v_dot2_f32_bf16 v96, v{up}, v58, v96
v_dot2_f32_bf16 v97, v{up}, v{up}, v97
v_dot2_f32_bf16 v98, v{tp}, v58, v98
v_dot2_f32_bf16 v99, v{tp}, v{tp}, v99
v_dot2_f32_bf16 v100, v{tp}, v{152+jd}, v100
v_dot2_f32_bf16 v101, v{tp}, v{162+jd}, v101""")
        self.vm(f"""v_mov_b32 v102, 0
s_nop 2
v_permlane32_swap_b32 v96, v97
v_permlane32_swap_b32 v98, v99
v_permlane32_swap_b32 v100, v101
v_add_f32 v96, v96, v97
v_add_f32 v98, v98, v99
v_add_f32 v100, v100, v101
v_lshlrev_b32 v15, 5, v8
v_lshl_add_u32 v15, v10, 2, v15
v_permlane16_swap_b32 v96, v98
v_permlane16_swap_b32 v100, v102
s_lshl_b32 s13, s12, 3
s_add_u32 s13, s13, {S_V}
s_lshl_b32 s13, s13, 10
s_add_u32 s13, s13, {WS_ST:#x}
v_add_f32 v96, v96, v98
v_add_f32 v100, v100, v102
buffer_store_dword v96, v15, {WS}, s13 offen sc1
buffer_store_dword v100, v15, {WS}, s13 offen offset:16 sc1""", "ust")
        dma = self.wave_dma("s78", "s77", W1B, 18, 1024, first=0)
        self.stamp("wo_epi", fine=True)
        self.waitvm("ust")
        a(f"""s_barrier
s_lshl_b32 s12, {S_U}, 3
s_add_u32 s12, s12, {S_V}""")
        self.flag_store(3, "s12")
        self.stamp("wo_flag", fine=True)
        for x in dma: self.vm(x, "w1b")

    def phase_w1(self):
        a = self.a
        a("; ---- phase 4: W1 ----")
        a(f"""v_lshlrev_b32 v2, 4, v1
v_add_u32 v4, {W1B}, v2
v_add_u32 v5, {W1B + 20*3072}, v2""")
        def aoff(s, t):
            return ("v4", s*3072 + t*1024) if s < 20 else ("v5", (s-20)*3072 + t*1024)
        a(f"""v_mul_u32_u24 v8, 20, v1
v_add_u32 v8, {PT_G2B}, v8""")
        for d in range(5):
            a(f"ds_read_b32 v{16+d}, v8 offset:{4*d}\nds_read_b32 v{24+d}, v8 offset:{PT_S2B - PT_G2B + 4*d}")
        a("v_mov_b32 v58, 0x3f803f80")
        for k in range(5): a(f"v_mov_b32 v{148+k}, 0")
        a("s_waitcnt lgkmcnt(0)")
        for d in range(5):
            a(f"""v_dot2_f32_bf16 v148, v{16+d}, v58, v148
v_dot2_f32_bf16 v149, v{16+d}, v{16+d}, v149
v_dot2_f32_bf16 v150, v{16+d}, v{24+d}, v150
v_dot2_f32_bf16 v151, v{24+d}, v58, v151
v_dot2_f32_bf16 v152, v{24+d}, v{24+d}, v152""")
        for ror in (1, 2, 4, 8):
            for k in range(5):
                a(f"v_add_f32_dpp v{148+k}, v{148+k}, v{148+k} row_ror:{ror} row_mask:0xf bank_mask:0xf")
        for k in range(5): a(f"v_mov_b32 v{16+k}, v{148+k}")
        for k in range(5): a(f"v_permlane16_swap_b32 v{148+k}, v{16+k}")
        for k in range(5): a(f"v_add_f32 v{148+k}, v{148+k}, v{16+k}")
        for k in range(5): a(f"v_mov_b32 v{16+k}, v{148+k}")
        for k in range(5): a(f"v_permlane32_swap_b32 v{148+k}, v{16+k}")
        for k in range(5): a(f"v_add_f32 v{148+k}, v{148+k}, v{16+k}")
        a(f"""v_and_b32 v8, 15, v1               ; col
v_lshrrev_b32 v9, 4, v1            ; G
v_xor_b32 v10, v8, v9
v_and_b32 v10, 1, v10
v_lshrrev_b32 v11, 1, v8           ; vec
v_cmp_eq_u32 vcc, 0, v10
v_cmp_gt_u32 s[66:67], 2, v11
s_nop 1
s_and_b64 s[66:67], s[66:67], vcc
v_mov_b32 v12, 0
v_mov_b32 v13, -1
v_cndmask_b32 v60, v12, v13, s[66:67]     ; and-mask
v_cmp_eq_u32 s[66:67], 2, v11
s_nop 1
s_and_b64 s[66:67], s[66:67], vcc
v_mov_b32 v13, 0x3f803f80
v_cndmask_b32 v61, v12, v13, s[66:67]     ; or-constant
v_and_b32 v11, 1, v11
v_mul_u32_u24 v11, {PT_S2B - PT_G2B}, v11
v_lshrrev_b32 v9, 1, v9            ; h
v_lshl_add_u32 v62, v9, 3, v11
v_add_u32 v62, {PT_G2B}, v62
v_lshl_add_u32 v63, v9, 4, v11
v_add_u32 v63, {PT_G2B}, v63""")
        a(f"""s_mul_i32 s76, {S_V}, 245760
s_add_u32 s76, s76, {WS_W2P:#x}""")
        if not self.o.get("no_w2a"):
            self.w2_dma([(0, ph, ph) for ph in range(6)], tag="w2a")
        a(f"""v_and_b32 v8, 15, v1
s_lshl_b32 s12, {S_T1}, 4
v_add_u32 v8, s12, v8
v_lshlrev_b32 v8, 7, v8
v_add_u32 v14, {WS_FLAGS + 3*0x8000:#x}, v8
v_lshlrev_b32 v2, 4, v1""")
        self.stamp("w1_gsc", fine=True)
        self.poll("v14", drain="w1b", extra="lgkmcnt(0)")
        self.stamp("w1_poll")
        a(f"""s_lshl_b32 s12, {S_T1}, 2
s_add_u32 s12, s12, {S_W}          ; tb
s_mul_i32 s13, s12, 40960
s_add_u32 s13, s13, {WS_UF:#x}""")
        PF = self.o.get("w1_pf", 16)
        def uload(s):
            pre = "s_add_u32 s13, s13, 4096\n" if (s % 4 == 0 and s > 0) else ""
            return pre + f"buffer_load_dwordx4 a[{4*s}:{4*s+3}], v2, {WS}, s13 offen offset:{(s%4)*1024} sc1"
        for s in range(PF): self.vm(uload(s), f"u{s}")
        a(f"""s_lshl_b32 s14, s12, 13
s_add_u32 s14, s14, {WS_ST:#x}
v_and_b32 v8, 31, v1
v_lshlrev_b32 v8, 5, v8
v_lshrrev_b32 v9, 5, v1
v_lshl_add_u32 v8, v9, 4, v8""")
        for Vp in range(8):
            pre = "s_add_u32 s14, s14, 4096\n" if Vp == 4 else ""
            self.vm(pre + f"buffer_load_dwordx4 v[{116+4*Vp}:{119+4*Vp}], v8, {WS}, s14 offen offset:{(Vp%4)*1024} sc1", "st")
        def aread(s):
            st = 16 + 12*(s % 3)
            out = []
            for t in range(3):
                b, off = aoff(s, t)
                out.append(f"ds_read_b128 v[{st+4*t}:{st+4*t+3}], {b} offset:{off}")
            return out
        def pbread(s):
            st = 52 + 4*(s % 2)
            Vp, i = divmod(s, 5)
            if i < 4:
                k0 = 80*Vp + 32*(i >> 1) + 8*(i & 1)
                return [f"ds_read_b64 v[{st}:{st+1}], v62 offset:{2*k0}", f"ds_read_b64 v[{st+2}:{st+3}], v62 offset:{2*(k0+16)}"]
            k0 = 80*Vp + 64
            return [f"ds_read_b64 v[{st}:{st+1}], v63 offset:{2*k0}", f"ds_read_b64 v[{st+2}:{st+3}], v63 offset:{2*(k0+4)}"]
        for x in aread(0) + aread(1): a(x)
        self.touch_setup(13, 60)
        touches = []
        for i in range(2):
            self.touch_base(f"s{90+i}", 120, i, 60)
            a(f"s_add_u32 s{90+i}, s{90+i}, {WS_W2P:#x}")
            touches.append(f"buffer_load_dword v248, v13, {WS}, s{90+i} offen sc1")
        if not self.o.get("w2touch"): touches = []
        nxt_u = PF
        q_save = None
        for seg in range(4):
            lA = self.lab("gsA"); lJ = self.lab("gsJ")
            a(f"s_cmp_eq_u32 {S_W}, {seg}\ns_cbranch_scc1 {lA}")
            q0 = list(self.q); nu0 = nxt_u; t0 = list(touches)
            for ver in (0, 1):
                self.q = list(q0); nxt_u = nu0; touches = list(t0)
                if ver == 1:
                    a(f"s_branch {lJ}\n{lA}:")
                    for x in pbread(10*seg): a(x)
                    a("s_waitcnt lgkmcnt(0)")
                for s in range(10*seg, 10*seg + 10):
                    self.waitvm(f"u{s}", f"lgkmcnt({3 if s < 39 else 0})")
                    nxt = aread(s+2) if s + 2 < 40 else []
                    st = 16 + 12*(s % 3)
                    if ver == 1 and s + 1 < 10*seg + 10:
                        for x in pbread(s+1): a(x)
                    for t in range(3):
                        c = f"v[{64+16*t}:{79+16*t}]" if s else "0"
                        a(f"v_mfma_f32_32x32x16_bf16 v[{64+16*t}:{79+16*t}], v[{st+4*t}:{st+4*t+3}], a[{4*s}:{4*s+3}], {c}")
                        for x in nxt[t:t+1]: a(x)
                        if t == 0 and nxt_u < 40:
                            self.vm(uload(nxt_u), f"u{nxt_u}"); nxt_u += 1
                        elif t == 0 and touches:
                            self.vm(touches.pop(0), "touch")
                        if ver == 1 and t == 0:
                            pb = 52 + 4*(s % 2)
                            for d in range(4): a(f"v_and_or_b32 v{pb+d}, v{pb+d}, v104b, v105b".replace("v104b", "v60").replace("v105b", "v61"))
                    if ver == 1:
                        pb = 52 + 4*(s % 2)
                        for t in range(3):
                            c = f"v[{160+4*t}:{163+4*t}]" if s > 10*seg else "0"
                            a(f"v_mfma_f32_16x16x32_bf16 v[{160+4*t}:{163+4*t}], v[{st+4*t}:{st+4*t+3}], v[{pb}:{pb+3}], {c}")
            a(f"{lJ}:")
        self.stamp("w1_main")
        a(f"""v_and_b32 v8, 15, v1
v_lshrrev_b32 v9, 4, v1
v_lshrrev_b32 v10, 1, v8
v_mul_u32_u24 v10, 384, v10
v_and_b32 v11, 1, v8
v_lshl_add_u32 v10, v11, 6, v10
v_lshl_add_u32 v10, v9, 4, v10
s_mul_i32 s14, {S_W}, 1152
s_add_u32 s14, s14, {PT_PART}
v_add_u32 v10, s14, v10
v_cmp_gt_u32 vcc, 6, v8
s_and_saveexec_b64 s[66:67], vcc
s_nop 4""")
        for t in range(3):
            a(f"ds_write_b128 v10, v[{160+4*t}:{163+4*t}] offset:{128*t}")
        a(f"""s_mov_b64 exec, s[66:67]
s_waitcnt lgkmcnt(0)
s_barrier
v_lshlrev_b32 v8, 4, v0
v_min_u32 v8, 71*16, v8
v_add_u32 v9, {PT_PART}, v8
ds_read_b128 v[16:19], v9
ds_read_b128 v[20:23], v9 offset:1152
ds_read_b128 v[24:27], v9 offset:2304
ds_read_b128 v[28:31], v9 offset:3456
v_add_u32 v15, {PT_VEC}, v8""")
        self.waitvm("st")
        for e in range(4):
            a(f"""v_add_f32 v{116+e}, v{116+e}, v{120+e}
v_add_f32 v{124+e}, v{124+e}, v{128+e}
v_add_f32 v{132+e}, v{132+e}, v{136+e}
v_add_f32 v{140+e}, v{140+e}, v{144+e}
v_add_f32 v{116+e}, v{116+e}, v{124+e}
v_add_f32 v{132+e}, v{132+e}, v{140+e}
v_add_f32 v{116+e}, v{116+e}, v{132+e}""")
        for e in range(4): a(f"v_mov_b32 v{120+e}, v{116+e}")
        for e in range(4): a(f"v_permlane32_swap_b32 v{116+e}, v{120+e}")
        inv = f2h(1/640); eps = f2h(1e-5)
        a(f"""v_mul_f32 v124, {inv}, v116                 ; m1
v_mul_f32 v125, {inv}, v118
v_fma_f32 v125, -v124, v124, v125
v_max_f32 v125, 0, v125
v_add_f32 v125, {eps}, v125
v_rsq_f32 v125, v125                        ; r1
v_fma_f32 v126, -v124, v148, v117           ; P3 - m1*Sg
v_fma_f32 v126, v126, v125, v151            ; sum h2
v_mul_f32 v126, {inv}, v126                 ; m2
v_mul_f32 v127, v124, v149                  ; m1*Sg2
v_fma_f32 v127, -2.0, v120, v127            ; m1*Sg2 - 2*P5
v_fma_f32 v127, v124, v127, v119            ; P4 - 2 m1 P5 + m1^2 Sg2
v_mul_f32 v127, v127, v125
v_fma_f32 v128, -v124, v150, v122           ; P6 - m1*Sgs
v_fma_f32 v127, 2.0, v128, v127
v_fma_f32 v127, v127, v125, v152            ; sum h2^2
v_mul_f32 v127, {inv}, v127
v_fma_f32 v127, -v126, v126, v127
v_max_f32 v127, 0, v127
v_add_f32 v127, {eps}, v127
v_rsq_f32 v127, v127                        ; r2
s_nop 0
v_mul_f32 v116, v125, v127                  ; A
v_mul_f32 v117, v116, v124
v_sub_f32 v117, 0, v117                     ; B
v_mov_b32 v118, v127                        ; C
v_mul_f32 v119, v127, v126
v_sub_f32 v119, 0, v119                     ; D
s_waitcnt lgkmcnt(0)""")
        for e in range(4):
            a(f"v_add_f32 v{16+e}, v{16+e}, v{20+e}\nv_add_f32 v{24+e}, v{24+e}, v{28+e}\nv_add_f32 v{16+e}, v{16+e}, v{24+e}")
        a("""v_cmp_gt_u32 vcc, 72, v0
s_and_saveexec_b64 s[66:67], vcc
ds_write_b128 v15, v[16:19]
s_mov_b64 exec, s[66:67]
s_waitcnt lgkmcnt(0)
s_barrier""")
        kk = 2*0.7978845608028654*1.4426950408889634
        a(f"""v_lshrrev_b32 v8, 5, v1
v_lshlrev_b32 v9, 4, v8
v_add_u32 v9, {PT_B1}, v9          ; + h*16
v_and_b32 v10, 15, v1
v_bfe_u32 v11, v1, 4, 1
s_lshl_b32 s13, s12, 1
v_add_u32 v11, s13, v11             ; tg16
v_mul_u32_u24 v11, 49152, v11
v_lshl_add_u32 v11, v10, 4, v11
v_lshl_add_u32 v11, v8, 8, v11
s_mul_i32 s13, {S_J}, 3072
s_add_u32 s13, s13, {WS_HF:#x}
s_nop 0""")
        def vreads(qi):
            t, i = divmod(qi, 4)
            o = 128*t + 32*i
            b = 16 + 16*(qi % 2)
            return [f"ds_read_b128 v[{b}:{b+3}], v9 offset:{PT_VEC - PT_B1 + o}", f"ds_read_b128 v[{b+4}:{b+7}], v9 offset:{PT_VEC - PT_B1 + 384 + o}",
                    f"ds_read_b128 v[{b+8}:{b+11}], v9 offset:{PT_VEC - PT_B1 + 768 + o}", f"ds_read_b128 v[{b+12}:{b+15}], v9 offset:{o}"]
        a(f"""v_mov_b32 v120, v117
v_mov_b32 v122, v118
v_mov_b32 v124, v119
v_mov_b32 v126, {f2h(-kk*0.044715)}
v_mov_b32 v128, {f2h(-kk)}
v_mov_b32 v130, 1.0
v_mov_b32 v131, 1.0""")
        if self.o.get("w2reg", 0):
            a(f"""s_mul_i32 s76, {S_V}, 245760
s_add_u32 s76, s76, {WS_W2P:#x}
s_lshl_b32 s77, {S_W}, 10
s_add_u32 s78, s76, s77
s_add_u32 s88, s78, {15*5120}
s_add_u32 s89, s78, {39*5120 - 45*1024}
s_cmp_eq_u32 {S_W}, 0
s_cselect_b32 s90, s88, s89
s_min_u32 s77, {S_W}, 1
s_lshl_b32 s77, s77, 10
s_add_u32 s91, s76, s77
s_add_u32 s91, s91, {39*5120 - 45*1024}""")
            self.w2s2 = [(i, f"a[{192+4*i}:{195+4*i}]" if i < 16 else f"v[{160+4*(i-16)}:{163+4*(i-16)}]") for i in range(23)]
            w2r = []
            for (i, reg) in self.w2s2:
                base = "s88" if i <= 10 else ("s90" if i == 11 else ("s89" if i < 22 else "s91"))
                w2r.append(f"s_add_u32 s79, {base}, {4096*i}\nbuffer_load_dwordx4 {reg}, v2, {WS}, s79 offen sc1")
        else:
            w2r = []
        BC = "op_sel_hi:[0,1,1]"
        for x in vreads(0): a(x)
        for qi in range(12):
            t, i = divmod(qi, 4)
            b = 16 + 16*(qi % 2)
            if qi < 11:
                for x in vreads(qi+1): a(x)
                a("s_waitcnt lgkmcnt(4)")
            else:
                a("s_waitcnt lgkmcnt(0)")
            z0 = 64 + 16*t + 4*i
            P = lambda r: f"v[{r}:{r+1}]"
            for h2 in (0, 2): a(f"v_pk_fma_f32 {P(z0+h2)}, v[116:117], {P(z0+h2)}, {P(b+12+h2)} {BC}")
            for h2 in (0, 2): a(f"v_pk_fma_f32 {P(z0+h2)}, v[120:121], {P(b+h2)}, {P(z0+h2)} {BC}")
            for h2 in (0, 2): a(f"v_pk_fma_f32 {P(z0+h2)}, v[122:123], {P(b+4+h2)}, {P(z0+h2)} {BC}")
            for h2 in (0, 2): a(f"v_pk_fma_f32 {P(z0+h2)}, v[124:125], {P(b+8+h2)}, {P(z0+h2)} {BC}")
            for h2 in (0, 2): a(f"v_pk_mul_f32 {P(48+h2)}, {P(z0+h2)}, {P(z0+h2)}")
            for h2 in (0, 2): a(f"v_pk_fma_f32 {P(48+h2)}, v[126:127], {P(48+h2)}, v[128:129] op_sel_hi:[0,1,0]")
            for h2 in (0, 2): a(f"v_pk_mul_f32 {P(48+h2)}, {P(z0+h2)}, {P(48+h2)}")
            if w2r: self.vm(w2r.pop(0), "w2r")
            for e in range(4): a(f"v_exp_f32 v{48+e}, v{48+e}")
            for h2 in (0, 2): a(f"v_pk_add_f32 {P(48+h2)}, {P(48+h2)}, v[130:131]")
            if w2r: self.vm(w2r.pop(0), "w2r")
            for e in range(4): a(f"v_rcp_f32 v{48+e}, v{48+e}")
            for h2 in (0, 2): a(f"v_pk_mul_f32 {P(z0+h2)}, {P(z0+h2)}, {P(48+h2)}")
            d = 52 + 2*i
            a(f"v_cvt_pk_bf16_f32 v{d}, v{z0}, v{z0+1}\nv_cvt_pk_bf16_f32 v{d+1}, v{z0+2}, v{z0+3}")
            if i % 2 == 1:
                self.vm(f"buffer_store_dwordx4 v[{52+4*(i>>1)}:{55+4*(i>>1)}], v11, {WS}, s13 offen offset:{1024*t + 512*(i>>1)} sc1", "hst")
        assert not w2r
        self.stamp("w1_epi", fine=True)
        self.waitvm("hst")
        a(f"""s_barrier
s_lshl_b32 s12, {S_T1}, 4
s_add_u32 s12, s12, {S_J}""")
        self.flag_store(4, "s12")

    def w2_dma(self, groups, tag="w2"):
        pcs = [((kh*24 + ph)*5120 + j*1024, kh*76800 + slot*5120 + j*1024) for (kh, ph, slot) in groups for j in range(5)]
        while len(pcs) % 4: pcs.append(pcs[len(pcs) % 4])
        a = self.a
        n = len(pcs)//4
        labs = [self.lab(f"w2d{w}") for w in range(4)]
        lend = self.lab("w2de")
        for w in range(1, 4):
            a(f"s_cmp_eq_u32 {S_W}, {w}\ns_cbranch_scc1 {labs[w]}")
        a("s_nop 0")
        for w in range(4):
            a(f"{labs[w]}:")
            for x in self.lin_dma("s76", 0, pcs[w::4]): a(x)
            if w < 3: a(f"s_branch {lend}")
        a(f"{lend}:")
        self.q += [tag]*n

    def phase_w2(self):
        a = self.a
        SCR = 0
        a("; ---- phase 5: W2 ----")
        a(f"""v_lshlrev_b32 v2, 4, v1
s_mul_i32 s76, {S_V}, 245760
s_add_u32 s76, s76, {WS_W2P:#x}""")
        done = set() if self.o.get("no_w2a") else {(0, ph) for ph in range(6)}
        self.w2_dma([(kh, ph, ph) for ph in range(15) for kh in range(2) if (kh, ph) not in done])
        a(f"""v_and_b32 v8, 15, v1
s_lshr_b32 s12, {S_U}, 1
s_lshl_b32 s12, s12, 4
v_add_u32 v8, s12, v8
v_lshlrev_b32 v8, 7, v8
v_add_u32 v14, {WS_FLAGS + 4*0x8000:#x}, v8
s_lshr_b32 s13, {S_W}, 1
s_mul_i32 s13, s13, 76800
v_add_u32 v4, s13, v2
v_add_u32 v5, {8*5120}, v4""")
        self.stamp("w2_dmaiss", fine=True)
        self.poll("v14", drain="w2")
        self.stamp("w2_poll")
        a(f"""s_lshr_b32 s13, {S_W}, 1
s_mul_i32 s13, s13, 24576
s_add_u32 s13, s13, {WS_HF:#x}
s_mul_i32 s12, {S_TGF}, 49152
s_add_u32 s12, s12, s13
s_mul_i32 s14, {S_TG1}, 49152
s_add_u32 s14, s14, s13""")
        PF = self.o.get("w2_pf", 8)
        def hload(ph):
            out = "s_add_u32 s12, s12, 4096\ns_add_u32 s14, s14, 4096\n" if (ph % 4 == 0 and ph > 0) else ""
            for u, so in ((0, "s12"), (1, "s14")):
                st = (u*24 + ph)*4
                out += f"buffer_load_dwordx4 a[{st}:{st+3}], v2, {WS}, {so} offen offset:{(ph%4)*1024} sc1\n"
            return out
        for ph in range(PF): self.vm(hload(ph), f"h{ph}")
        slot = lambda ph: ph if ph < 15 else ph - 15
        def aread(ph):
            st = 16 + 20*(ph % 2)
            sl = slot(ph)
            b, o = ("v4", sl*5120) if sl < 8 else ("v5", (sl-8)*5120)
            return [f"ds_read_b128 v[{st+4*j}:{st+4*j+3}], {b} offset:{o + j*1024}" for j in range(5)]
        for x in aread(0): a(x)
        nxt_h = PF
        w2w = []
        nw = 0
        for ph in range(24):
            if ph == 15:
                self.waitvm("w2", "lgkmcnt(0)")
                a("s_barrier")
                for x in aread(15): a(x)
                nw = 0
            if ph in (1, 9, 15): self.stamp(f"w2_ph{ph}", fine=True)
            self.waitvm(f"h{ph}", f"lgkmcnt({nw})")
            nw = 0
            nxt = aread(ph+1) if (ph < 23 and ph != 14) else []
            st = 16 + 20*(ph % 2)
            ni = 0
            for j in range(5):
                for u in range(2):
                    acc = 64 + (u*5 + j)*4
                    b = (u*24 + ph)*4
                    c = f"v[{acc}:{acc+3}]" if ph else "0"
                    a(f"v_mfma_f32_16x16x32_bf16 v[{acc}:{acc+3}], v[{st+4*j}:{st+4*j+3}], a[{b}:{b+3}], {c}")
                    if ni < len(nxt): a(nxt[ni]); ni += 1
                    if j == 3 and u == 1 and nxt_h < 24:
                        self.vm(hload(nxt_h), f"h{nxt_h}"); nxt_h += 1
                    if w2w and 5 <= 2*j + u <= 8:
                        a(w2w.pop(0)); nw += 1
            if ph == 14: assert not w2w
            if ph == 8:
                a("s_waitcnt lgkmcnt(0)\ns_barrier")
                if self.o.get("w2reg", 0):
                    a(f"""s_lshl_b32 s77, {S_W}, 10
v_add_u32 v8, s77, v2
v_add_u32 v9, {30720 + 12*4096}, v8
s_cmp_eq_u32 {S_W}, 0
s_cselect_b32 s78, 0, 30720
s_add_u32 s78, s78, s77
s_add_u32 s78, s78, {11*4096}
v_add_u32 v10, s78, v2
s_min_u32 s78, {S_W}, 1
s_lshl_b32 s78, s78, 10
s_add_u32 s78, s78, {30720 + 22*4096}
v_add_u32 v11, s78, v2""")
                    for (i_, reg) in self.w2s2:
                        if i_ <= 10: w2w.append(f"ds_write_b128 v8, {reg} offset:{4096*i_}")
                        elif i_ == 11: w2w.append(f"ds_write_b128 v10, {reg}")
                        elif i_ < 22: w2w.append(f"ds_write_b128 v9, {reg} offset:{4096*(i_-12)}")
                        else: w2w.append(f"ds_write_b128 v11, {reg}")
                else:
                    self.w2_dma([(kh, p2, p2 - 15) for p2 in range(15, 24) for kh in range(2)])
        self.stamp("w2_main")
        a(f"""s_mul_i32 s12, {S_W}, 5120
s_add_u32 s12, s12, {SCR}
v_add_u32 v8, s12, v2
s_xor_b32 s12, {S_W}, 2
s_mul_i32 s12, s12, 5120
s_add_u32 s12, s12, {SCR}
v_add_u32 v9, s12, v2
v_lshrrev_b32 v10, 4, v1
v_lshlrev_b32 v11, 4, v10
v_add_u32 v11, {PT_GA}, v11
s_barrier""")
        for j in range(5):
            a(f"ds_write_b128 v8, v[{84+4*j}:{87+4*j}] offset:{1024*j}")
        for j in range(5):
            a(f"ds_read_b128 v[{36+4*j}:{39+4*j}], v11 offset:{PT_B2 - PT_GA + 64*j}")
        for j in range(5):
            a(f"ds_read_b128 v[{132+4*j}:{135+4*j}], v11 offset:{PT_GB - PT_GA + 64*j}")
        self.srd(SC, P_OUT, 2048*1280)
        a(f"""v_and_b32 v8, 15, v1
s_lshl_b32 s12, {S_TGF}, 4
v_add_u32 v8, s12, v8
v_mul_u32_u24 v8, 1280, v8
v_lshl_add_u32 v15, v10, 3, v8
s_mul_i32 s12, {S_V}, 160
s_waitcnt lgkmcnt(10)
s_barrier""")
        for j in range(5):
            a(f"ds_read_b128 v[{16+4*j}:{19+4*j}], v9 offset:{1024*j}")
        a("s_waitcnt lgkmcnt(5)")
        for j in range(5):
            for e in range(4):
                a(f"v_add_f32 v{64+4*j+e}, v{64+4*j+e}, v{36+4*j+e}")
        a("s_waitcnt lgkmcnt(0)")
        for j in range(5):
            for e in range(4):
                a(f"v_add_f32 v{64+4*j+e}, v{64+4*j+e}, v{16+4*j+e}")
            for d in range(2):
                x = 214 + 2*j + d
                a(f"""v_lshlrev_b32 v56, 16, v{x}
v_and_b32 v57, 0xffff0000, v{x}
v_fmac_f32 v56, v{132+4*j+2*d}, v{64+4*j+2*d}
v_fmac_f32 v57, v{132+4*j+2*d+1}, v{64+4*j+2*d+1}
v_cvt_pk_bf16_f32 v{104+2*j+d}, v56, v57""")
            self.vm(f"buffer_store_dwordx2 v[{104+2*j}:{105+2*j}], v15, {SC}, s12 offen offset:{32*j} {self.o.get('outfl', '')}", "out")

    def build(self):
        a = self.a
        a.label("L_code_begin")
        self.prologue()
        self.stamp("start", real=True)
        self.stamp("t0")
        self.srd("s[72:75]", P_WQKV, 640*3840)
        self.phase0()
        self.stamp("p0_done")
        if self.stop_after >= 1:
            self.phase_qkv()
            self.stamp("qkv_pub")
        if self.stop_after >= 2:
            self.phase_att()
            self.stamp("att_pub")
        if self.stop_after >= 3:
            self.phase_wo()
            self.stamp("wo_pub")
        if self.stop_after >= 4:
            self.phase_w1()
            self.stamp("w1_pub")
        if self.stop_after >= 5:
            self.phase_w2()
            self.stamp("end")
        if self.prof:
            a("s_waitcnt vmcnt(0) lgkmcnt(0)")
            self.stamp("end", real=True)
            self.stamp_flush()
        a.label("L_end")
        a("s_endpgm")
        self.att_slow_paths()
        a.label("L_code_end")
        body = a.finish()
        hdr = open(os.path.join(os.path.dirname(os.path.abspath(__file__)), "header.txt")).read()
        return f"""{hdr}; @launch grid=(256,1,1) block=(256,1,1) lds=163840
.amdgcn_target "amdgcn-amd-amdhsa--gfx950"
.text
.globl {NAME}_kernel
.p2align 8
.type {NAME}_kernel,@function
{NAME}_kernel:
{body}
.section .rodata,"a"
.p2align 6
.amdhsa_kernel {NAME}_kernel
  .amdhsa_next_free_vgpr 512
  .amdhsa_next_free_sgpr 102
  .amdhsa_accum_offset 256
  .amdhsa_group_segment_fixed_size 0
  .amdhsa_kernarg_size 104
  .amdhsa_user_sgpr_count 2
  .amdhsa_user_sgpr_kernarg_segment_ptr 1
  .amdhsa_system_sgpr_workgroup_id_x 1
  .amdhsa_float_denorm_mode_32 3
.end_amdhsa_kernel
"""

if __name__ == "__main__":
    import argparse, json
    ap = argparse.ArgumentParser()
    ap.add_argument("-o", default=f"cdna_kernels/{NAME}.s")
    ap.add_argument("--stop", type=int, default=99)
    ap.add_argument("--prof", action="store_true")
    ap.add_argument("--opts", default="{}")
    args = ap.parse_args()
    g = G(stop_after=args.stop, prof=args.prof, opts=json.loads(args.opts))
    s = g.build()
    open(args.o, "w").write(s)
    json.dump(g.stamps, open(args.o + ".stamps.json", "w"))
    print("wrote", args.o, len(s), "bytes; nops inserted:", g.a.inserted)
```

```python
import sys, os, struct, re
sys.path.insert(0, os.path.dirname(os.path.abspath(__file__)))
from asm import Asm

NAME = "adaLN_cond__sliding_block__mixer_channel_mlp__prompt"

WS_FLAGS = 0x0
WS_MODP = 0x40000
WS_ST = 0x50000
WS_NF = 0x100000
WS_KF = 0x400000
WS_VF = 0x700000
WS_OF = 0xA00000
WS_UF = 0xD00000
WS_HF = 0x1000000
WS_TS = 0x1800000
WS_WQP = 0x2000000
WS_WOP = 0x2400000
WS_W1P = 0x2600000
WS_W2P = 0x2A00000
WS_SIZE = 0x10000000
OOB = 0x7F000000
PT = 153600
PT_GA, PT_G2, PT_GB, PT_B2, PT_B1 = PT, PT + 320, PT + 640, PT + 960, PT + 1280
PT_G2B, PT_S2B, PT_VEC, PT_PART = PT + 1664, PT + 2944, PT + 4224, PT + 5376
KB_ = 81920
VB_ = KB_ + 12*2560
PK = 128000
W1B = 30720

S_W, S_EP, S_P, S_T, S_U, S_V, S_T1, S_J = "s4", "s5", "s6", "s7", "s8", "s9", "s10", "s11"
S_TGF, S_TG1, S_R = "s42", "s43", "s3"
P_X, P_WQKV, P_WO, P_W1, P_B1, P_W2, P_B2, P_C, P_WMOD, P_OUT, P_DBG, P_WS = 16, 18, 20, 24, 26, 28, 30, 32, 34, 36, 38, 40
WS = "s[44:47]"; SA = "s[48:51]"; SB = "s[52:55]"; SC = "s[56:59]"; DBG = "s[60:63]"

def f2h(x):
    return hex(struct.unpack("<I", struct.pack("<f", x))[0])

class G:
    def __init__(self, stop_after=99, prof=False, timeout=1 << 20, opts=None):
        self.a = Asm()
        self.stop_after = stop_after
        self.prof = prof
        self.timeout = timeout
        self.nlab = 0
        self.q = []
        self.o = opts or {}
        self.stamps = []
        self.att_slow = []
    def lab(self, s):
        self.nlab += 1
        return f"L_{s}_{self.nlab}"
    def srd(self, q, ptr, size):
        b = int(q[2:q.index(":")])
        self.a(f"""s_mov_b32 s{b}, s{ptr}
s_mov_b32 s{b+1}, s{ptr+1}
s_mov_b32 s{b+2}, {size:#x}
s_mov_b32 s{b+3}, 0x00020000""")
    def vm(self, text, tag="x"):
        self.a(text)
        for l in text.split("\n"):
            if l.strip().startswith(("buffer_", "global_")):
                self.q.append(tag)
    def vmn(self, tag):
        idx = [i for i, t in enumerate(self.q) if t == tag]
        if not idx:
            return None
        return len(self.q) - 1 - idx[-1]
    def waitvm(self, tag, extra=""):
        n = self.vmn(tag)
        if n is None:
            if extra: self.a(f"s_waitcnt {extra}")
            return
        last = len(self.q) - 1 - n
        self.q = self.q[last+1:]
        if n > 63:
            n = 63
        self.a(f"s_waitcnt vmcnt({n}) {extra}".strip())
    def waitall(self, extra=""):
        self.q = []
        self.a(f"s_waitcnt vmcnt(0) {extra}".strip())
    def stamp(self, name, real=False, fine=False):
        if not self.prof or (fine and not self.o.get("fine")):
            return
        if real:
            idx = {"start": 62, "end": 63}[name]
        else:
            idx = len(self.stamps); self.stamps.append(name)
            assert idx < 61
        self.a(f"""{'s_memrealtime' if (real or self.o.get('rt')) else 's_memtime'} s[100:101]
s_waitcnt lgkmcnt(0)
v_writelane_b32 v255, s100, {idx}""")
    def stamp_flush(self):
        if not self.prof:
            return
        self.a(f"""s_lshl_b32 s12, s2, 2
s_add_u32 s12, s12, {S_W}
s_lshl_b32 s12, s12, 8
s_add_u32 s12, s12, {WS_TS:#x}
v_lshlrev_b32 v254, 2, v1
buffer_store_dword v255, v254, {WS}, s12 offen""")

    def code_touch(self):
        if self.o.get("no_ct"): return
        l = self.lab("ct")
        self.a(f"""s_cmp_lg_u32 {S_W}, 3
s_cbranch_scc1 {l}
s_lshl_b32 s64, {S_R}, 4
v_and_b32 v249, 15, v1
v_add_u32 v249, s64, v249
v_lshlrev_b32 v249, 7, v249
v_min_u32 v249, L_code_end-L_code_begin-4, v249
global_load_dword v249, v249, s[22:23]
{l}:""")

    def flag_store(self, phase, idx_sgpr):
        a = self.a
        l = self.lab("fs")
        sh = 2 if (phase == 0 and self.o.get("dense0", 0)) else 7
        a(f"""s_cmp_lg_u32 {S_W}, 0
s_cbranch_scc1 {l}
s_lshl_b32 s64, {idx_sgpr}, {sh}
s_add_u32 s64, s64, {WS_FLAGS + phase*0x8000:#x}
v_mov_b32 v252, {S_EP}
v_mov_b32 v253, 0
s_mov_b64 exec, 1
buffer_store_dword v252, v253, {WS}, s64 offen sc1
s_mov_b64 exec, -1
{l}:""")
        if phase != 5: self.code_touch()

    def poll(self, vaddrs, drain=None, extra="", wide=False):
        if not self.o.get("ppoll") and not wide:
            return self.poll_old(vaddrs, drain, extra)
        a = self.a
        v = vaddrs if isinstance(vaddrs, str) else vaddrs[0]
        l = self.lab("pl"); l2 = self.lab("pd")
        n = 4 if wide else 1
        R = [(232 + 4*i if False else 0) for i in range(4)]
        regs = [16 + 4*i for i in range(4)] if wide else [250, 251, 252, 253]
        ld = lambda r: (f"buffer_load_dwordx4 v[{r}:{r+3}], {v}, {WS}, 0 offen sc1" if wide else f"buffer_load_dword v{r}, {v}, {WS}, 0 offen sc1")
        def chk(r):
            if wide:
                return (f"v_xor_b32 v{r}, {S_EP}, v{r}\nv_xor_b32 v{r+1}, {S_EP}, v{r+1}\nv_xor_b32 v{r+2}, {S_EP}, v{r+2}\nv_xor_b32 v{r+3}, {S_EP}, v{r+3}\n"
                        f"v_or3_b32 v{r}, v{r}, v{r+1}, v{r+2}\nv_or_b32 v{r}, v{r}, v{r+3}\nv_cmp_ne_u32 vcc, 0, v{r}")
            return f"v_cmp_ne_u32 vcc, {S_EP}, v{r}"
        a(f"""s_cmp_lg_u32 {S_W}, 0
s_cbranch_scc1 {l2}
s_mov_b32 s64, 0""")
        for r in regs[:3]: a(ld(r))
        a(f"{l}:")
        for i in range(4):
            a(ld(regs[(i+3) % 4]))
            a("s_waitcnt vmcnt(3)")
            a(chk(regs[i]))
            a(f"s_nop 3\ns_cmp_eq_u64 vcc, 0\ns_cbranch_scc1 {l2}")
        a(f"""s_add_u32 s64, s64, 1
s_cmp_gt_u32 s64, {self.timeout}
s_cbranch_scc0 {l}
{l2}:""")
        if drain:
            self.waitvm(drain, extra)
        elif extra:
            a(f"s_waitcnt {extra}")
        a("s_barrier")

    def poll_old(self, vaddrs, drain=None, extra=""):
        a = self.a
        if isinstance(vaddrs, str): vaddrs = [vaddrs]
        l = self.lab("pl"); l2 = self.lab("pd")
        a(f"""s_cmp_lg_u32 {S_W}, 0
s_cbranch_scc1 {l2}
s_mov_b32 s64, 0
{l}:""")
        for i, v in enumerate(vaddrs):
            a(f"buffer_load_dword v{250+i}, {v}, {WS}, 0 offen sc1")
        a(f"""s_add_u32 s64, s64, 1
s_cmp_gt_u32 s64, {self.timeout}
s_cbranch_scc1 {l2}
s_waitcnt vmcnt(0)
v_cmp_ne_u32 vcc, {S_EP}, v250""")
        for i in range(1, len(vaddrs)):
            a(f"""v_cmp_ne_u32 s[66:67], {S_EP}, v{250+i}
s_nop 3
s_or_b64 vcc, vcc, s[66:67]""")
        a(f"""s_nop 3
s_cmp_eq_u64 vcc, 0
s_cbranch_scc1 {l2}""")
        if self.o.get("psleep"): a(f"s_sleep {self.o['psleep']}")
        a(f"""s_branch {l}
{l2}:""")
        if drain:
            self.waitvm(drain, extra)
        elif extra:
            a(f"s_waitcnt {extra}")
        a("s_barrier")

    def touch(self, srd_q, per_wave, i, cnt, dst):
        self.vm(f"""s_mul_i32 s12, {S_R}, {4*per_wave}
s_mul_i32 s13, {S_W}, {per_wave}
s_add_u32 s12, s12, s13
s_add_u32 s12, s12, {i*cnt}
s_lshl_b32 s12, s12, 7
v_lshlrev_b32 v8, 7, v1
v_mov_b32 v9, {OOB:#x}
v_cmp_gt_u32 vcc, {cnt}, v1
s_nop 1
v_cndmask_b32 v8, v9, v8, vcc
buffer_load_dword v{dst}, v8, {srd_q}, s12 offen""", "touch")
    def touch_setup(self, reg, cnt):
        self.a(f"""v_lshlrev_b32 v{reg}, 7, v1
v_mov_b32 v9, {OOB:#x}
v_cmp_gt_u32 vcc, {cnt}, v1
s_nop 1
v_cndmask_b32 v{reg}, v9, v{reg}, vcc""")
    def touch_base(self, sreg, per_wave, i, cnt):
        self.a(f"""s_mul_i32 {sreg}, {S_R}, {4*per_wave*128}
s_mul_i32 s65, {S_W}, {per_wave*128}
s_add_u32 {sreg}, {sreg}, s65
s_add_u32 {sreg}, {sreg}, {i*cnt*128}""")

    def prologue(self):
        a = self.a
        if self.prof: a("s_memrealtime s[98:99]")
        a(f"""s_cmp_ge_u32 s2, 256
s_cbranch_scc1 L_end
s_load_dwordx16 s[16:31], s[0:1], 0
s_load_dwordx8 s[32:39], s[0:1], 64
s_load_dwordx2 s[40:41], s[0:1], 96
s_getpc_b64 s[64:65]
L_pc:
s_add_u32 s64, s64, L_code_begin-L_pc
s_addc_u32 s65, s65, -1
v_and_b32 v1, 63, v0
v_lshrrev_b32 v2, 6, v0
s_lshr_b32 {S_R}, s2, 3
v_readfirstlane_b32 {S_W}, v2
s_and_b32 s13, s2, 7
s_cmp_lg_u32 {S_W}, 3
s_cbranch_scc1 L_nopf
s_lshl_b32 s14, {S_R}, 6
v_add_u32 v3, s14, v1
v_lshlrev_b32 v3, 6, v3
v_min_u32 v3, L_code_end-L_code_begin-4, v3
global_load_dword v248, v3, s[64:65]
L_nopf:
s_lshr_b32 s14, s13, 2
s_lshl_b32 s14, s14, 3
s_and_b32 s15, {S_R}, 7
s_add_u32 {S_T}, s14, s15
s_and_b32 s14, s13, 3
s_lshl_b32 s14, s14, 2
s_lshr_b32 s15, {S_R}, 3
s_add_u32 {S_P}, s14, s15
; wo / w2: U = 8*(x>>1) + (r&7), V = 4*(x&1) + (r>>3)
s_lshr_b32 s14, s13, 1
s_lshl_b32 s14, s14, 3
s_and_b32 s15, {S_R}, 7
s_add_u32 {S_U}, s14, s15
s_and_b32 s14, s13, 1
s_lshl_b32 s14, s14, 2
s_lshr_b32 s15, {S_R}, 3
s_add_u32 {S_V}, s14, s15
; w1: T1 = 4*(x>>1) + (r&3), j = 8*(x&1) + (r>>2)
s_lshr_b32 s14, s13, 1
s_lshl_b32 s14, s14, 2
s_and_b32 s15, {S_R}, 3
s_add_u32 {S_T1}, s14, s15
s_and_b32 s14, s13, 1
s_lshl_b32 s14, s14, 3
s_lshr_b32 s15, {S_R}, 2
s_add_u32 {S_J}, s14, s15""")
        if self.prof:
            a("v_mov_b32 v255, 0")
        a("s_waitcnt lgkmcnt(0)\ns_mov_b32 s22, s64\ns_mov_b32 s23, s65")
        if self.prof:
            a("v_writelane_b32 v255, s98, 61")
        self.srd(WS, P_WS, WS_SIZE)
        self.srd(DBG, P_DBG, 256)
        a(f"""s_cmp_lg_u32 s2, 0
s_cbranch_scc1 L_noep
s_cmp_lg_u32 {S_W}, 0
s_cbranch_scc1 L_noep
s_memrealtime s[66:67]
s_waitcnt lgkmcnt(0)
s_or_b32 s66, s66, 1
v_mov_b32 v3, s66
v_mov_b32 v4, 0
s_mov_b64 exec, 1
buffer_store_dword v3, v4, {DBG}, 0 offen sc1
s_mov_b64 exec, -1
L_noep:""")

    def phase0(self):
        a = self.a
        self.srd(SA, P_C, 1280)
        self.srd(SB, P_WMOD, 640*7680)
        self.srd(SC, P_X, 2048*1280)
        LDS_M = 158720
        LDS_L = 159744
        a(f"""; ---- phase 0 ----
v_and_b32 v2, 7, v1
v_lshrrev_b32 v3, 3, v1
s_mul_hi_u32 s12, s2, {(2**32 + 59)//60}
s_mul_i32 s13, s12, 60
s_sub_u32 s13, s2, s13
s_mul_i32 s14, s12, 160
s_mul_i32 s15, {S_W}, 40
s_add_u32 s14, s14, s15
v_add_u32 v4, s14, v3
v_lshlrev_b32 v5, 1, v4
s_movk_i32 s15, 7680
v_mul_lo_u32 v6, v4, s15
s_lshl_b32 s15, s13, 7
v_lshl_add_u32 v7, v2, 4, s15
v_add_u32 v6, v6, v7""")
        for j in range(5):
            self.vm(f"buffer_load_ushort v{8+j}, v5, {SA}, 0 offen offset:{16*j}", "c")
        for j in range(5):
            self.vm(f"s_mov_b32 s15, {j*8*7680}\nbuffer_load_dwordx4 v[{16+4*j}:{19+4*j}], v6, {SB}, s15 offen", f"w{j}")
        self.vm(f"""s_lshl_b32 s14, s2, 3
v_add_u32 v7, s14, v2
s_movk_i32 s15, 1280
v_mul_lo_u32 v7, v7, s15
s_mul_i32 s15, {S_W}, 20
v_add_u32 v13, s15, v3
v_lshl_add_u32 v7, v13, 4, v7
v_add_u32 v14, 256, v7
v_cmp_gt_u32 vcc, 4, v3
v_mov_b32 v15, {OOB:#x}
s_nop 0
v_cndmask_b32 v14, v15, v14, vcc
buffer_load_dwordx4 v[36:39], v7, {SC}, 0 offen
buffer_load_dwordx4 v[40:43], v7, {SC}, 0 offen offset:128
buffer_load_dwordx4 v[44:47], v14, {SC}, 0 offen""", "xrow")
        a(f"""s_sub_u32 s70, s2, 96
s_and_b32 s71, s70, 3               ; pg
s_lshr_b32 s70, s70, 2              ; sigma
s_mul_i32 s14, s71, 320
s_mul_i32 s15, s70, {16*3840}
s_add_u32 s14, s14, s15
s_cmp_ge_u32 s2, 96
s_cselect_b32 s14, s14, {OOB:#x}
s_lshl_b32 s15, {S_W}, 10""")
        for jj in range(4):
            a(f"""v_add_u32 v56, {256*jj}, v0
v_mul_u32_u24 v57, 1093, v56
v_lshrrev_b32 v57, 16, v57          ; row = c/60
v_mul_u32_u24 v58, 60, v57
v_sub_u32 v58, v56, v58             ; pos
v_mul_u32_u24 v59, 3277, v58
v_lshrrev_b32 v59, 16, v59
v_mul_u32_u24 v13, 20, v59
v_sub_u32 v58, v58, v13
v_mul_u32_u24 v57, 3840, v57
v_mul_u32_u24 v59, 1280, v59
v_lshl_add_u32 v57, v58, 4, v57
v_add_u32 v{60+jj}, v57, v59""")
        a(f"""v_mov_b32 v13, {OOB:#x}
v_cmp_gt_u32 vcc, 192, v0
s_nop 1
v_cndmask_b32 v63, v13, v63, vcc""")
        for jj in range(4):
            self.vm(f"s_add_u32 m0, s15, {4*jj*1024}\ns_nop 0\nbuffer_load_dwordx4 v{60+jj}, s[72:75], s14 offen lds", "wraw")
        if self.o.get("tlb", 0):
            a(f"""s_lshr_b32 s14, s2, 2
s_mul_i32 s14, s14, 40960
s_add_u32 s14, s14, {WS_NF:#x}
s_lshl_b32 s15, s71, 2
s_mul_i32 s15, s15, 153600
s_add_u32 s15, s15, {WS_WQP:#x}
s_cmp_ge_u32 s2, 96
s_cselect_b32 s15, s15, {WS_WQP:#x}
v_mov_b32 v56, s14
v_mov_b32 v57, s15
v_mov_b32 v58, {WS_MODP:#x}
v_mov_b32 v59, {WS_FLAGS:#x}
v_cmp_eq_u32 vcc, 1, v1
s_nop 1
v_cndmask_b32 v56, v56, v57, vcc
v_cmp_eq_u32 vcc, 2, v1
s_nop 1
v_cndmask_b32 v56, v56, v58, vcc
v_cmp_eq_u32 vcc, 3, v1
s_nop 1
v_cndmask_b32 v56, v56, v59, vcc
s_mov_b64 exec, 15""")
            self.vm(f"buffer_load_dword v249, v56, {WS}, 0 offen sc1", "tlb")
            a("s_mov_b64 exec, -1")
        self.stamp("p0_setup", fine=True)
        self.waitvm("c")
        self.stamp("p0_c", fine=True)
        for j in range(5):
            a(f"""v_lshlrev_b32 v{8+j}, 16, v{8+j}
v_mul_f32 v13, 0xbfb8aa3b, v{8+j}
v_exp_f32 v13, v13
v_add_f32 v13, 1.0, v13
v_rcp_f32 v13, v13
v_mul_f32 v13, v{8+j}, v13
v_cvt_pk_bf16_f32 v13, v13, v13
v_lshlrev_b32 v{8+j}, 16, v13""")
        for e in range(8):
            a(f"v_mov_b32 v{48+e}, 0")
        for j in range(5):
            self.waitvm(f"w{j}")
            for d in range(4):
                r = 16 + 4*j + d
                a(f"""v_lshlrev_b32 v13, 16, v{r}
v_and_b32 v15, 0xffff0000, v{r}
v_fmac_f32 v{48+2*d}, v{8+j}, v13
v_fmac_f32 v{49+2*d}, v{8+j}, v15""")
        for d in range(4):
            a(f"v_permlane32_swap_b32 v{48+2*d}, v{49+2*d}")
        for d in range(4):
            a(f"v_add_f32 v{48+2*d}, v{48+2*d}, v{49+2*d}")
        a("""v_permlane16_swap_b32 v48, v50
v_permlane16_swap_b32 v52, v54
v_add_f32 v48, v48, v50
v_add_f32 v52, v52, v54
v_add_f32_dpp v48, v48, v48 row_ror:8 row_mask:0xf bank_mask:0xf
v_add_f32_dpp v52, v52, v52 row_ror:8 row_mask:0xf bank_mask:0xf""")
        a(f"""v_lshrrev_b32 v13, 4, v1
v_and_b32 v15, 1, v13
v_lshlrev_b32 v15, 1, v15
v_lshrrev_b32 v13, 1, v13
v_add_u32 v13, v13, v15
v_bfe_u32 v15, v1, 3, 1
v_lshl_add_u32 v13, v15, 2, v13
v_lshl_add_u32 v13, v2, 3, v13
v_cmp_eq_u32 vcc, 1, v15
s_lshl_b32 s14, {S_W}, 8
s_add_u32 s14, s14, {LDS_M}
v_lshl_add_u32 v13, v13, 2, s14
v_cndmask_b32 v48, v48, v52, vcc
ds_write_b32 v13, v48""")
        self.stamp("p0_mod", fine=True)
        l = self.lab("ep0")
        a(f"""v_mov_b32 v251, 0
s_cmp_lg_u32 {S_W}, 0
s_cbranch_scc1 {l}
buffer_load_dword v250, v251, {DBG}, 0 offen sc1
{l}:""")
        self.waitvm("xrow")
        self.stamp("p0_x", fine=True)
        a("v_mov_b32 v56, 0\nv_mov_b32 v57, 0\nv_mov_b32 v58, 0x3f803f80")
        for r in range(36, 48):
            a(f"v_dot2_f32_bf16 v56, v{r}, v58, v56\nv_dot2_f32_bf16 v57, v{r}, v{r}, v57")
        a(f"""v_permlane32_swap_b32 v56, v57
v_add_f32 v56, v56, v57
v_mov_b32 v57, v56
v_permlane16_swap_b32 v56, v57
v_add_f32 v56, v56, v57
v_add_f32_dpp v56, v56, v56 row_ror:8 row_mask:0xf bank_mask:0xf
v_lshrrev_b32 v13, 5, v1
v_lshl_add_u32 v13, v13, 3, v2
v_lshlrev_b32 v13, 4, v13
s_lshl_b32 s14, {S_W}, 2
s_add_u32 s14, s14, {LDS_L}
v_add_u32 v13, s14, v13
ds_write_b32 v13, v56""")
        self.stamp("p0_lnsum", fine=True)
        self.waitvm("wraw", "lgkmcnt(0)")
        self.stamp("p0_wraw", fine=True)
        a("s_barrier")
        self.stamp("p0_bar", fine=True)
        a(f"""v_lshrrev_b32 v8, 5, v1           ; h
v_bfe_u32 v9, v1, 2, 2              ; r
v_lshl_add_u32 v9, v8, 3, v9        ; 8h + r
v_mul_u32_u24 v9, 960, v9
v_bfe_u32 v10, v1, 4, 1
v_and_b32 v11, 3, v1
v_lshl_add_u32 v10, v10, 2, v11     ; c'
v_and_b32 v11, 1, v10
v_lshl_add_u32 v9, v11, 3, v9
s_mul_i32 s14, {S_W}, 80
v_add_u32 v9, s14, v9
v_lshrrev_b32 v10, 1, v10           ; i""")
        for t in range(4):
            a(f"""v_add_u32 v11, {4*t}, v10
v_min_u32 v11, 14, v11              ; L
v_mul_u32_u24 v56, 52, v11
v_lshrrev_b32 v56, 8, v56           ; 0 K, 1 V, 2 Q
v_mul_u32_u24 v57, 5, v56
v_sub_u32 v11, v11, v57
v_add_u32 v56, 1, v56
v_cmp_eq_u32 vcc, 3, v56
v_mul_u32_u24 v56, 320, v56
v_lshl_add_u32 v11, v11, 4, v56
v_subrev_u32 v56, 960, v11
v_cndmask_b32 v11, v11, v56, vcc
v_add_u32 v11, v9, v11
ds_read_b64_tr_b16 v[{64+4*t}:{65+4*t}], v11
ds_read_b64_tr_b16 v[{66+4*t}:{67+4*t}], v11 offset:{4*960}""")
        l = self.lab("m0")
        a(f"""s_cmp_lg_u32 {S_W}, 0
s_cbranch_scc1 {l}
s_cmp_ge_u32 s2, 240
s_cbranch_scc1 {l}
v_lshlrev_b32 v13, 2, v1
v_add_u32 v15, {LDS_M}, v13
ds_read_b32 v48, v15
ds_read_b32 v49, v15 offset:256
ds_read_b32 v50, v15 offset:512
ds_read_b32 v51, v15 offset:768
s_mul_i32 s14, s12, 3840*4
s_lshl_b32 s15, s13, 8
s_add_u32 s14, s14, s15
s_add_u32 s14, s14, {WS_MODP:#x}
s_waitcnt lgkmcnt(0)
v_add_f32 v48, v48, v49
v_add_f32 v50, v50, v51
v_add_f32 v48, v48, v50
buffer_store_dword v48, v13, {WS}, s14 offen sc1
{l}:""")
        a(f"""v_lshlrev_b32 v13, 4, v2
v_add_u32 v13, {LDS_L}, v13
ds_read_b128 v[48:51], v13
ds_read_b128 v[52:55], v13 offset:128
s_waitcnt lgkmcnt(0)
v_add_f32 v48, v48, v49
v_add_f32 v50, v50, v51
v_add_f32 v52, v52, v53
v_add_f32 v54, v54, v55
v_add_f32 v48, v48, v50
v_add_f32 v52, v52, v54
v_mul_f32 v48, {f2h(1/640)}, v48
v_mul_f32 v52, {f2h(1/640)}, v52
v_fma_f32 v52, -v48, v48, v52
v_max_f32 v52, 0, v52
v_add_f32 v52, {f2h(1e-5)}, v52
v_rsq_f32 v52, v52
s_nop 0
v_mul_f32 v48, v48, v52
v_sub_f32 v48, 0, v48""")
        for r in range(36, 48):
            a(f"""v_lshlrev_b32 v13, 16, v{r}
v_and_b32 v15, 0xffff0000, v{r}
v_fma_f32 v13, v13, v52, v48
v_fma_f32 v15, v15, v52, v48
v_cvt_pk_f16_f32 v{r}, v13, v15""")
        self.vm(f"""s_mul_i32 s15, {S_W}, 20
v_add_u32 v13, s15, v3
v_lshrrev_b32 v15, 1, v13
v_lshlrev_b32 v15, 10, v15
v_and_b32 v13, 1, v13
v_lshl_add_u32 v15, v13, 9, v15
s_and_b32 s14, s2, 3
s_lshl_b32 s14, s14, 3
v_add_u32 v13, s14, v2
v_lshl_add_u32 v15, v13, 4, v15
v_add_u32 v13, 8192, v15
v_cmp_gt_u32 vcc, 4, v3
v_mov_b32 v7, {OOB:#x}
s_lshr_b32 s14, s2, 2
s_mul_i32 s14, s14, 40960
v_cndmask_b32 v13, v7, v13, vcc
s_add_u32 s14, s14, {WS_NF:#x}
buffer_store_dwordx4 v[36:39], v15, {WS}, s14 offen sc1
s_add_u32 s15, s14, 4096
buffer_store_dwordx4 v[40:43], v15, {WS}, s15 offen sc1
buffer_store_dwordx4 v[44:47], v13, {WS}, s14 offen sc1""", "nst")
        self.vm(f"""s_mul_i32 s14, s70, 3840
s_lshl_b32 s15, s71, 2
s_add_u32 s15, s15, {S_W}
s_mul_i32 s15, s15, 153600
s_add_u32 s14, s14, s15
s_add_u32 s14, s14, {WS_WQP:#x}
s_cmp_ge_u32 s2, 96
s_cselect_b32 s14, s14, {OOB:#x}
v_lshlrev_b32 v8, 4, v1
v_and_b32 v9, 31, v1
v_lshrrev_b32 v10, 5, v1
v_mul_u32_u24 v10, 24, v10
v_add_u32 v10, v10, v9
v_lshlrev_b32 v10, 4, v10
v_add_u32 v10, 3072, v10
v_mov_b32 v11, {OOB:#x}
v_cmp_gt_u32 vcc, 24, v9
s_waitcnt lgkmcnt(0)
v_cndmask_b32 v10, v11, v10, vcc
buffer_store_dwordx4 v[64:67], v8, {WS}, s14 offen sc1
buffer_store_dwordx4 v[68:71], v8, {WS}, s14 offen offset:1024 sc1
buffer_store_dwordx4 v[72:75], v8, {WS}, s14 offen offset:2048 sc1
buffer_store_dwordx4 v[76:79], v10, {WS}, s14 offen sc1""", "nst")
        self.stamp("p0_stored", fine=True)
        self.waitvm("nst")
        l = self.lab("ep"); l2 = self.lab("epd")
        a(f"""s_cmp_lg_u32 {S_W}, 0
s_cbranch_scc1 {l2}
s_mov_b32 s64, 0
{l}:
v_readfirstlane_b32 {S_EP}, v250
s_cmp_lg_u32 {S_EP}, 0
s_cbranch_scc1 {l2}
s_add_u32 s64, s64, 1
s_cmp_gt_u32 s64, {self.timeout}
s_cbranch_scc1 {l2}
buffer_load_dword v250, v251, {DBG}, 0 offen sc1
s_waitcnt vmcnt(0)
s_branch {l}
{l2}:
s_barrier""")
        self.flag_store(0, "s2")
        self.stamp("p0_flag", fine=True)
        for j in range(5):
            a(f"""v_add_u32 v12, {64*j}, v1
v_mul_u32_u24 v13, 6554, v12
v_lshrrev_b32 v13, 16, v13
v_mul_u32_u24 v14, 10, v13
v_sub_u32 v14, v12, v14
v_mul_u32_u24 v13, 1280, v13
v_lshl_add_u32 v{240+j}, v14, 4, v13""")
        for jj in range(3):
            a(f"""v_add_u32 v12, {64*jj}, v1
v_mul_u32_u24 v13, 5462, v12
v_lshrrev_b32 v13, 16, v13
v_mul_u32_u24 v14, 12, v13
v_sub_u32 v14, v12, v14
v_mul_u32_u24 v13, 3072, v13
v_lshl_add_u32 v{245+jj}, v14, 4, v13""")
        self.pack_params()
        self.pack_dma()

    def phase_qkv(self):
        a = self.a
        LDS_GS = 153600
        a("""; ---- phase 1: QKV ----
v_lshlrev_b32 v8, 7, v1
v_add_u32 v9, 64*128, v8
v_add_u32 v10, 128*128, v8
v_add_u32 v11, 192*128, v8""")
        a(f"""v_lshlrev_b32 v2, 4, v1
v_lshrrev_b32 v12, 5, v1           ; h
v_lshlrev_b32 v3, 5, v12
v_add_u32 v3, {LDS_GS}, v3          ; g/s base
v_add_u32 v4, {16*3840}, v2
v_add_u32 v5, {32*3840}, v2
v_and_b32 v13, 31, v1
v_min_u32 v13, 23, v13
v_mul_u32_u24 v12, 24, v12
v_add_u32 v12, v12, v13
v_lshlrev_b32 v12, 4, v12
v_add_u32 v6, 3072, v12
v_add_u32 v7, {16*3840}, v6
v_add_u32 v15, {32*3840}, v6
v_lshrrev_b32 v12, 2, v0
v_lshlrev_b32 v12, 7, v12
v_bfe_u32 v13, v0, 1, 1
v_lshl_add_u32 v12, v13, 6, v12
v_and_b32 v13, 1, v0
v_lshl_add_u32 v12, v13, 4, v12
v_add_u32 v14, {LDS_GS}, v12
v_lshlrev_b32 v12, 4, v0
v_mov_b32 v13, {OOB:#x}
v_cmp_gt_u32 vcc, 160, v0
s_nop 1
v_cndmask_b32 v52, v13, v12, vcc
s_lshl_b32 s12, {S_T}, 2
s_add_u32 s12, s12, {S_W}
s_mul_i32 s12, s12, 40960
s_add_u32 s12, s12, {WS_NF:#x}
s_mul_i32 s76, {S_P}, 153600
s_add_u32 s76, s76, {WS_WQP:#x}
s_lshl_b32 s77, {S_W}, 10
s_add_u32 s76, s76, s77
s_cmp_eq_u32 {S_W}, 3
s_cselect_b32 s78, 0, 12288
v_lshrrev_b32 v12, 2, v0
v_lshlrev_b32 v12, 6, v12
v_bfe_u32 v13, v0, 1, 1
v_lshl_add_u32 v12, v13, 5, v12
v_and_b32 v13, 1, v0
v_lshl_add_u32 v12, v13, 4, v12
v_add_u32 v14, {LDS_GS}, v12""")
        if self.o.get("dense0", 0):
            a("v_lshlrev_b32 v8, 4, v1")
            self.poll("v8", drain="praw", wide=True)
        else:
            self.poll_old(["v8", "v9", "v10", "v11"], drain="praw")
        self.stamp("qkv_poll")
        def wdma(g, jj):
            if jj < 3:
                pc = 15*g + 4*jj
                return f"s_add_u32 m0, s77, {pc*1024}\ns_add_u32 s79, s76, {pc*1024}\nbuffer_load_dwordx4 v2, {WS}, s79 offen sc1 lds"
            return (f"s_add_u32 s79, s78, {15*g*1024}\ns_add_u32 m0, s77, s79\ns_add_u32 s79, s76, s79\n"
                    f"buffer_load_dwordx4 v2, {WS}, s79 offen sc1 lds")
        wq = [(g, jj) for g in range(10) for jj in range(4)]
        NB = 64
        PF = self.o.get("q_pf", 8)
        def nload(s):
            pre = "s_add_u32 s12, s12, 4096\n" if (s % 4 == 0 and s > 0) else ""
            return pre + f"buffer_load_dwordx4 v[{NB+4*s}:{NB+4*s+3}], v2, {WS}, s12 offen offset:{(s%4)*1024} sc1"
        for kq in range(4):
            self.vm(f"s_mov_b32 s14, {WS_MODP + kq*15360}\nbuffer_load_dwordx4 v[{16+4*kq}:{19+4*kq}], v52, {WS}, s14 offen sc1\n"
                    f"buffer_load_dwordx4 v[{32+4*kq}:{35+4*kq}], v52, {WS}, s14 offen offset:2560 sc1", "gs")
        wi = 0
        for _ in range(4):
            self.vm(wdma(*wq[wi]), f"wg{wq[wi][0]}"); wi += 1
        self.vm(nload(0), "n0"); self.vm(nload(1), "n1")
        for _ in range(4):
            self.vm(wdma(*wq[wi]), f"wg{wq[wi][0]}"); wi += 1
        for s in range(2, PF):
            self.vm(nload(s), f"n{s}")
        for _ in range(4*self.o.get("wpre", 2)):
            self.vm(wdma(*wq[wi]), f"wg{wq[wi][0]}"); wi += 1
        self.waitvm("gs")
        for e in range(4):
            a(f"""v_add_f32 v{16+e}, v{16+e}, v{20+e}
v_add_f32 v{24+e}, v{24+e}, v{28+e}
v_add_f32 v{32+e}, v{32+e}, v{36+e}
v_add_f32 v{40+e}, v{40+e}, v{44+e}
v_add_f32 v{16+e}, v{16+e}, v{24+e}
v_add_f32 v{32+e}, v{32+e}, v{40+e}""")
        a("""v_cvt_pk_bf16_f32 v20, v16, v17
v_cvt_pk_bf16_f32 v21, v18, v19
v_cvt_pk_bf16_f32 v22, v32, v33
v_cvt_pk_bf16_f32 v23, v34, v35
v_lshlrev_b32 v16, 16, v20
v_and_b32 v17, 0xffff0000, v20
v_lshlrev_b32 v18, 16, v21
v_and_b32 v19, 0xffff0000, v21
v_lshlrev_b32 v32, 16, v22
v_and_b32 v33, 0xffff0000, v22
v_lshlrev_b32 v34, 16, v23
v_and_b32 v35, 0xffff0000, v23
v_add_f32 v32, 1.0, v32
v_add_f32 v33, 1.0, v33
v_add_f32 v34, 1.0, v34
v_add_f32 v35, 1.0, v35
v_cvt_pk_bf16_f32 v22, v32, v33
v_cvt_pk_bf16_f32 v23, v34, v35
v_lshlrev_b32 v32, 16, v22
v_and_b32 v33, 0xffff0000, v22
v_lshlrev_b32 v34, 16, v23
v_and_b32 v35, 0xffff0000, v23
v_cvt_pk_f16_f32 v36, v32, v16
v_cvt_pk_f16_f32 v37, v33, v17
v_cvt_pk_f16_f32 v38, v34, v18
v_cvt_pk_f16_f32 v39, v35, v19
v_cmp_gt_u32 vcc, 160, v0
s_and_saveexec_b64 s[66:67], vcc
ds_write_b128 v14, v[36:39]
s_mov_b64 exec, s[66:67]""")
        self.waitvm("wg0", "lgkmcnt(0)")
        a("s_barrier")
        self.stamp("qkv_gs")
        AB = 64
        GSB = 16
        def aread(s):
            st = AB + 16*(s % 3)
            rng = s // 16
            b0 = ("v2", "v4", "v5")[rng]; b3 = ("v6", "v7", "v15")[rng]
            o = (s % 16)*3840
            return [f"ds_read_b128 a[{st+4*t}:{st+4*t+3}], {b0} offset:{o + 1024*t}" for t in range(3)] + \
                   [f"ds_read_b128 a[{st+12}:{st+15}], {b3} offset:{o}"]
        def gsread(s):
            st = GSB + 8*(s % 2)
            return [f"ds_read_b128 v[{st+4*j}:{st+4*j+3}], v3 offset:{s*64+16*j}" for j in range(2)]
        def modulate(s):
            st = GSB + 8*(s % 2)
            out = []
            for d in range(4):
                r = NB + 4*s + d
                t0, t1 = 48 + 2*(d % 2), 49 + 2*(d % 2)
                out.append(f"v_fma_mix_f32 v{t0}, v{r}, v{st+2*d}, v{st+2*d} op_sel:[0,0,1] op_sel_hi:[1,1,1]")
                out.append(f"v_fma_mix_f32 v{t1}, v{r}, v{st+2*d+1}, v{st+2*d+1} op_sel:[1,0,1] op_sel_hi:[1,1,1]")
                out.append(f"v_cvt_pk_bf16_f32 v{r}, v{t0}, v{t1}")
            return out
        for x in gsread(0) + gsread(1) + aread(0): a(x)
        self.waitvm("n0", "lgkmcnt(6)")
        for x in modulate(0): a(x)
        for x in aread(1): a(x)
        nxt_n = PF
        touches = []
        for s in range(40):
            if s in (1, 10, 20, 30): self.stamp(f"qkv_s{s}", fine=True)
            if s == self.o.get("pack_at", 3):
                a("s_waitcnt lgkmcnt(0)")
                self.pack_store()
            if (s + 2) % 4 == 0 and s + 2 < 40:
                self.waitvm(f"wg{(s+2)//4}")
                a("s_barrier")
                if (s+2)//4 == 6:
                    self.flag_store(5, "s2")
            ex = "lgkmcnt(4)" if s + 1 < 40 else "lgkmcnt(0)"
            if s + 1 < 40: self.waitvm(f"n{s+1}", ex)
            else: a(f"s_waitcnt {ex}")
            lds = gsread(s+2) + aread(s+2) if s + 2 < 40 else []
            va = modulate(s+1) if s + 1 < 40 else []
            st = AB + 16*(s % 3)
            li = vi = 0
            for t in range(4):
                c = f"a[{16*t}:{16*t+15}]" if s else "0"
                a(f"v_mfma_f32_32x32x16_bf16 a[{16*t}:{16*t+15}], a[{st+4*t}:{st+4*t+3}], v[{NB+4*s}:{NB+4*s+3}], {c}")
                for _ in range(2):
                    if li < len(lds): a(lds[li]); li += 1
                for _ in range(3):
                    if vi < len(va): a(va[vi]); vi += 1
                if t == 0 and wi < 40:
                    self.vm(wdma(*wq[wi]), f"wg{wq[wi][0]}"); wi += 1
                if t == 2:
                    if nxt_n < 40:
                        self.vm(nload(nxt_n), f"n{nxt_n}"); nxt_n += 1
                    elif touches:
                        self.vm(touches.pop(0), "touch")
        self.stamp("qkv_main")
        self.f5_load()
        def quad_pack(src, dst, scale=None):
            for e in range(4):
                a(f"v_accvgpr_read_b32 v{48+e}, a{src+e}")
            if scale:
                for e in range(4):
                    a(f"v_mul_f32 v{48+e}, {scale}, v{48+e}")
            a(f"v_cvt_pk_bf16_f32 v{dst}, v48, v49\nv_cvt_pk_bf16_f32 v{dst+1}, v50, v51")
        quad_pack(0, 16); quad_pack(4, 18); quad_pack(12, 20); quad_pack(16, 22); quad_pack(8, 24)
        self.vm(f"""s_lshl_b32 s12, {S_T}, 2
s_add_u32 s12, s12, {S_W}
s_lshl_b32 s13, {S_P}, 6
s_add_u32 s12, s12, s13
s_mul_i32 s13, s12, 2560
s_add_u32 s13, s13, {WS_KF:#x}
v_lshlrev_b32 v9, 3, v1
buffer_store_dwordx4 v[16:19], v2, {WS}, s13 offen sc1
buffer_store_dwordx4 v[20:23], v2, {WS}, s13 offen offset:1024 sc1
buffer_store_dwordx2 v[24:25], v9, {WS}, s13 offen offset:2048 sc1""", "kvst")
        quad_pack(20, 28); quad_pack(24, 30); quad_pack(28, 32); quad_pack(32, 36); quad_pack(36, 38)
        self.vm(f"""v_bfe_u32 v10, v1, 2, 3          ; a
v_and_b32 v11, 3, v1               ; r
v_lshrrev_b32 v12, 5, v1           ; hh
v_lshlrev_b32 v13, 7, v10
v_lshl_add_u32 v13, v12, 6, v13
v_lshl_add_u32 v13, v11, 4, v13
v_lshrrev_b32 v14, 1, v10
v_lshlrev_b32 v14, 8, v14          ; (a>>1)*256
v_and_b32 v10, 1, v10
v_xor_b32 v10, 1, v10
v_lshl_add_u32 v14, v10, 7, v14
v_lshl_add_u32 v14, v12, 5, v14
v_lshl_add_u32 v14, v11, 3, v14
s_mul_i32 s13, s12, 3072
s_add_u32 s13, s13, {WS_VF:#x}
buffer_store_dwordx4 v[28:31], v13, {WS}, s13 offen sc1
buffer_store_dwordx4 v[36:39], v13, {WS}, s13 offen offset:1024 sc1
buffer_store_dwordx2 v[32:33], v14, {WS}, s13 offen offset:2048 sc1""", "kvst")
        QS = f2h(20**-0.5 * 1.4426950408889634)
        quad_pack(40, 224, QS); quad_pack(44, 226, QS); quad_pack(48, 228, QS); quad_pack(52, 232, QS); quad_pack(56, 234, QS)
        self.stamp("qkv_epi", fine=True)
        self.waitvm("kvst")
        self.f5_check()
        a("s_barrier")
        a(f"s_lshl_b32 s12, {S_P}, 4\ns_add_u32 s12, s12, {S_T}")
        self.flag_store(1, "s12")

    def pack_params(self):
        a = self.a
        lw2 = self.lab("pt2"); lwo = self.lab("pto"); le = self.lab("pte")
        a(f"""s_cmp_ge_u32 s2, 128
s_cbranch_scc1 {lw2}
s_and_b32 s83, s2, 15
s_lshr_b32 s84, s2, 4
s_mul_i32 s80, s84, {80*3072}
s_mul_i32 s83, s83, 192
s_add_u32 s80, s80, s83
s_movk_i32 s81, 3072
s_movk_i32 s82, 80
s_mov_b32 s84, s{P_W1}
s_mov_b32 s85, s{P_W1+1}
s_mov_b32 s86, {640*3072}
s_branch {le}
{lw2}:
s_cmp_ge_u32 s2, 224
s_cbranch_scc1 {lwo}
s_sub_u32 s83, s2, 128
s_lshr_b32 s84, s83, 3
s_and_b32 s83, s83, 7
s_mul_i32 s80, s84, {128*1280}
s_mul_i32 s83, s83, 160
s_add_u32 s80, s80, s83
s_movk_i32 s81, 1280
s_movk_i32 s82, 128
s_mov_b32 s84, s{P_W2}
s_mov_b32 s85, s{P_W2+1}
s_mov_b32 s86, {1536*1280}
s_branch {le}
{lwo}:
s_sub_u32 s83, s2, 224
s_lshr_b32 s84, s83, 3
s_and_b32 s83, s83, 7
s_mul_i32 s80, s84, {160*1280}
s_mul_i32 s83, s83, 160
s_add_u32 s80, s80, s83
s_movk_i32 s81, 1280
s_movk_i32 s82, 160
s_mov_b32 s84, s{P_WO}
s_mov_b32 s85, s{P_WO+1}
s_mov_b32 s86, {640*1280}
{le}:
s_mov_b32 s87, 0x00020000""")

    def pack_dma(self):
        a = self.a
        lw2 = self.lab("pd2"); lwo = self.lab("pdo"); le = self.lab("pde")
        a(f"s_cmp_ge_u32 s2, 128\ns_cbranch_scc1 {lw2}")
        for grp in (None, 4):
            if grp is None:
                a(f"s_mul_i32 s14, {S_W}, {16*3072}\ns_add_u32 s14, s14, s80\ns_mul_i32 s15, {S_W}, 3072")
            else:
                a(f"s_add_u32 s14, s80, {4*16*3072}\ns_movk_i32 s15, {4*3072}")
            for jj in range(3):
                a(f"s_add_u32 m0, s15, {PK + jj*1024}\ns_nop 0\nbuffer_load_dwordx4 v{245+jj}, s[84:87], s14 offen lds")
        a(f"s_branch {le}\n{lw2}:\ns_mul_i32 s14, {S_W}, {32*1280}\ns_add_u32 s14, s14, s80\ns_mul_i32 s15, {S_W}, 5120")
        for j in range(5):
            a(f"s_add_u32 m0, s15, {PK + j*1024}\ns_nop 0\nbuffer_load_dwordx4 v{240+j}, s[84:87], s14 offen lds")
        a(f"s_cmp_ge_u32 s2, 224\ns_cbranch_scc0 {le}\ns_add_u32 s14, s80, {4*32*1280}\ns_movk_i32 s15, {4*5120}")
        for j in range(5):
            a(f"s_add_u32 m0, s15, {PK + j*1024}\ns_nop 0\nbuffer_load_dwordx4 v{240+j}, s[84:87], s14 offen lds")
        a(f"{le}:")
        self.q += ["praw"]*5

    def pack_store(self):
        a = self.a
        lw2 = self.lab("ps2"); lwo = self.lab("pso"); le = self.lab("pse")
        a(f"""s_cmp_ge_u32 s2, 128
s_cbranch_scc1 {lw2}
s_min_u32 s14, {S_W}, 2
v_lshrrev_b32 v188, 5, v1            ; h
v_bfe_u32 v189, v1, 2, 2             ; r
v_bfe_u32 v190, v1, 4, 1
v_and_b32 v191, 3, v1
v_lshl_add_u32 v190, v190, 2, v191    ; c'
v_lshlrev_b32 v190, 3, v190
s_lshl_b32 s15, s14, 6
s_add_u32 s15, s15, {PK}
v_add_u32 v190, s15, v190
v_lshl_add_u32 v191, v188, 2, v189
v_mul_u32_u24 v191, 192, v191
v_add_u32 v192, v191, v190
v_lshl_add_u32 v191, v188, 3, v189
v_mul_u32_u24 v191, 192, v191
v_add_u32 v193, v191, v190""")
        for i in range(5):
            for rd in range(2):
                if i < 4:
                    a(f"ds_read_b64_tr_b16 v[{196+4*i+2*rd}:{197+4*i+2*rd}], v192 offset:{(32*(i >> 1) + 8*(i & 1) + 16*rd)*192}")
                else:
                    a(f"ds_read_b64_tr_b16 v[{196+4*i+2*rd}:{197+4*i+2*rd}], v193 offset:{(64 + 4*rd)*192}")
        a(f"""s_and_b32 s15, s2, 15
s_mul_i32 s15, s15, 122880
s_lshr_b32 s64, s2, 4
s_mul_i32 s64, s64, {5*3072}
s_add_u32 s15, s15, s64
s_lshl_b32 s14, s14, 10
s_add_u32 s15, s15, s14
s_add_u32 s15, s15, {WS_W1P:#x}
s_waitcnt lgkmcnt(0)""")
        for i in range(5):
            a(f"buffer_store_dwordx4 v[{196+4*i}:{199+4*i}], v2, {WS}, s15 offen sc1")
            if i < 4: a("s_add_u32 s15, s15, 3072")
        a(f"""s_branch {le}
{lw2}:
v_lshrrev_b32 v188, 4, v1            ; q
v_bfe_u32 v189, v1, 2, 2             ; r
v_and_b32 v190, 3, v1
v_lshlrev_b32 v190, 3, v190          ; c*8
v_add_u32 v190, {PK}, v190
v_and_b32 v191, 1, v188
s_cmp_ge_u32 s2, 224
s_cbranch_scc1 {lwo}
v_lshrrev_b32 v192, 1, v188
v_lshlrev_b32 v192, 4, v192
v_lshl_add_u32 v192, v191, 2, v192
v_add_u32 v192, v192, v189
v_mul_u32_u24 v192, 160, v192
v_add_u32 v192, v192, v190
s_mul_i32 s14, {S_W}, 5120
v_add_u32 v192, s14, v192""")
        for j in range(5):
            for rd in range(2):
                a(f"ds_read_b64_tr_b16 v[{196+4*j+2*rd}:{197+4*j+2*rd}], v192 offset:{rd*1280 + j*32}")
        a(f"""s_sub_u32 s15, s2, 128
s_and_b32 s14, s15, 7
s_mul_i32 s14, s14, 245760
s_lshr_b32 s15, s15, 3
s_lshl_b32 s15, s15, 2
s_add_u32 s15, s15, {S_W}          ; phi
s_cmp_ge_u32 s15, 24
s_cselect_b32 s64, 24, 0
s_sub_u32 s15, s15, s64
s_mul_i32 s65, s15, 86
s_lshr_b32 s65, s65, 8             ; /3
s_mul_i32 s79, s65, 3
s_sub_u32 s15, s15, s79            ; t
s_lshl_b32 s79, s65, 1
s_add_u32 s79, s79, s15
s_add_u32 s65, s65, 16
s_cmp_eq_u32 s15, 2
s_cselect_b32 s15, s65, s79
s_add_u32 s15, s15, s64            ; position
s_mul_i32 s15, s15, 5120
s_add_u32 s15, s15, s14
s_add_u32 s15, s15, {WS_W2P:#x}
s_add_u32 s14, s15, 4096
s_waitcnt lgkmcnt(0)""")
        for j in range(4):
            a(f"buffer_store_dwordx4 v[{196+4*j}:{199+4*j}], v2, {WS}, s15 offen offset:{1024*j} sc1")
        a(f"buffer_store_dwordx4 v[212:215], v2, {WS}, s14 offen sc1")
        a(f"""s_branch {le}
{lwo}:
v_lshrrev_b32 v192, 1, v188
v_mul_u32_u24 v192, 24, v192
v_lshl_add_u32 v192, v191, 2, v192
v_add_u32 v192, v192, v189
v_mul_u32_u24 v192, 160, v192
v_add_u32 v192, v192, v190
s_mul_i32 s14, {S_W}, 6400
v_add_u32 v192, s14, v192            ; F0 base
v_mul_u32_u24 v193, 40, v188
v_add_u32 v193, v193, v189
v_add_u32 v193, 16, v193
v_lshl_add_u32 v194, v191, 2, v193
v_mul_u32_u24 v194, 160, v194
v_add_u32 v194, v194, v190
v_xor_b32 v191, 1, v191
v_lshl_add_u32 v195, v191, 2, v193
v_mul_u32_u24 v195, 160, v195
v_add_u32 v195, v195, v190
s_lshl_b32 s14, {S_W}, 5
v_add_u32 v188, s14, v194
v_add_u32 v189, s14, v195""")
        for j in range(5):
            for rd in range(2):
                a(f"ds_read_b64_tr_b16 v[{196+4*j+2*rd}:{197+4*j+2*rd}], v192 offset:{rd*1280 + j*32}")
        a("""ds_read_b64_tr_b16 v[216:217], v188
ds_read_b64_tr_b16 v[218:219], v189
ds_read_b64_tr_b16 v[220:221], v194 offset:128
ds_read_b64_tr_b16 v[222:223], v195 offset:128""")
        a(f"""s_sub_u32 s15, s2, 224
s_and_b32 s14, s15, 7
s_mul_i32 s14, s14, 102400
s_lshr_b32 s15, s15, 3             ; P4
s_lshr_b32 s64, s15, 1
s_mul_i32 s64, s64, 51200
s_add_u32 s14, s14, s64
s_add_u32 s14, s14, {WS_WOP:#x}
s_and_b32 s15, s15, 1
s_lshl_b32 s64, s15, 2
s_add_u32 s64, s64, {S_W}
s_mul_i32 s64, s64, 5120
s_add_u32 s64, s64, s14            ; F0 slab
s_add_u32 s15, s15, 8
s_mul_i32 s15, s15, 5120
s_add_u32 s15, s15, s14
s_add_u32 s65, s64, 4096
s_waitcnt lgkmcnt(0)""")
        for j in range(4):
            a(f"buffer_store_dwordx4 v[{196+4*j}:{199+4*j}], v2, {WS}, s64 offen offset:{1024*j} sc1")
        a(f"""buffer_store_dwordx4 v[212:215], v2, {WS}, s65 offen sc1
s_add_u32 s14, s15, 4096
buffer_store_dwordx4 v[220:223], v2, {WS}, s14 offen sc1
s_lshl_b32 s14, {S_W}, 10
s_add_u32 s15, s15, s14
buffer_store_dwordx4 v[216:219], v2, {WS}, s15 offen sc1
{le}:""")
        self.q += ["pk"]*5

    def f5_load(self):
        a = self.a
        l5 = self.lab("f5")
        a(f"""v_lshlrev_b32 v56, 7, v1
v_add_u32 v56, {WS_FLAGS + 5*0x8000:#x}, v56
v_add_u32 v57, 64*128, v56
v_add_u32 v58, 128*128, v56
v_add_u32 v59, 192*128, v56
s_cmp_lg_u32 {S_W}, 0
s_cbranch_scc1 {l5}
buffer_load_dword v60, v56, {WS}, 0 offen sc1
buffer_load_dword v61, v57, {WS}, 0 offen sc1
buffer_load_dword v62, v58, {WS}, 0 offen sc1
buffer_load_dword v63, v59, {WS}, 0 offen sc1
{l5}:""")
    def f5_check(self):
        a = self.a
        l5 = self.lab("c5"); l5l = self.lab("c5l")
        a(f"""s_cmp_lg_u32 {S_W}, 0
s_cbranch_scc1 {l5}
s_mov_b32 s64, 0
{l5l}:
v_xor_b32 v60, {S_EP}, v60
v_xor_b32 v61, {S_EP}, v61
v_xor_b32 v62, {S_EP}, v62
v_xor_b32 v63, {S_EP}, v63
v_or3_b32 v60, v60, v61, v62
v_or_b32 v60, v60, v63
v_cmp_ne_u32 vcc, 0, v60
s_nop 3
s_cmp_eq_u64 vcc, 0
s_cbranch_scc1 {l5}
s_add_u32 s64, s64, 1
s_cmp_gt_u32 s64, {self.timeout}
s_cbranch_scc1 {l5}
buffer_load_dword v60, v56, {WS}, 0 offen sc1
buffer_load_dword v61, v57, {WS}, 0 offen sc1
buffer_load_dword v62, v58, {WS}, 0 offen sc1
buffer_load_dword v63, v59, {WS}, 0 offen sc1
s_waitcnt vmcnt(0)
s_branch {l5l}
{l5}:""")

    def lin_dma(self, src_sgpr, lds0, pieces):
        return [f"s_mov_b32 m0, {lds0 + l}\ns_add_u32 s79, {src_sgpr}, {o}\nbuffer_load_dwordx4 v2, {WS}, s79 offen sc1 lds" for o, l in pieces]
    def wave_dma(self, src_sgpr, ldsw_sgpr, lds0, n, stride, first=0):
        return [f"s_add_u32 m0, {ldsw_sgpr}, {lds0 + (first + 4*i)*1024}\ns_add_u32 s79, {src_sgpr}, {(first + 4*i)*1024}\n"
                f"buffer_load_dwordx4 v2, {WS}, s79 offen sc1 lds" for i in range(n)]

    def tables_issue(self):
        a = self.a
        self.srd(SA, P_B2, 1280)
        self.srd(SC, P_B1, 3072)
        a(f"""v_lshlrev_b32 v8, 4, v0
v_mov_b32 v9, {OOB:#x}
v_cmp_gt_u32 vcc, 160, v0
s_nop 1
v_cndmask_b32 v8, v9, v8, vcc""")
        for vec in range(4):
            for kq in range(4):
                r = 16 + 16*vec + 4*kq
                self.vm(f"s_mov_b32 s14, {WS_MODP + kq*15360 + (1280 + 640*vec)*4}\nbuffer_load_dwordx4 v[{r}:{r+3}], v8, {WS}, s14 offen sc1", "tab")
        self.vm(f"""v_lshlrev_b32 v8, 3, v0
v_cmp_gt_u32 vcc, 20, v0
s_mul_i32 s14, {S_V}, 160
v_cndmask_b32 v10, v9, v8, vcc
buffer_load_dwordx2 v[80:81], v10, {SA}, s14 offen
v_cmp_gt_u32 vcc, 24, v0
s_mul_i32 s14, {S_J}, 192
v_cndmask_b32 v10, v9, v8, vcc
buffer_load_dwordx2 v[82:83], v10, {SC}, s14 offen""", "tab")

    def tables_finish(self):
        a = self.a
        self.waitvm("tab")
        for vec in range(4):
            b = 16 + 16*vec
            for e in range(4):
                a(f"""v_add_f32 v{b+e}, v{b+e}, v{b+4+e}
v_add_f32 v{b+8+e}, v{b+8+e}, v{b+12+e}
v_add_f32 v{b+e}, v{b+e}, v{b+8+e}""")
            a(f"v_cvt_pk_bf16_f32 v{b+4}, v{b}, v{b+1}\nv_cvt_pk_bf16_f32 v{b+5}, v{b+2}, v{b+3}")
            if vec != 1:
                a(f"""v_lshlrev_b32 v{b}, 16, v{b+4}
v_and_b32 v{b+1}, 0xffff0000, v{b+4}
v_lshlrev_b32 v{b+2}, 16, v{b+5}
v_and_b32 v{b+3}, 0xffff0000, v{b+5}""")
        a("""v_add_f32 v48, 1.0, v48
v_add_f32 v49, 1.0, v49
v_add_f32 v50, 1.0, v50
v_add_f32 v51, 1.0, v51
v_cvt_pk_bf16_f32 v52, v48, v49
v_cvt_pk_bf16_f32 v53, v50, v51
v_lshlrev_b32 v48, 16, v52
v_and_b32 v49, 0xffff0000, v52
v_lshlrev_b32 v50, 16, v53
v_and_b32 v51, 0xffff0000, v53""")
        a(f"""v_cmp_gt_u32 vcc, 160, v0
s_and_saveexec_b64 s[66:67], vcc
v_lshlrev_b32 v8, 3, v0
v_add_u32 v9, {PT_G2B}, v8
ds_write_b64 v9, v[52:53]
ds_write_b64 v9, v[36:37] offset:{PT_S2B - PT_G2B}
s_mul_i32 s14, {S_V}, 20
v_subrev_u32 v10, s14, v0
v_cmp_gt_u32 vcc, 20, v10
s_and_b64 exec, exec, vcc
v_lshlrev_b32 v10, 4, v10
v_add_u32 v10, {PT_GA}, v10
ds_write_b128 v10, v[16:19]
ds_write_b128 v10, v[48:51] offset:{PT_G2 - PT_GA}
ds_write_b128 v10, v[64:67] offset:{PT_GB - PT_GA}
s_mov_b64 exec, s[66:67]
v_lshlrev_b32 v84, 16, v80
v_and_b32 v85, 0xffff0000, v80
v_lshlrev_b32 v86, 16, v81
v_and_b32 v87, 0xffff0000, v81
v_lshlrev_b32 v88, 16, v82
v_and_b32 v89, 0xffff0000, v82
v_lshlrev_b32 v90, 16, v83
v_and_b32 v91, 0xffff0000, v83
v_lshlrev_b32 v8, 4, v0
v_cmp_gt_u32 vcc, 20, v0
s_and_saveexec_b64 s[66:67], vcc
v_add_u32 v9, {PT_B2}, v8
ds_write_b128 v9, v[84:87]
s_mov_b64 exec, s[66:67]
v_cmp_gt_u32 vcc, 24, v0
s_and_saveexec_b64 s[66:67], vcc
v_add_u32 v9, {PT_B1}, v8
ds_write_b128 v9, v[88:91]
s_mov_b64 exec, s[66:67]""")

    def phase_att(self):
        a = self.a
        a(f"""; ---- phase 2: attention ----
v_and_b32 v8, 1, v1
v_add_u32 v8, 1, v8
v_sub_u32 v8, {S_T}, v8
v_max_i32 v8, 0, v8
s_lshl_b32 s12, {S_P}, 4
v_add_u32 v8, s12, v8
v_lshlrev_b32 v8, 7, v8
v_add_u32 v14, {WS_FLAGS + 0x8000:#x}, v8""")
        a("v_lshlrev_b32 v2, 4, v1")
        self.tables_issue()
        self.stamp("att_wodma", fine=True)
        a("""v_and_b32 v8, 31, v1
v_lshrrev_b32 v9, 5, v1
v_lshlrev_b32 v10, 2, v9
v_sub_u32 v8, v8, v10""")
        for i in range(16):
            kap = 8*(i >> 2) + (i & 3)
            a(f"v_cmp_le_i32 s[{68+2*i}:{69+2*i}], {kap}, v8")
        a("v_mov_b32 v10, 0xffff\nv_mov_b32 v11, 0xffff0000")
        for j in range(8):
            a(f"""v_cndmask_b32 v12, 0, v10, s[{68+4*j}:{69+4*j}]
v_cndmask_b32 v13, 0, v11, s[{70+4*j}:{71+4*j}]
v_or_b32 v{112+j}, v12, v13""")
        a("""v_cmp_eq_u32 vcc, 0, v9
v_mov_b32 v12, 0
s_nop 0
v_cndmask_b32 v236, v12, v228, vcc
v_cndmask_b32 v237, v12, v229, vcc
v_cndmask_b32 v238, v228, v12, vcc
v_cndmask_b32 v239, v229, v12, vcc""")
        a(f"""v_lshrrev_b32 v8, 5, v1            ; hw
v_bfe_u32 v9, v1, 2, 2             ; r
v_bfe_u32 v10, v1, 4, 1
v_and_b32 v11, 3, v1
v_lshl_add_u32 v10, v10, 2, v11    ; cc
v_lshlrev_b32 v12, 7, v8           ; hw*128
v_lshl_add_u32 v12, v9, 4, v12     ; + r*16
v_xor_b32 v13, 1, v8
v_lshlrev_b32 v13, 7, v13
v_lshl_add_u32 v13, v9, 3, v13
v_add_u32 v13, 2048, v13
v_xor_b32 v15, 1, v8
v_lshlrev_b32 v15, 7, v15
v_add_u32 v15, {2048+64}, v15
v_and_b32 v95, 1, v10
v_lshl_add_u32 v6, v95, 6, v12
v_lshrrev_b32 v95, 1, v10
v_lshl_add_u32 v6, v95, 3, v6
v_cmp_eq_u32 vcc, 4, v10
s_nop 1
v_cndmask_b32 v6, v6, v13, vcc
v_cmp_lt_u32 vcc, 4, v10
s_nop 1
v_cndmask_b32 v6, v6, v15, vcc
v_subrev_u32 v95, 2, v10
v_and_b32 v7, 1, v95
v_lshl_add_u32 v7, v7, 6, v12
v_lshrrev_b32 v95, 1, v95
v_and_b32 v95, 1, v95
v_lshl_add_u32 v7, v95, 3, v7
v_add_u32 v7, 1024, v7
v_add_u32 v13, 32, v13
v_cmp_eq_u32 vcc, 1, v10
s_nop 1
v_cndmask_b32 v7, v7, v13, vcc
v_cmp_eq_u32 vcc, 0, v10
s_nop 1
v_cndmask_b32 v7, v7, v15, vcc
v_cmp_lt_u32 vcc, 5, v10
s_nop 1
v_cndmask_b32 v7, v7, v15, vcc
s_mul_i32 s15, {S_W}, 3072
s_add_u32 s15, s15, {VB_}
v_add_u32 v4, s15, v6
v_add_u32 v5, s15, v7
s_mul_i32 s15, {S_W}, 2560
s_add_u32 s15, s15, {KB_}
v_lshl_add_u32 v6, v1, 4, s15
s_add_u32 s15, s15, 2048
v_lshl_add_u32 v7, v1, 3, s15
v_lshrrev_b32 v8, 3, v1
s_mul_i32 s15, {S_W}, 3
v_add_u32 v8, s15, v8
v_mul_u32_u24 v8, 3072, v8
v_bfe_u32 v9, v1, 1, 2
v_lshl_add_u32 v8, v9, 8, v8
v_and_b32 v9, 1, v1
v_lshl_add_u32 v8, v9, 7, v8
v_add_u32 v8, {VB_ + 2048 + 64}, v8
v_mov_b32 v10, 0x3f80
v_mov_b32 v11, 0
v_cmp_gt_u32 vcc, 24, v1
s_and_saveexec_b64 s[66:67], vcc
ds_write_b64 v8, v[10:11]
s_mov_b64 exec, s[66:67]
v_lshlrev_b32 v2, 4, v1""")
        self.stamp("att_setup", fine=True)
        self.poll("v14")
        self.stamp("att_poll")
        a(f"""s_lshl_b32 s12, {S_T}, 2
s_add_u32 s12, s12, {S_W}
s_sub_i32 s13, 8, s12
s_max_i32 s13, s13, 0""")
        for kind in ("k", "v"):
            for i in range(3):
                sz, base, lds = (2560, WS_KF, KB_) if kind == "k" else (3072, WS_VF, VB_)
                m_lo, m_hi = (0xffffffff, 0) if kind == "k" else (0x0f0f0f0f, 0x0f0f0f0f)
                self.vm(f"""s_mul_i32 s14, {S_W}, 3
s_add_u32 s14, s14, {i}
s_lshl_b32 s15, {S_T}, 2
s_add_u32 s15, s15, s14
s_sub_i32 s15, s15, 8
s_max_i32 s15, s15, 0
s_lshl_b32 s64, {S_P}, 6
s_add_u32 s15, s15, s64
s_mul_i32 s15, s15, {sz}
s_add_u32 s15, s15, {base:#x}
s_mul_i32 s14, s14, {sz}
s_add_u32 m0, s14, {lds}
s_nop 0
buffer_load_dwordx4 v2, {WS}, s15 offen sc1 lds
s_add_u32 m0, s14, {lds + 1024}
s_add_u32 s15, s15, 1024
buffer_load_dwordx4 v2, {WS}, s15 offen sc1 lds
s_add_u32 m0, s14, {lds + 2048}
s_add_u32 s15, s15, 1024
s_mov_b32 exec_lo, {m_lo:#x}
s_mov_b32 exec_hi, {m_hi:#x}
buffer_load_dwordx4 v2, {WS}, s15 offen sc1 lds
s_mov_b64 exec, -1""", kind + "dma")
        a(f"""s_lshl_b32 s42, {S_W}, 10
s_mul_i32 s43, {S_V}, 102400
s_add_u32 s43, s43, {WS_WOP:#x}
s_add_u32 s43, s43, s42
s_add_u32 s65, s42, {20*4096}""")
        WO1 = f"s_mov_b32 m0, s42\ns_add_u32 s42, s42, 4096\nbuffer_load_dwordx4 v2, {WS}, s43 offen sc1 lds\ns_add_u32 s43, s43, 4096"
        self.wo1_piece = WO1
        self.tables_finish()
        self.waitvm("vdma", "lgkmcnt(0)")
        a("s_barrier")
        self.stamp("att_kdma")
        wo1 = []
        NEG = "0xff800000"
        KR = [0, 8, 16]
        a(f"v_mov_b32 v8, 0\nv_mov_b32 v9, {NEG}")
        for i in range(16):
            a(f"v_cndmask_b32 v{132+i}, v9, v8, s[{68+2*i}:{69+2*i}]\nv_cndmask_b32 v{148+i}, v8, v9, s[{68+2*i}:{69+2*i}]")
        for hd in range(2):
            Qx = "v[224:227]" if hd == 0 else "v[232:235]"
            Q5 = "v[236:237]" if hd == 0 else "v[238:239]"
            VA = "v4" if hd == 0 else "v5"
            def kread(b, st):
                return [f"ds_read_b128 a[{st}:{st+3}], v6 offset:{b*2560 + 1024*hd}", f"ds_read_b64 a[{st+4}:{st+5}], v7 offset:{b*2560}"]
            def qk(st, dst, c="0"):
                return [f"v_mfma_f32_32x32x16_bf16 v[{dst}:{dst+15}], a[{st}:{st+3}], {Qx}, {c}",
                        f"v_mfma_f32_32x32x8bf16_1k v[{dst}:{dst+15}], a[{st+4}:{st+5}], {Q5}, v[{dst}:{dst+15}]"]
            def vread(b, st):
                return [f"ds_read_b64_tr_b16 a[{st+4*mm+2*rd}:{st+4*mm+2*rd+1}], {VA} offset:{b*3072 + mm*512 + rd*256}" for mm in range(2) for rd in range(2)]
            ks = lambda b: KR[b % 3]
            lslow = self.lab("slow"); lnorm = self.lab("norm")
            cfor = lambda b: "v[132:147]" if b == 8 else ("v[148:163]" if b == 0 else "0")
            for x in kread(8, ks(8)) + kread(7, ks(7)): a(x)
            a("s_waitcnt lgkmcnt(2)")
            for x in qk(ks(8), 16, cfor(8)): a(x)
            if hd == 0 and self.o.get("w1touch"):
                self.touch_setup(13, 60)
                for i in range(2):
                    self.touch_base("s15", 120, i, 60)
                    self.vm(f"s_add_u32 s15, s15, {WS_W1P:#x}\nbuffer_load_dword v248, v13, {WS}, s15 offen sc1", "touch")
            lend = self.lab("fe"); lfl = [self.lab("ff0"), self.lab("ff1")]
            def pv(b, first=False):
                c0 = "0" if first else "v[96:111]"
                return [f"v_mfma_f32_32x32x16_bf16 v[96:111], a[{96+8*(b%2)}:{99+8*(b%2)}], v[{80+8*(b%2)}:{83+8*(b%2)}], {c0}",
                        f"v_mfma_f32_32x32x16_bf16 v[96:111], a[{100+8*(b%2)}:{103+8*(b%2)}], v[{84+8*(b%2)}:{87+8*(b%2)}], v[96:111]"]
            for b in range(8, -1, -1):
                cur = 16 if (8 - b) % 2 == 0 else 32
                nxt = 48 - cur
                pst = 80 + 8*(b % 2)
                vst = 96 + 8*(b % 2)
                if b < 8:
                    tgt = self.lab("ffirst") if b == 7 else lfl[(b+1) % 2]
                    if b == 7: lfirst = tgt
                    a(f"s_cmp_gt_u32 s13, {b}\ns_cbranch_scc1 {tgt}")
                p_ = pv(b+1, first=(b == 7)) if b < 8 else []
                q_ = qk(ks(b-1), nxt, cfor(b-1)) if b > 0 else []
                mf = []
                for k in range(2):
                    if k < len(p_): mf.append(p_[k])
                    if k < len(q_): mf.append(q_[k])
                a("s_waitcnt lgkmcnt(0)")
                lds = vread(b, vst) + (kread(b-2, ks(b-2)) if b - 2 >= 0 else [])
                va = []
                for i in range(16):
                    va.append(f"v_exp_f32 v{cur+i}, v{cur+i}")
                    if i % 2 == 1 and i >= 3:
                        j = (i - 3)//2
                        va.append(f"v_cvt_pk_bf16_f32 v{pst+j}, v{cur+2*j}, v{cur+2*j+1}")
                va.append(f"v_cvt_pk_bf16_f32 v{pst+7}, v{cur+14}, v{cur+15}")
                vi = li = 0
                for k, mm in enumerate(mf):
                    a(mm)
                    for _ in range(3):
                        if vi < len(va): a(va[vi]); vi += 1
                    if k >= 1:
                        for _ in range(2):
                            if li < len(lds): a(lds[li]); li += 1
                while li < len(lds): a(lds[li]); li += 1
                a(self.wo1_piece)
                while vi < len(va):
                    a(va[vi]); vi += 1
            a(f"{lfl[0]}:\ns_waitcnt lgkmcnt(0)")
            for x in pv(0): a(x)
            a(f"s_branch {lend}\n{lfl[1]}:\ns_waitcnt lgkmcnt(0)")
            for x in pv(1): a(x)
            a(f"s_branch {lend}\n{lfirst}:\ns_waitcnt lgkmcnt(0)")
            for x in pv(0, first=True): a(x)
            a(f"{lend}:\ns_nop 7\ns_nop 7")
            lreg = 104 if hd == 0 else 96
            a(f"""v_mov_b32 v8, v{lreg}
v_mov_b32 v9, v{lreg}
s_nop 1
v_permlane32_swap_b32 v8, v9
v_mov_b32 v10, {f2h(2.0**-40)}
v_mov_b32 v11, {f2h(2.0**40)}
v_cmp_nle_f32 vcc, v10, v{9 if hd == 0 else 8}
v_cmp_nle_f32 s[66:67], v{9 if hd == 0 else 8}, v11
s_nop 3
s_or_b64 vcc, vcc, s[66:67]
s_cmp_eq_u64 vcc, 0
s_cbranch_scc0 {lslow}
{lnorm}:""")
            a(f"v_rcp_f32 v8, v{9 if hd == 0 else 8}\ns_nop 0")
            for i in range(12):
                a(f"v_mul_f32 v{96+i}, v8, v{96+i}")
            d0 = 120 if hd == 0 else 126
            for j in range(6):
                a(f"v_cvt_pk_bf16_f32 v{d0+j}, v{96+2*j}, v{97+2*j}")
                if hd == 0 and j in (1, 4): a(self.wo1_piece)
            self.stamp(f"att_h{hd}", fine=True)
            self.att_slow.append((hd, lslow, lnorm))
        lc = self.lab("wo1c"); lcd = self.lab("wo1d")
        a(f"""{lc}:
s_cmp_ge_u32 s42, s65
s_cbranch_scc1 {lcd}
{self.wo1_piece}
s_branch {lc}
{lcd}:""")
        self.vm(f"""v_lshrrev_b32 v9, 5, v1
v_cmp_eq_u32 vcc, 1, v9
v_and_b32 v10, 15, v1
v_bfe_u32 v11, v1, 4, 1
v_cndmask_b32 v124, v124, v126, vcc
v_cndmask_b32 v125, v125, v127, vcc
s_lshl_b32 s14, s12, 1
v_add_u32 v11, s14, v11
v_mul_u32_u24 v11, 20480, v11
v_lshl_add_u32 v11, v10, 4, v11
v_lshl_add_u32 v12, v9, 8, v11
s_lshl_b32 s14, {S_P}, 10
s_add_u32 s14, s14, {WS_OF:#x}
buffer_store_dwordx4 v[120:123], v12, {WS}, s14 offen sc1
buffer_store_dwordx4 v[128:131], v12, {WS}, s14 offen offset:512 sc1
s_and_b32 s15, {S_P}, 1
v_xor_b32 v9, s15, v9
v_lshl_add_u32 v11, v9, 3, v11
s_lshr_b32 s14, {S_P}, 2
s_add_u32 s14, s14, 16
s_lshl_b32 s14, s14, 10
s_and_b32 s15, {S_P}, 3
s_lshl_b32 s15, s15, 8
s_add_u32 s14, s14, s15
s_add_u32 s14, s14, {WS_OF:#x}
buffer_store_dwordx2 v[124:125], v11, {WS}, s14 offen sc1""", "ost")
        self.stamp("att_done", fine=True)
        self.waitall()
        a(f"""s_barrier
s_lshl_b32 s12, {S_P}, 4
s_add_u32 s12, s12, {S_T}""")
        self.flag_store(2, "s12")

    def att_slow_paths(self):
        a = self.a
        NEG = "0xff800000"
        KR = [0, 8, 16]
        for (hd, lslow, lnorm) in self.att_slow:
            Qx = "v[224:227]" if hd == 0 else "v[232:235]"
            Q5 = "v[236:237]" if hd == 0 else "v[238:239]"
            VA = "v4" if hd == 0 else "v5"
            def kread(b, st):
                return [f"ds_read_b128 a[{st}:{st+3}], v6 offset:{b*2560 + 1024*hd}", f"ds_read_b64 a[{st+4}:{st+5}], v7 offset:{b*2560}"]
            def qk(st, dst, c="0"):
                return [f"v_mfma_f32_32x32x16_bf16 v[{dst}:{dst+15}], a[{st}:{st+3}], {Qx}, {c}",
                        f"v_mfma_f32_32x32x8bf16_1k v[{dst}:{dst+15}], a[{st+4}:{st+5}], {Q5}, v[{dst}:{dst+15}]"]
            def vread(b, st):
                return [f"ds_read_b64_tr_b16 a[{st+4*mm+2*rd}:{st+4*mm+2*rd+1}], {VA} offset:{b*3072 + mm*512 + rd*256}" for mm in range(2) for rd in range(2)]
            ks = lambda b: KR[b % 3]
            a(f"{lslow}:\ns_waitcnt lgkmcnt(0)\ns_nop 7\ns_nop 7")
            if self.o.get("cnt_slow"):
                a(f"v_mov_b32 v10, {4 + 4*hd}\nv_mov_b32 v11, 1\ns_mov_b64 exec, 1\nbuffer_atomic_add v11, v10, {DBG}, 0 offen\ns_mov_b64 exec, -1")
            for x in kread(8, ks(8)) + kread(0, ks(0)) + kread(7, ks(7)): a(x)
            a("s_waitcnt lgkmcnt(4)")
            for x in qk(ks(8), 32): a(x)
            a("s_waitcnt lgkmcnt(2)")
            for x in qk(ks(0), 16): a(x)
            for x in kread(6, ks(6)): a(x)
            l1 = self.lab("s1")
            a(f"s_nop 7\ns_nop 4\ns_cmp_eq_u32 s13, 0\ns_cbranch_scc1 {l1}")
            for i in range(16): a(f"v_mov_b32 v{16+i}, {NEG}")
            a(f"{l1}:")
            for i in range(16):
                a(f"v_cndmask_b32 v{48+i}, v{16+i}, v{32+i}, s[{68+2*i}:{69+2*i}]")
            a("s_waitcnt lgkmcnt(2)")
            for x in qk(ks(7), 16): a(x)
            a("v_max3_f32 v8, v48, v49, v50")
            for i in range(3, 15, 2):
                a(f"v_max3_f32 v8, v8, v{48+i}, v{49+i}")
            a("v_max_f32 v8, v8, v63")
            ld = self.lab("p1d")
            for b in range(7, 0, -1):
                cur = 16 if (7 - b) % 2 == 0 else 32
                nxt = 48 - cur
                a(f"s_cmp_gt_u32 s13, {b}\ns_cbranch_scc1 {ld}")
                if b - 2 >= 1:
                    for x in kread(b-2, ks(b-2)): a(x)
                if b > 1:
                    a(f"s_waitcnt lgkmcnt({2 if b-2 >= 1 else 0})")
                    m = qk(ks(b-1), nxt)
                    a(m[0])
                    for i in range(0, 8, 2): a(f"v_max3_f32 v8, v8, v{cur+i}, v{cur+i+1}")
                    a(m[1])
                    for i in range(8, 16, 2): a(f"v_max3_f32 v8, v8, v{cur+i}, v{cur+i+1}")
                else:
                    a("s_nop 7\ns_nop 3")
                    for i in range(0, 16, 2): a(f"v_max3_f32 v8, v8, v{cur+i}, v{cur+i+1}")
            a(f"{ld}:")
            a("s_waitcnt lgkmcnt(0)")
            for x in kread(7, ks(7)) + vread(8, 96) + vread(0, 104) + kread(6, ks(6)): a(x)
            a(f"""v_mov_b32 v9, v8
s_nop 1
v_permlane32_swap_b32 v8, v9
v_max_f32 v8, v8, v9
v_sub_f32 v9, 0, v8""")
            for i in range(16): a(f"v_mov_b32 v{64+i}, v9")
            a("s_waitcnt lgkmcnt(10)")
            m = qk(ks(7), 16, "v[64:79]")
            a(m[0])
            for i in range(16):
                a(f"v_add_f32 v{48+i}, v{48+i}, v9")
                if i == 7: a(m[1])
            for i in range(16):
                a(f"v_exp_f32 v{48+i}, v{48+i}")
            for j in range(8):
                a(f"v_cvt_pk_bf16_f32 v{80+j}, v{48+2*j}, v{49+2*j}")
            for j in range(8):
                a(f"v_and_b32 v{88+j}, v{112+j}, v{80+j}")
            a("s_waitcnt lgkmcnt(2)")
            a(f"v_mfma_f32_32x32x16_bf16 v[96:111], a[96:99], v[88:91], 0")
            for j in range(4):
                a(f"v_xor_b32 v{80+j}, v{80+j}, v{88+j}")
            a(f"v_mfma_f32_32x32x16_bf16 v[96:111], a[100:103], v[92:95], v[96:111]")
            for j in range(4, 8):
                a(f"v_xor_b32 v{80+j}, v{80+j}, v{88+j}")
            l2 = self.lab("v0")
            a(f"s_cmp_eq_u32 s13, 0\ns_cbranch_scc0 {l2}")
            a(f"v_mfma_f32_32x32x16_bf16 v[96:111], a[104:107], v[80:83], v[96:111]")
            a(f"v_mfma_f32_32x32x16_bf16 v[96:111], a[108:111], v[84:87], v[96:111]")
            a(f"{l2}:")
            lend = self.lab("p2e"); lfl = [self.lab("fl0"), self.lab("fl1")]
            pv = lambda b: [f"v_mfma_f32_32x32x16_bf16 v[96:111], a[{96+8*(b%2)}:{99+8*(b%2)}], v[{80+8*(b%2)}:{83+8*(b%2)}], v[96:111]",
                            f"v_mfma_f32_32x32x16_bf16 v[96:111], a[{100+8*(b%2)}:{103+8*(b%2)}], v[{84+8*(b%2)}:{87+8*(b%2)}], v[96:111]"]
            for b in range(7, 0, -1):
                cur = 16 if (7 - b) % 2 == 0 else 32
                nxt = 48 - cur
                pst = 80 + 8*(b % 2)
                vst = 96 + 8*(b % 2)
                tgt = lend if b == 7 else lfl[(b+1) % 2]
                a(f"s_cmp_gt_u32 s13, {b}\ns_cbranch_scc1 {tgt}")
                mf = (pv(b+1) if b < 7 else []) + (qk(ks(b-1), nxt, "v[64:79]") if b > 1 else [])
                a("s_waitcnt lgkmcnt(0)")
                lds = vread(b, vst) + (kread(b-2, ks(b-2)) if b - 2 >= 1 else [])
                va = []
                for i in range(16):
                    va.append(f"v_exp_f32 v{cur+i}, v{cur+i}")
                    if i % 2 == 1 and i >= 3:
                        j = (i - 3)//2
                        va.append(f"v_cvt_pk_bf16_f32 v{pst+j}, v{cur+2*j}, v{cur+2*j+1}")
                va.append(f"v_cvt_pk_bf16_f32 v{pst+7}, v{cur+14}, v{cur+15}")
                vi = li = 0
                for k, mm in enumerate(mf):
                    a(mm)
                    for _ in range(3):
                        if vi < len(va): a(va[vi]); vi += 1
                    if k >= len(mf) - 2 or len(mf) <= 2:
                        for _ in range(3):
                            if li < len(lds): a(lds[li]); li += 1
                while li < len(lds): a(lds[li]); li += 1
                while vi < len(va): a(va[vi]); vi += 1
            a(f"{lfl[1]}:\ns_waitcnt lgkmcnt(0)")
            for x in pv(1): a(x)
            a(f"s_branch {lend}\n{lfl[0]}:\ns_waitcnt lgkmcnt(0)")
            for x in pv(0): a(x)
            a(f"{lend}:\ns_nop 7\ns_nop 7")
            lreg = 104 if hd == 0 else 96
            a(f"""v_mov_b32 v8, v{lreg}
v_mov_b32 v9, v{lreg}
s_nop 1
v_permlane32_swap_b32 v8, v9
s_nop 1
s_branch {lnorm}""")

    def phase_wo(self):
        a = self.a
        SCR = 0
        a("; ---- phase 3: W_o ----")
        a(f"""v_lshlrev_b32 v2, 4, v1
s_lshl_b32 s77, {S_W}, 10
s_mul_i32 s76, {S_V}, 102400
s_add_u32 s76, s76, {WS_WOP:#x}
s_add_u32 s76, s76, s77
s_mul_i32 s78, {S_J}, 122880
s_add_u32 s78, s78, {WS_W1P:#x}
s_add_u32 s78, s78, s77""")
        for x in self.wave_dma("s76", "s77", 0, 5, 1024, first=80): self.vm(x, "wo")
        a(f"""v_and_b32 v8, 15, v1
v_lshlrev_b32 v8, 4, v8
s_lshr_b32 s12, {S_U}, 1
v_add_u32 v8, s12, v8
v_lshlrev_b32 v8, 7, v8
v_add_u32 v14, {WS_FLAGS + 2*0x8000:#x}, v8
s_and_b32 s12, {S_W}, 1
s_lshl_b32 s12, s12, 1
s_lshl_b32 s13, {S_U}, 2
s_add_u32 s12, s12, s13
s_lshr_b32 s13, {S_W}, 1
s_add_u32 {S_TGF}, s12, s13
s_xor_b32 s13, s13, 1
s_add_u32 {S_TG1}, s12, s13""")
        self.srd(SA, P_X, 2048*1280)
        a(f"""v_and_b32 v8, 15, v1
s_lshl_b32 s12, {S_TGF}, 4
v_add_u32 v8, s12, v8
v_mul_u32_u24 v8, 1280, v8
v_lshrrev_b32 v9, 4, v1
v_lshl_add_u32 v15, v9, 3, v8     ; row*1280 + q*8
s_mul_i32 s12, {S_V}, 160""")
        for j in range(5):
            self.vm(f"buffer_load_dwordx2 v[{104+2*j}:{105+2*j}], v15, {SA}, s12 offen offset:{32*j}", "xt")
        w1a = self.wave_dma("s78", "s77", W1B, 12, 1024, first=72)
        if not self.o.get("w1a_late", 1):
            for x in w1a: self.vm(x, "w1a")
            w1a = []
        a(f"""s_lshr_b32 s13, {S_W}, 1
s_mul_i32 s13, s13, 51200
v_add_u32 v4, s13, v2""")
        self.stamp("wo_pre", fine=True)
        self.poll("v14", drain="wo", extra="lgkmcnt(0)")
        self.stamp("wo_poll")
        a(f"""s_lshr_b32 s13, {S_W}, 1
s_mul_i32 s12, {S_TGF}, 20480
s_add_u32 s12, s12, {WS_OF:#x}
s_mul_i32 s14, {S_TG1}, 20480
s_add_u32 s14, s14, {WS_OF:#x}
s_lshl_b32 s15, s13, 13
s_add_u32 s64, s12, s15
s_add_u32 s65, s14, s15
s_lshl_b32 s15, s13, 11
s_add_u32 s15, s15, 16384
s_add_u32 s12, s12, s15
s_add_u32 s14, s14, s15""")
        def oload(sl):
            out = ""
            for u in range(2):
                st = (u*10 + sl)*4
                if sl < 8:
                    so = "s64" if u == 0 else "s65"
                    if sl == 4: out += f"s_add_u32 {so}, {so}, 4096\n"
                    out += f"buffer_load_dwordx4 a[{st}:{st+3}], v2, {WS}, {so} offen offset:{(sl%4)*1024} sc1\n"
                else:
                    so = "s12" if u == 0 else "s14"
                    out += f"buffer_load_dwordx4 a[{st}:{st+3}], v2, {WS}, {so} offen offset:{(sl-8)*1024} sc1\n"
            return out
        for sl in range(10): self.vm(oload(sl), f"o{sl}")
        def aread(sl):
            st = 16 + 20*(sl % 2)
            return [f"ds_read_b128 v[{st+4*j}:{st+4*j+3}], v4 offset:{sl*5120 + j*1024}" for j in range(5)]
        for x in aread(0): a(x)
        for sl in range(10):
            nxt = aread(sl+1) if sl < 9 else []
            self.waitvm(f"o{sl}", "lgkmcnt(0)")
            st = 16 + 20*(sl % 2)
            ni = 0
            for j in range(5):
                for u in range(2):
                    acc = 64 + (u*5 + j)*4
                    b = (u*10 + sl)*4
                    c = f"v[{acc}:{acc+3}]" if sl else "0"
                    a(f"v_mfma_f32_16x16x32_bf16 v[{acc}:{acc+3}], v[{st+4*j}:{st+4*j+3}], a[{b}:{b+3}], {c}")
                    if ni < len(nxt): a(nxt[ni]); ni += 1
                    if w1a and (2*j + u) in (6,) : self.vm(w1a.pop(0), "w1a")
                    if w1a and sl >= 8 and (2*j + u) == 8: self.vm(w1a.pop(0), "w1a")
        assert not w1a
        self.stamp("wo_main")
        a(f"""s_mul_i32 s12, {S_W}, 5120
s_add_u32 s12, s12, {SCR}
v_add_u32 v8, s12, v2
s_xor_b32 s12, {S_W}, 2
s_mul_i32 s12, s12, 5120
s_add_u32 s12, s12, {SCR}
v_add_u32 v9, s12, v2
v_lshrrev_b32 v10, 4, v1
v_lshlrev_b32 v11, 4, v10
v_add_u32 v11, {PT_GA}, v11
v_lshlrev_b32 v12, 3, v10
s_mul_i32 s12, {S_V}, 160
s_add_u32 s12, s12, {PT_G2B}
v_add_u32 v12, s12, v12
s_barrier""")
        for j in range(5):
            a(f"ds_write_b128 v8, v[{84+4*j}:{87+4*j}] offset:{1024*j}")
        for j in range(5):
            a(f"ds_read_b128 v[{36+4*j}:{39+4*j}], v11 offset:{64*j}")
        for j in range(5):
            a(f"ds_read_b128 v[{132+4*j}:{135+4*j}], v11 offset:{PT_G2 - PT_GA + 64*j}")
        a("s_waitcnt lgkmcnt(10)\ns_barrier")
        for j in range(5):
            a(f"ds_read_b128 v[{16+4*j}:{19+4*j}], v9 offset:{1024*j}")
        for j in range(5):
            a(f"ds_read_b64 v[{152+2*j}:{153+2*j}], v12 offset:{32*j}")
            a(f"ds_read_b64 v[{162+2*j}:{163+2*j}], v12 offset:{PT_S2B - PT_G2B + 32*j}")
        self.waitvm("xt", "lgkmcnt(15)")
        for j in range(5):
            for d in range(2):
                x = 104 + 2*j + d
                a(f"""v_lshlrev_b32 v{172+4*j+2*d}, 16, v{x}
v_and_b32 v{172+4*j+2*d+1}, 0xffff0000, v{x}
v_fmac_f32 v{172+4*j+2*d}, v{36+4*j+2*d}, v{64+4*j+2*d}
v_fmac_f32 v{172+4*j+2*d+1}, v{36+4*j+2*d+1}, v{64+4*j+2*d+1}""")
        a("s_waitcnt lgkmcnt(10)")
        for j in range(5):
            for d in range(2):
                u0, u1 = 172+4*j+2*d, 172+4*j+2*d+1
                a(f"""v_fmac_f32 v{u0}, v{36+4*j+2*d}, v{16+4*j+2*d}
v_fmac_f32 v{u1}, v{36+4*j+2*d+1}, v{16+4*j+2*d+1}
v_cvt_pk_bf16_f32 v{214+2*j+d}, v{u0}, v{u1}
v_mul_f32 v{u0}, v{u0}, v{132+4*j+2*d}
v_mul_f32 v{u1}, v{u1}, v{132+4*j+2*d+1}
v_cvt_pk_bf16_f32 v{84+2*j+d}, v{u0}, v{u1}""")
        self.vm(f"""s_lshr_b32 s12, {S_TGF}, 1            ; tb
s_and_b32 s13, {S_TGF}, 1
s_lshl_b32 s13, s13, 4
v_and_b32 v8, 15, v1
v_add_u32 v8, s13, v8              ; tok32
v_lshrrev_b32 v13, 1, v10
v_and_b32 v14, 1, v10
v_lshlrev_b32 v15, 4, v8
v_lshl_add_u32 v56, v13, 10, v15
v_lshl_add_u32 v56, v14, 9, v56
v_lshl_add_u32 v57, v13, 9, v15
v_lshl_add_u32 v57, v14, 3, v57
s_mul_i32 s13, s12, 40
s_mul_i32 s14, {S_V}, 5
s_add_u32 s13, s13, s14
s_lshl_b32 s13, s13, 10
s_add_u32 s13, s13, {WS_UF:#x}
buffer_store_dwordx4 v[84:87], v56, {WS}, s13 offen sc1
buffer_store_dwordx4 v[88:91], v56, {WS}, s13 offen offset:2048 sc1
s_add_u32 s13, s13, 4096
buffer_store_dwordx2 v[92:93], v57, {WS}, s13 offen sc1""", "ust")
        a("""s_waitcnt lgkmcnt(0)
v_mov_b32 v58, 0x3f803f80""")
        for k in range(6): a(f"v_mov_b32 v{96+k}, 0")
        for jd in range(10):
            up, tp = 214 + jd, 84 + jd
            a(f"""v_dot2_f32_bf16 v96, v{up}, v58, v96
v_dot2_f32_bf16 v97, v{up}, v{up}, v97
v_dot2_f32_bf16 v98, v{tp}, v58, v98
v_dot2_f32_bf16 v99, v{tp}, v{tp}, v99
v_dot2_f32_bf16 v100, v{tp}, v{152+jd}, v100
v_dot2_f32_bf16 v101, v{tp}, v{162+jd}, v101""")
        self.vm(f"""v_mov_b32 v102, 0
s_nop 2
v_permlane32_swap_b32 v96, v97
v_permlane32_swap_b32 v98, v99
v_permlane32_swap_b32 v100, v101
v_add_f32 v96, v96, v97
v_add_f32 v98, v98, v99
v_add_f32 v100, v100, v101
v_lshlrev_b32 v15, 5, v8
v_lshl_add_u32 v15, v10, 2, v15
v_permlane16_swap_b32 v96, v98
v_permlane16_swap_b32 v100, v102
s_lshl_b32 s13, s12, 3
s_add_u32 s13, s13, {S_V}
s_lshl_b32 s13, s13, 10
s_add_u32 s13, s13, {WS_ST:#x}
v_add_f32 v96, v96, v98
v_add_f32 v100, v100, v102
buffer_store_dword v96, v15, {WS}, s13 offen sc1
buffer_store_dword v100, v15, {WS}, s13 offen offset:16 sc1""", "ust")
        dma = self.wave_dma("s78", "s77", W1B, 18, 1024, first=0)
        self.stamp("wo_epi", fine=True)
        self.waitvm("ust")
        a(f"""s_barrier
s_lshl_b32 s12, {S_U}, 3
s_add_u32 s12, s12, {S_V}""")
        self.flag_store(3, "s12")
        self.stamp("wo_flag", fine=True)
        for x in dma: self.vm(x, "w1b")

    def phase_w1(self):
        a = self.a
        a("; ---- phase 4: W1 ----")
        a(f"""v_lshlrev_b32 v2, 4, v1
v_add_u32 v4, {W1B}, v2
v_add_u32 v5, {W1B + 20*3072}, v2""")
        def aoff(s, t):
            return ("v4", s*3072 + t*1024) if s < 20 else ("v5", (s-20)*3072 + t*1024)
        a(f"""v_mul_u32_u24 v8, 20, v1
v_add_u32 v8, {PT_G2B}, v8""")
        for d in range(5):
            a(f"ds_read_b32 v{16+d}, v8 offset:{4*d}\nds_read_b32 v{24+d}, v8 offset:{PT_S2B - PT_G2B + 4*d}")
        a("v_mov_b32 v58, 0x3f803f80")
        for k in range(5): a(f"v_mov_b32 v{148+k}, 0")
        a("s_waitcnt lgkmcnt(0)")
        for d in range(5):
            a(f"""v_dot2_f32_bf16 v148, v{16+d}, v58, v148
v_dot2_f32_bf16 v149, v{16+d}, v{16+d}, v149
v_dot2_f32_bf16 v150, v{16+d}, v{24+d}, v150
v_dot2_f32_bf16 v151, v{24+d}, v58, v151
v_dot2_f32_bf16 v152, v{24+d}, v{24+d}, v152""")
        for ror in (1, 2, 4, 8):
            for k in range(5):
                a(f"v_add_f32_dpp v{148+k}, v{148+k}, v{148+k} row_ror:{ror} row_mask:0xf bank_mask:0xf")
        for k in range(5): a(f"v_mov_b32 v{16+k}, v{148+k}")
        for k in range(5): a(f"v_permlane16_swap_b32 v{148+k}, v{16+k}")
        for k in range(5): a(f"v_add_f32 v{148+k}, v{148+k}, v{16+k}")
        for k in range(5): a(f"v_mov_b32 v{16+k}, v{148+k}")
        for k in range(5): a(f"v_permlane32_swap_b32 v{148+k}, v{16+k}")
        for k in range(5): a(f"v_add_f32 v{148+k}, v{148+k}, v{16+k}")
        a(f"""v_and_b32 v8, 15, v1               ; col
v_lshrrev_b32 v9, 4, v1            ; G
v_xor_b32 v10, v8, v9
v_and_b32 v10, 1, v10
v_lshrrev_b32 v11, 1, v8           ; vec
v_cmp_eq_u32 vcc, 0, v10
v_cmp_gt_u32 s[66:67], 2, v11
s_nop 1
s_and_b64 s[66:67], s[66:67], vcc
v_mov_b32 v12, 0
v_mov_b32 v13, -1
v_cndmask_b32 v60, v12, v13, s[66:67]     ; and-mask
v_cmp_eq_u32 s[66:67], 2, v11
s_nop 1
s_and_b64 s[66:67], s[66:67], vcc
v_mov_b32 v13, 0x3f803f80
v_cndmask_b32 v61, v12, v13, s[66:67]     ; or-constant
v_and_b32 v11, 1, v11
v_mul_u32_u24 v11, {PT_S2B - PT_G2B}, v11
v_lshrrev_b32 v9, 1, v9            ; h
v_lshl_add_u32 v62, v9, 3, v11
v_add_u32 v62, {PT_G2B}, v62
v_lshl_add_u32 v63, v9, 4, v11
v_add_u32 v63, {PT_G2B}, v63""")
        a(f"""s_mul_i32 s76, {S_V}, 245760
s_add_u32 s76, s76, {WS_W2P:#x}""")
        if not self.o.get("no_w2a") and not self.o.get("w2a_late", 1):
            self.w2_dma([(0, ph, ph) for ph in range(6)], tag="w2a")
        a(f"""v_and_b32 v8, 15, v1
s_lshl_b32 s12, {S_T1}, 4
v_add_u32 v8, s12, v8
v_lshlrev_b32 v8, 7, v8
v_add_u32 v14, {WS_FLAGS + 3*0x8000:#x}, v8
v_lshlrev_b32 v2, 4, v1""")
        self.stamp("w1_gsc", fine=True)
        self.poll("v14", drain="w1b", extra="lgkmcnt(0)")
        self.stamp("w1_poll")
        a(f"""s_lshl_b32 s12, {S_T1}, 2
s_add_u32 s12, s12, {S_W}          ; tb
s_mul_i32 s13, s12, 40960
s_add_u32 s13, s13, {WS_UF:#x}""")
        PF = self.o.get("w1_pf", 16)
        def uload(s):
            pre = "s_add_u32 s13, s13, 4096\n" if (s % 4 == 0 and s > 0) else ""
            return pre + f"buffer_load_dwordx4 a[{4*s}:{4*s+3}], v2, {WS}, s13 offen offset:{(s%4)*1024} sc1"
        for s in range(PF): self.vm(uload(s), f"u{s}")
        a(f"""s_lshl_b32 s14, s12, 13
s_add_u32 s14, s14, {WS_ST:#x}
v_and_b32 v8, 31, v1
v_lshlrev_b32 v8, 5, v8
v_lshrrev_b32 v9, 5, v1
v_lshl_add_u32 v8, v9, 4, v8""")
        for Vp in range(8):
            pre = "s_add_u32 s14, s14, 4096\n" if Vp == 4 else ""
            self.vm(pre + f"buffer_load_dwordx4 v[{116+4*Vp}:{119+4*Vp}], v8, {WS}, s14 offen offset:{(Vp%4)*1024} sc1", "st")
        def aread(s):
            st = 16 + 12*(s % 3)
            out = []
            for t in range(3):
                b, off = aoff(s, t)
                out.append(f"ds_read_b128 v[{st+4*t}:{st+4*t+3}], {b} offset:{off}")
            return out
        def pbread(s):
            st = 52 + 4*(s % 2)
            Vp, i = divmod(s, 5)
            if i < 4:
                k0 = 80*Vp + 32*(i >> 1) + 8*(i & 1)
                return [f"ds_read_b64 v[{st}:{st+1}], v62 offset:{2*k0}", f"ds_read_b64 v[{st+2}:{st+3}], v62 offset:{2*(k0+16)}"]
            k0 = 80*Vp + 64
            return [f"ds_read_b64 v[{st}:{st+1}], v63 offset:{2*k0}", f"ds_read_b64 v[{st+2}:{st+3}], v63 offset:{2*(k0+4)}"]
        for x in aread(0) + aread(1): a(x)
        self.touch_setup(13, 60)
        touches = []
        for i in range(2):
            self.touch_base(f"s{90+i}", 120, i, 60)
            a(f"s_add_u32 s{90+i}, s{90+i}, {WS_W2P:#x}")
            touches.append(f"buffer_load_dword v248, v13, {WS}, s{90+i} offen sc1")
        if not self.o.get("w2touch"): touches = []
        if self.o.get("w2a_late", 1) and not self.o.get("no_w2a"):
            a(f"""s_lshl_b32 s92, {S_W}, 10
s_add_u32 s93, s76, s92
s_min_u32 s94, {S_W}, 1
s_lshl_b32 s94, s94, 10
s_add_u32 s95, s76, s94""")
            for i in range(7):
                touches.append(f"s_add_u32 m0, s92, {4096*i}\ns_add_u32 s79, s93, {4096*i}\nbuffer_load_dwordx4 v2, {WS}, s79 offen sc1 lds")
            touches.append(f"s_add_u32 m0, s94, {4096*7}\ns_add_u32 s79, s95, {4096*7}\nbuffer_load_dwordx4 v2, {WS}, s79 offen sc1 lds")
        nxt_u = PF
        q_save = None
        for seg in range(4):
            lA = self.lab("gsA"); lJ = self.lab("gsJ")
            a(f"s_cmp_eq_u32 {S_W}, {seg}\ns_cbranch_scc1 {lA}")
            q0 = list(self.q); nu0 = nxt_u; t0 = list(touches)
            for ver in (0, 1):
                self.q = list(q0); nxt_u = nu0; touches = list(t0)
                if ver == 1:
                    a(f"s_branch {lJ}\n{lA}:")
                    for x in pbread(10*seg): a(x)
                    a("s_waitcnt lgkmcnt(0)")
                for s in range(10*seg, 10*seg + 10):
                    self.waitvm(f"u{s}", f"lgkmcnt({3 if s < 39 else 0})")
                    nxt = aread(s+2) if s + 2 < 40 else []
                    st = 16 + 12*(s % 3)
                    if ver == 1 and s + 1 < 10*seg + 10:
                        for x in pbread(s+1): a(x)
                    for t in range(3):
                        c = f"v[{64+16*t}:{79+16*t}]" if s else "0"
                        a(f"v_mfma_f32_32x32x16_bf16 v[{64+16*t}:{79+16*t}], v[{st+4*t}:{st+4*t+3}], a[{4*s}:{4*s+3}], {c}")
                        for x in nxt[t:t+1]: a(x)
                        if t == 0 and nxt_u < 40:
                            self.vm(uload(nxt_u), f"u{nxt_u}"); nxt_u += 1
                        elif t == 0 and touches:
                            self.vm(touches.pop(0), "touch")
                        if ver == 1 and t == 0:
                            pb = 52 + 4*(s % 2)
                            for d in range(4): a(f"v_and_or_b32 v{pb+d}, v{pb+d}, v104b, v105b".replace("v104b", "v60").replace("v105b", "v61"))
                    if ver == 1:
                        pb = 52 + 4*(s % 2)
                        for t in range(3):
                            c = f"v[{160+4*t}:{163+4*t}]" if s > 10*seg else "0"
                            a(f"v_mfma_f32_16x16x32_bf16 v[{160+4*t}:{163+4*t}], v[{st+4*t}:{st+4*t+3}], v[{pb}:{pb+3}], {c}")
            a(f"{lJ}:")
        self.stamp("w1_main")
        a(f"""v_and_b32 v8, 15, v1
v_lshrrev_b32 v9, 4, v1
v_lshrrev_b32 v10, 1, v8
v_mul_u32_u24 v10, 384, v10
v_and_b32 v11, 1, v8
v_lshl_add_u32 v10, v11, 6, v10
v_lshl_add_u32 v10, v9, 4, v10
s_mul_i32 s14, {S_W}, 1152
s_add_u32 s14, s14, {PT_PART}
v_add_u32 v10, s14, v10
v_cmp_gt_u32 vcc, 6, v8
s_and_saveexec_b64 s[66:67], vcc
s_nop 4""")
        for t in range(3):
            a(f"ds_write_b128 v10, v[{160+4*t}:{163+4*t}] offset:{128*t}")
        a(f"""s_mov_b64 exec, s[66:67]
s_waitcnt lgkmcnt(0)
s_barrier
v_lshlrev_b32 v8, 4, v0
v_min_u32 v8, 71*16, v8
v_add_u32 v9, {PT_PART}, v8
ds_read_b128 v[16:19], v9
ds_read_b128 v[20:23], v9 offset:1152
ds_read_b128 v[24:27], v9 offset:2304
ds_read_b128 v[28:31], v9 offset:3456
v_add_u32 v15, {PT_VEC}, v8""")
        self.waitvm("st")
        for e in range(4):
            a(f"""v_add_f32 v{116+e}, v{116+e}, v{120+e}
v_add_f32 v{124+e}, v{124+e}, v{128+e}
v_add_f32 v{132+e}, v{132+e}, v{136+e}
v_add_f32 v{140+e}, v{140+e}, v{144+e}
v_add_f32 v{116+e}, v{116+e}, v{124+e}
v_add_f32 v{132+e}, v{132+e}, v{140+e}
v_add_f32 v{116+e}, v{116+e}, v{132+e}""")
        for e in range(4): a(f"v_mov_b32 v{120+e}, v{116+e}")
        for e in range(4): a(f"v_permlane32_swap_b32 v{116+e}, v{120+e}")
        inv = f2h(1/640); eps = f2h(1e-5)
        a(f"""v_mul_f32 v124, {inv}, v116                 ; m1
v_mul_f32 v125, {inv}, v118
v_fma_f32 v125, -v124, v124, v125
v_max_f32 v125, 0, v125
v_add_f32 v125, {eps}, v125
v_rsq_f32 v125, v125                        ; r1
v_fma_f32 v126, -v124, v148, v117           ; P3 - m1*Sg
v_fma_f32 v126, v126, v125, v151            ; sum h2
v_mul_f32 v126, {inv}, v126                 ; m2
v_mul_f32 v127, v124, v149                  ; m1*Sg2
v_fma_f32 v127, -2.0, v120, v127            ; m1*Sg2 - 2*P5
v_fma_f32 v127, v124, v127, v119            ; P4 - 2 m1 P5 + m1^2 Sg2
v_mul_f32 v127, v127, v125
v_fma_f32 v128, -v124, v150, v122           ; P6 - m1*Sgs
v_fma_f32 v127, 2.0, v128, v127
v_fma_f32 v127, v127, v125, v152            ; sum h2^2
v_mul_f32 v127, {inv}, v127
v_fma_f32 v127, -v126, v126, v127
v_max_f32 v127, 0, v127
v_add_f32 v127, {eps}, v127
v_rsq_f32 v127, v127                        ; r2
s_nop 0
v_mul_f32 v116, v125, v127                  ; A
v_mul_f32 v117, v116, v124
v_sub_f32 v117, 0, v117                     ; B
v_mov_b32 v118, v127                        ; C
v_mul_f32 v119, v127, v126
v_sub_f32 v119, 0, v119                     ; D
s_waitcnt lgkmcnt(0)""")
        for e in range(4):
            a(f"v_add_f32 v{16+e}, v{16+e}, v{20+e}\nv_add_f32 v{24+e}, v{24+e}, v{28+e}\nv_add_f32 v{16+e}, v{16+e}, v{24+e}")
        a("""v_cmp_gt_u32 vcc, 72, v0
s_and_saveexec_b64 s[66:67], vcc
ds_write_b128 v15, v[16:19]
s_mov_b64 exec, s[66:67]
s_waitcnt lgkmcnt(0)
s_barrier""")
        kk = 2*0.7978845608028654*1.4426950408889634
        a(f"""v_lshrrev_b32 v8, 5, v1
v_lshlrev_b32 v9, 4, v8
v_add_u32 v9, {PT_B1}, v9          ; + h*16
v_and_b32 v10, 15, v1
v_bfe_u32 v11, v1, 4, 1
s_lshl_b32 s13, s12, 1
v_add_u32 v11, s13, v11             ; tg16
v_mul_u32_u24 v11, 49152, v11
v_lshl_add_u32 v11, v10, 4, v11
v_lshl_add_u32 v11, v8, 8, v11
s_lshr_b32 s14, {S_J}, 3
s_mul_i32 s14, s14, 24
s_and_b32 s15, {S_J}, 7
s_lshl_b32 s13, s15, 1
s_add_u32 s13, s13, s14
s_lshl_b32 s13, s13, 10
s_add_u32 s13, s13, {WS_HF:#x}      ; tiles 0,1
s_add_u32 s15, s15, s14
s_add_u32 s15, s15, 16
s_lshl_b32 s15, s15, 10
s_add_u32 s15, s15, {WS_HF:#x}      ; tile 2""")
        def vreads(qi):
            t, i = divmod(qi, 4)
            o = 128*t + 32*i
            b = 16 + 16*(qi % 2)
            return [f"ds_read_b128 v[{b}:{b+3}], v9 offset:{PT_VEC - PT_B1 + o}", f"ds_read_b128 v[{b+4}:{b+7}], v9 offset:{PT_VEC - PT_B1 + 384 + o}",
                    f"ds_read_b128 v[{b+8}:{b+11}], v9 offset:{PT_VEC - PT_B1 + 768 + o}", f"ds_read_b128 v[{b+12}:{b+15}], v9 offset:{o}"]
        a(f"""v_mov_b32 v120, v117
v_mov_b32 v122, v118
v_mov_b32 v124, v119
v_mov_b32 v126, {f2h(-kk*0.044715)}
v_mov_b32 v128, {f2h(-kk)}
v_mov_b32 v130, 1.0
v_mov_b32 v131, 1.0""")
        if self.o.get("w2reg", 0):
            a(f"""s_mul_i32 s76, {S_V}, 245760
s_add_u32 s76, s76, {WS_W2P:#x}
s_lshl_b32 s77, {S_W}, 10
s_add_u32 s78, s76, s77
s_add_u32 s88, s78, {15*5120}
s_add_u32 s89, s78, {39*5120 - 45*1024}
s_cmp_eq_u32 {S_W}, 0
s_cselect_b32 s90, s88, s89
s_min_u32 s77, {S_W}, 1
s_lshl_b32 s77, s77, 10
s_add_u32 s91, s76, s77
s_add_u32 s91, s91, {39*5120 - 45*1024}""")
            self.w2s2 = [(i, f"a[{192+4*i}:{195+4*i}]" if i < 16 else f"v[{160+4*(i-16)}:{163+4*(i-16)}]") for i in range(23)]
            w2r = []
            for (i, reg) in self.w2s2:
                base = "s88" if i <= 10 else ("s90" if i == 11 else ("s89" if i < 22 else "s91"))
                w2r.append(f"s_add_u32 s79, {base}, {4096*i}\nbuffer_load_dwordx4 {reg}, v2, {WS}, s79 offen sc1")
        else:
            w2r = []
        if self.o.get("ep", 1):
            a(f"""s_mul_i32 s76, {S_V}, 245760
s_add_u32 s76, s76, {WS_W2P:#x}
s_lshl_b32 s77, {S_W}, 10
s_add_u32 s78, s76, s77
s_add_u32 s88, s78, 30720
s_add_u32 s89, s78, 76800
s_cmp_eq_u32 {S_W}, 0
s_cselect_b32 s90, s88, s89
s_add_u32 s77, s77, 30720""")
            for i in range(30):
                base = "s88" if i <= 10 else ("s90" if i == 11 else "s89")
                w2r.append(f"s_add_u32 m0, s77, {4096*i}\ns_add_u32 s79, {base}, {4096*i}\nbuffer_load_dwordx4 v2, {WS}, s79 offen sc1 lds")
        BC = "op_sel_hi:[0,1,1]"
        for x in vreads(0): a(x)
        for qi in range(12):
            t, i = divmod(qi, 4)
            b = 16 + 16*(qi % 2)
            if qi < 11:
                for x in vreads(qi+1): a(x)
                a("s_waitcnt lgkmcnt(4)")
            else:
                a("s_waitcnt lgkmcnt(0)")
            z0 = 64 + 16*t + 4*i
            P = lambda r: f"v[{r}:{r+1}]"
            for h2 in (0, 2): a(f"v_pk_fma_f32 {P(z0+h2)}, v[116:117], {P(z0+h2)}, {P(b+12+h2)} {BC}")
            for h2 in (0, 2): a(f"v_pk_fma_f32 {P(z0+h2)}, v[120:121], {P(b+h2)}, {P(z0+h2)} {BC}")
            for h2 in (0, 2): a(f"v_pk_fma_f32 {P(z0+h2)}, v[122:123], {P(b+4+h2)}, {P(z0+h2)} {BC}")
            for h2 in (0, 2): a(f"v_pk_fma_f32 {P(z0+h2)}, v[124:125], {P(b+8+h2)}, {P(z0+h2)} {BC}")
            for h2 in (0, 2): a(f"v_pk_mul_f32 {P(48+h2)}, {P(z0+h2)}, {P(z0+h2)}")
            for h2 in (0, 2): a(f"v_pk_fma_f32 {P(48+h2)}, v[126:127], {P(48+h2)}, v[128:129] op_sel_hi:[0,1,0]")
            for h2 in (0, 2): a(f"v_pk_mul_f32 {P(48+h2)}, {P(z0+h2)}, {P(48+h2)}")
            if w2r: self.vm(w2r.pop(0), "w2r")
            for e in range(4): a(f"v_exp_f32 v{48+e}, v{48+e}")
            for h2 in (0, 2): a(f"v_pk_add_f32 {P(48+h2)}, {P(48+h2)}, v[130:131]")
            if w2r: self.vm(w2r.pop(0), "w2r")
            for e in range(4): a(f"v_rcp_f32 v{48+e}, v{48+e}")
            if w2r and self.o.get("ep", 1) and qi % 2 == 0: self.vm(w2r.pop(0), "w2r")
            for h2 in (0, 2): a(f"v_pk_mul_f32 {P(z0+h2)}, {P(z0+h2)}, {P(48+h2)}")
            d = 52 + 2*i
            a(f"v_cvt_pk_bf16_f32 v{d}, v{z0}, v{z0+1}\nv_cvt_pk_bf16_f32 v{d+1}, v{z0+2}, v{z0+3}")
            if i % 2 == 1:
                so, off = ("s13", 1024*t) if t < 2 else ("s15", 0)
                self.vm(f"buffer_store_dwordx4 v[{52+4*(i>>1)}:{55+4*(i>>1)}], v11, {WS}, {so} offen offset:{off + 512*(i>>1)} sc1", "hst01" if t < 2 else "hst2")
            if qi == 9 and self.o.get("ep", 1):
                self.waitvm("hst01")
                a(f"s_barrier\ns_lshl_b32 s12, {S_T1}, 4\ns_add_u32 s12, s12, {S_J}")
                self.flag_store(6, "s12")
        assert not w2r
        self.stamp("w1_epi", fine=True)
        if not self.o.get("ep", 1):
            self.waitvm("hst2")
            a(f"""s_barrier
s_lshl_b32 s12, {S_T1}, 4
s_add_u32 s12, s12, {S_J}""")
            self.flag_store(4, "s12")

    def w2_dma(self, groups, tag="w2"):
        pcs = [((kh*24 + ph)*5120 + j*1024, kh*76800 + slot*5120 + j*1024) for (kh, ph, slot) in groups for j in range(5)]
        while len(pcs) % 4: pcs.append(pcs[len(pcs) % 4])
        a = self.a
        n = len(pcs)//4
        labs = [self.lab(f"w2d{w}") for w in range(4)]
        lend = self.lab("w2de")
        for w in range(1, 4):
            a(f"s_cmp_eq_u32 {S_W}, {w}\ns_cbranch_scc1 {labs[w]}")
        a("s_nop 0")
        for w in range(4):
            a(f"{labs[w]}:")
            for x in self.lin_dma("s76", 0, pcs[w::4]): a(x)
            if w < 3: a(f"s_branch {lend}")
        a(f"{lend}:")
        self.q += [tag]*n

    def phase_w2(self):
        a = self.a
        SCR = 0
        a("; ---- phase 5: W2 ----")
        a(f"""v_lshlrev_b32 v2, 4, v1
s_mul_i32 s76, {S_V}, 245760
s_add_u32 s76, s76, {WS_W2P:#x}""")
        done = set() if self.o.get("no_w2a") else {(0, ph) for ph in range(6)}
        EP = self.o.get("ep", 1)
        if not EP:
            self.w2_dma([(kh, ph, ph) for ph in range(15) for kh in range(2) if (kh, ph) not in done])
        a(f"""v_and_b32 v8, 15, v1
s_lshr_b32 s12, {S_U}, 1
s_lshl_b32 s12, s12, 4
v_add_u32 v8, s12, v8
v_lshlrev_b32 v8, 7, v8
v_add_u32 v14, {WS_FLAGS + (6 if EP else 4)*0x8000:#x}, v8
v_add_u32 v13, {WS_FLAGS + 4*0x8000:#x}, v8
s_lshr_b32 s13, {S_W}, 1
s_mul_i32 s13, s13, 76800
v_add_u32 v4, s13, v2
v_add_u32 v5, {8*5120}, v4""")
        self.stamp("w2_dmaiss", fine=True)
        if EP:
            self.poll("v14", drain="hst2")
            a(f"s_lshl_b32 s12, {S_T1}, 4\ns_add_u32 s12, s12, {S_J}")
            self.flag_store(4, "s12")
        else:
            self.poll("v14", drain="w2")
        self.stamp("w2_poll")
        a(f"""s_lshr_b32 s13, {S_W}, 1
s_mul_i32 s13, s13, 24576
s_add_u32 s13, s13, {WS_HF:#x}
s_mul_i32 s12, {S_TGF}, 49152
s_add_u32 s12, s12, s13
s_mul_i32 s14, {S_TG1}, 49152
s_add_u32 s14, s14, s13""")
        PF = self.o.get("w2_pf", 8)
        def hload(ph):
            out = "s_add_u32 s12, s12, 4096\ns_add_u32 s14, s14, 4096\n" if (ph % 4 == 0 and ph > 0) else ""
            for u, so in ((0, "s12"), (1, "s14")):
                st = (u*24 + ph)*4
                out += f"buffer_load_dwordx4 a[{st}:{st+3}], v2, {WS}, {so} offen offset:{(ph%4)*1024} sc1\n"
            return out
        for ph in range(PF): self.vm(hload(ph), f"h{ph}")
        slot = lambda ph: ph if ph < 15 else ph - 15
        def aread(ph):
            st = 16 + 20*(ph % 2)
            sl = slot(ph)
            b, o = ("v4", sl*5120) if sl < 8 else ("v5", (sl-8)*5120)
            return [f"ds_read_b128 v[{st+4*j}:{st+4*j+3}], {b} offset:{o + j*1024}" for j in range(5)]
        for x in aread(0): a(x)
        nxt_h = PF
        w2w = []
        nw = 0
        for ph in range(24):
            if ph == 15:
                self.waitvm("w2", "lgkmcnt(0)")
                a("s_barrier")
                for x in aread(15): a(x)
                nw = 0
            if ph in (1, 9, 15): self.stamp(f"w2_ph{ph}", fine=True)
            self.waitvm(f"h{ph}", f"lgkmcnt({nw})")
            nw = 0
            nxt = aread(ph+1) if (ph < 23 and ph != 14) else []
            st = 16 + 20*(ph % 2)
            ni = 0
            for j in range(5):
                for u in range(2):
                    acc = 64 + (u*5 + j)*4
                    b = (u*24 + ph)*4
                    c = f"v[{acc}:{acc+3}]" if ph else "0"
                    a(f"v_mfma_f32_16x16x32_bf16 v[{acc}:{acc+3}], v[{st+4*j}:{st+4*j+3}], a[{b}:{b+3}], {c}")
                    if ni < len(nxt): a(nxt[ni]); ni += 1
                    if j == 3 and u == 1 and nxt_h < 24 and (not EP or nxt_h < 16 or ph > 8):
                        self.vm(hload(nxt_h), f"h{nxt_h}"); nxt_h += 1
                    if EP and ph in (9, 10) and j == 1 and u == 1 and nxt_h < 24:
                        self.vm(hload(nxt_h), f"h{nxt_h}"); nxt_h += 1
                    if EP and ph == 4 and j == 0 and u == 0:
                        lf = self.lab("f4")
                        a(f"s_cmp_lg_u32 {S_W}, 0\ns_cbranch_scc1 {lf}\nbuffer_load_dword v250, v13, {WS}, 0 offen sc1\n{lf}:")
                    if w2w and 5 <= 2*j + u <= 8:
                        a(w2w.pop(0)); nw += 1
            if ph == 14: assert not w2w
            if ph == 8:
                if EP:
                    lc = self.lab("c4"); lcl = self.lab("c4l")
                    self.waitvm(f"h{min(nxt_h, 24)-1}" if False else "h12")
                    a(f"""s_cmp_lg_u32 {S_W}, 0
s_cbranch_scc1 {lc}
s_mov_b32 s64, 0
{lcl}:
v_cmp_ne_u32 vcc, {S_EP}, v250
s_nop 3
s_cmp_eq_u64 vcc, 0
s_cbranch_scc1 {lc}
s_add_u32 s64, s64, 1
s_cmp_gt_u32 s64, {self.timeout}
s_cbranch_scc1 {lc}
buffer_load_dword v250, v13, {WS}, 0 offen sc1
s_waitcnt vmcnt(0)
s_branch {lcl}
{lc}:""")
                a("s_waitcnt lgkmcnt(0)\ns_barrier")
                if self.o.get("w2reg", 0):
                    a(f"""s_lshl_b32 s77, {S_W}, 10
v_add_u32 v8, s77, v2
v_add_u32 v9, {30720 + 12*4096}, v8
s_cmp_eq_u32 {S_W}, 0
s_cselect_b32 s78, 0, 30720
s_add_u32 s78, s78, s77
s_add_u32 s78, s78, {11*4096}
v_add_u32 v10, s78, v2
s_min_u32 s78, {S_W}, 1
s_lshl_b32 s78, s78, 10
s_add_u32 s78, s78, {30720 + 22*4096}
v_add_u32 v11, s78, v2""")
                    for (i_, reg) in self.w2s2:
                        if i_ <= 10: w2w.append(f"ds_write_b128 v8, {reg} offset:{4096*i_}")
                        elif i_ == 11: w2w.append(f"ds_write_b128 v10, {reg}")
                        elif i_ < 22: w2w.append(f"ds_write_b128 v9, {reg} offset:{4096*(i_-12)}")
                        else: w2w.append(f"ds_write_b128 v11, {reg}")
                else:
                    self.w2_dma([(kh, p2, p2 - 15) for p2 in range(15, 24) for kh in range(2)])
        self.stamp("w2_main")
        a(f"""s_mul_i32 s12, {S_W}, 5120
s_add_u32 s12, s12, {SCR}
v_add_u32 v8, s12, v2
s_xor_b32 s12, {S_W}, 2
s_mul_i32 s12, s12, 5120
s_add_u32 s12, s12, {SCR}
v_add_u32 v9, s12, v2
v_lshrrev_b32 v10, 4, v1
v_lshlrev_b32 v11, 4, v10
v_add_u32 v11, {PT_GA}, v11
s_barrier""")
        for j in range(5):
            a(f"ds_write_b128 v8, v[{84+4*j}:{87+4*j}] offset:{1024*j}")
        for j in range(5):
            a(f"ds_read_b128 v[{36+4*j}:{39+4*j}], v11 offset:{PT_B2 - PT_GA + 64*j}")
        for j in range(5):
            a(f"ds_read_b128 v[{132+4*j}:{135+4*j}], v11 offset:{PT_GB - PT_GA + 64*j}")
        self.srd(SC, P_OUT, 2048*1280)
        a(f"""v_and_b32 v8, 15, v1
s_lshl_b32 s12, {S_TGF}, 4
v_add_u32 v8, s12, v8
v_mul_u32_u24 v8, 1280, v8
v_lshl_add_u32 v15, v10, 3, v8
s_mul_i32 s12, {S_V}, 160
s_waitcnt lgkmcnt(10)
s_barrier""")
        for j in range(5):
            a(f"ds_read_b128 v[{16+4*j}:{19+4*j}], v9 offset:{1024*j}")
        a("s_waitcnt lgkmcnt(5)")
        for j in range(5):
            for e in range(4):
                a(f"v_add_f32 v{64+4*j+e}, v{64+4*j+e}, v{36+4*j+e}")
        a("s_waitcnt lgkmcnt(0)")
        for j in range(5):
            for e in range(4):
                a(f"v_add_f32 v{64+4*j+e}, v{64+4*j+e}, v{16+4*j+e}")
            for d in range(2):
                x = 214 + 2*j + d
                a(f"""v_lshlrev_b32 v56, 16, v{x}
v_and_b32 v57, 0xffff0000, v{x}
v_fmac_f32 v56, v{132+4*j+2*d}, v{64+4*j+2*d}
v_fmac_f32 v57, v{132+4*j+2*d+1}, v{64+4*j+2*d+1}
v_cvt_pk_bf16_f32 v{104+2*j+d}, v56, v57""")
            self.vm(f"buffer_store_dwordx2 v[{104+2*j}:{105+2*j}], v15, {SC}, s12 offen offset:{32*j} {self.o.get('outfl', '')}", "out")

    def build(self):
        a = self.a
        a.label("L_code_begin")
        self.prologue()
        self.stamp("start", real=True)
        self.stamp("t0")
        self.srd("s[72:75]", P_WQKV, 640*3840)
        self.phase0()
        self.stamp("p0_done")
        if self.stop_after >= 1:
            self.phase_qkv()
            self.stamp("qkv_pub")
        if self.stop_after >= 2:
            self.phase_att()
            self.stamp("att_pub")
        if self.stop_after >= 3:
            self.phase_wo()
            self.stamp("wo_pub")
        if self.stop_after >= 4:
            self.phase_w1()
            self.stamp("w1_pub")
        if self.stop_after >= 5:
            self.phase_w2()
            self.stamp("end")
        if self.prof:
            a("s_waitcnt vmcnt(0) lgkmcnt(0)")
            self.stamp("end", real=True)
            self.stamp_flush()
        a.label("L_end")
        a("s_endpgm")
        self.att_slow_paths()
        a.label("L_code_end")
        body = a.finish()
        hdr = open(os.path.join(os.path.dirname(os.path.abspath(__file__)), "header.txt")).read()
        return f"""{hdr}; @launch grid=(256,1,1) block=(256,1,1) lds=163840
.amdgcn_target "amdgcn-amd-amdhsa--gfx950"
.text
.globl {NAME}_kernel
.p2align 8
.type {NAME}_kernel,@function
{NAME}_kernel:
{body}
.section .rodata,"a"
.p2align 6
.amdhsa_kernel {NAME}_kernel
  .amdhsa_next_free_vgpr 512
  .amdhsa_next_free_sgpr 102
  .amdhsa_accum_offset 256
  .amdhsa_group_segment_fixed_size 0
  .amdhsa_kernarg_size 104
  .amdhsa_user_sgpr_count 2
  .amdhsa_user_sgpr_kernarg_segment_ptr 1
  .amdhsa_system_sgpr_workgroup_id_x 1
  .amdhsa_float_denorm_mode_32 3
.end_amdhsa_kernel
"""

if __name__ == "__main__":
    import argparse, json
    ap = argparse.ArgumentParser()
    ap.add_argument("-o", default=f"cdna_kernels/{NAME}.s")
    ap.add_argument("--stop", type=int, default=99)
    ap.add_argument("--prof", action="store_true")
    ap.add_argument("--opts", default="{}")
    args = ap.parse_args()
    g = G(stop_after=args.stop, prof=args.prof, opts=json.loads(args.opts))
    s = g.build()
    open(args.o, "w").write(s)
    json.dump(g.stamps, open(args.o + ".stamps.json", "w"))
    print("wrote", args.o, len(s), "bytes; nops inserted:", g.a.inserted)
```
